```python
import torch

def _softmax(x, axis=-1):
    return torch.softmax(x, dim=axis)
def _gelu(x):
    return torch.nn.functional.gelu(x, approximate="tanh")
def _silu(x):
    return torch.nn.functional.silu(x)
def _sigmoid(x):
    return torch.sigmoid(x)
def _layernorm(x, axis=-1, eps=1e-5):
    m = x.mean(dim=axis, keepdim=True)
    v = x.var(dim=axis, keepdim=True, unbiased=False)
    return (x - m) / torch.sqrt(v + eps)
def _scatter_add(tgt, idx, src, axis=0):
    return tgt.clone().index_add_(axis, idx, src)
def _segment_sum(src, seg, n):
    out = torch.zeros((n,) + src.shape[1:], dtype=src.dtype)
    return out.index_add_(0, seg, src)
def _pad(x, pw):
    flat = tuple(v for pair in reversed(pw) for v in pair)
    return torch.nn.functional.pad(x, flat)

kernel_name = 'parallel_sum__mha_block__swiglu_ffn__prompt'

def setup_inputs():

    _w = (lambda a: (lambda t: t.to(torch.bfloat16) if t.is_floating_point() else t)(torch.as_tensor(a)))
    def _A_setup():
        B, S, D, H = 1, 2048, 640, 32
        return {
            "x": _w((lambda *s: torch.randn(*s, dtype=torch.bfloat16) * 0.05)(B, S, D)),
            "wqkv": _w((lambda *s: torch.randn(*s, dtype=torch.bfloat16) * 0.2)(D, 3 * D)),
            "wo": _w((lambda *s: torch.randn(*s, dtype=torch.bfloat16) * 0.1)(D, D)),
        }
    _A_in = _A_setup()

    def _B_setup():
        B, S, D, F = 1, 2048, 640, 1536
        return {
            "x": _w((lambda *s: torch.randn(*s, dtype=torch.bfloat16) * 0.05)(B, S, D)),
            "w_gate": _w((lambda *s: torch.randn(*s, dtype=torch.bfloat16) * 0.1)(D, F)),
            "w_up": _w((lambda *s: torch.randn(*s, dtype=torch.bfloat16) * 0.1)(D, F)),
            "w_down": _w((lambda *s: torch.randn(*s, dtype=torch.bfloat16) * 0.1)(F, D)),
        }
    _B_in = _B_setup()

    return {
        "A_x": _A_in["x"],
        "A_wqkv": _A_in["wqkv"],
        "A_wo": _A_in["wo"],
        "B_x": _B_in["x"],
        "B_w_gate": _B_in["w_gate"],
        "B_w_up": _B_in["w_up"],
        "B_w_down": _B_in["w_down"],
    }

def reference(A_x, A_wqkv, A_wo, B_x, B_w_gate, B_w_up, B_w_down):
    def _A_ref(x, wqkv, wo):
        B, S, D = x.shape
        H = 32
        Dh = D // H
        qkv = (lambda x, *d: x.permute(*d))((x @ wqkv).reshape(B, S, 3, H, Dh), 2, 0, 3, 1, 4)
        q, k, v = qkv[0], qkv[1], qkv[2]
        scores = torch.einsum("bhqd,bhkd->bhqk", q, k) * (Dh ** -0.5)
        p = _softmax(scores, axis=-1)
        o = torch.einsum("bhqk,bhkd->bhqd", p, v)
        return (lambda x, *d: x.permute(*d))(o, 0, 2, 1, 3).reshape(B, S, D) @ wo

    def _B_ref(x, w_gate, w_up, w_down):
        g = _silu(x @ w_gate)
        u = x @ w_up
        return (g * u) @ w_down

    x = A_x
    xn = _layernorm(x, axis=-1)
    return x + _A_ref(xn, A_wqkv, A_wo) + _B_ref(xn, B_w_gate, B_w_up, B_w_down)
```

```python
import re

def v(i, n=1):
    return f"v{i}" if n == 1 else f"v[{i}:{i+n-1}]"
def s(i, n=1):
    return f"s{i}" if n == 1 else f"s[{i}:{i+n-1}]"
def a(i, n=1):
    return f"a{i}" if n == 1 else f"a[{i}:{i+n-1}]"

class Asm:
    def __init__(self):
        self.lines = []
    def __call__(self, text):
        for ln in text.split("\n"):
            ln = ln.rstrip()
            if ln.strip():
                self.lines.append(ln if ln.endswith(":") or ln.startswith(".") or ln.startswith(";") else "    " + ln.strip())
    def label(self, name):
        self.lines.append(f"{name}:")
    def c(self, text):
        self.lines.append(f"    ; {text}")
    def text(self):
        return "\n".join(self.lines) + "\n"

class Regs:
    def __init__(self, start, limit, kind="v"):
        self.n = start; self.limit = limit; self.kind = kind; self.names = {}
    def alloc(self, name, n=1, align=1):
        if n >= 2 and align == 1:
            align = 2 if self.kind == "v" else (4 if n >= 4 else 2)
        self.n = (self.n + align - 1) // align * align
        r = self.n; self.n += n
        assert self.n <= self.limit, f"out of {self.kind} registers at {name}: {self.n} > {self.limit}"
        self.names[name] = (r, n)
        return r

REG_RE = re.compile(r"^(-|abs\()?\s*([vsa])(\d+)\)?$")
RANGE_RE = re.compile(r"^(-|abs\()?\s*([vsa])\[(\d+):(\d+)\]\)?$")

def regs_of(op):
    op = op.strip()
    m = REG_RE.match(op)
    if m: return [(m.group(2), int(m.group(3)))]
    m = RANGE_RE.match(op)
    if m: return [(m.group(2), i) for i in range(int(m.group(3)), int(m.group(4)) + 1)]
    if op == "vcc": return [("s", "vcc")]
    if op in ("exec", "exec_lo", "exec_hi"): return [("s", "exec")]
    if op == "m0": return [("s", "m0")]
    if op in ("vcc_lo", "vcc_hi"): return [("s", "vcc")]
    return []

def split_ops(rest):
    out, depth, cur = [], 0, ""
    for ch in rest:
        if ch in "[(": depth += 1
        if ch in "])": depth -= 1
        if ch == "," and depth == 0:
            out.append(cur.strip()); cur = ""
        else:
            cur += ch
    if cur.strip(): out.append(cur.strip())
    return out

TRANS = ("v_exp_", "v_log_", "v_rcp_", "v_rsq_", "v_sqrt_", "v_sin_", "v_cos_")

class Ins:
    __slots__ = ("text", "mn", "ops", "mods", "kind", "wr", "rd", "idx", "A", "B", "C", "passes", "note")
    def __init__(self, text, idx):
        self.text = text; self.idx = idx
        code, _, note = text.partition(";")
        self.note = note
        code = code.strip()
        mn, _, rest = code.partition(" ")
        self.mn = mn
        ops = split_ops(rest)
        mods = ""
        if ops:
            last = ops[-1].split()
            if len(last) > 1:
                ops[-1] = last[0]; mods = " ".join(last[1:])
        self.ops = ops; self.mods = mods
        self.A = self.B = self.C = []; self.passes = 0
        wr, rd = [], []
        R = regs_of
        if mn.startswith("v_mfma"):
            self.kind = "mfma"
            wr = R(ops[0]); self.A = R(ops[1]); self.B = R(ops[2]); self.C = R(ops[3])
            rd = self.A + self.B + self.C
            self.passes = 8 if "32x32" in mn else 4
        elif mn.startswith("v_"):
            self.kind = "valu"
            if mn.startswith("v_cmp"):
                wr = R(ops[0]); rd = sum((R(o) for o in ops[1:]), [])
            elif mn.startswith("v_permlane") and "swap" in mn:
                wr = R(ops[0]) + R(ops[1]); rd = list(wr)
            elif mn.startswith(("v_add_co", "v_sub_co", "v_addc_co", "v_subb_co")):
                wr = R(ops[0]) + R(ops[1]); rd = sum((R(o) for o in ops[2:]), [])
            else:
                wr = R(ops[0]); rd = sum((R(o) for o in ops[1:]), [])
                if mn.startswith(("v_fmac", "v_dot2c", "v_writelane", "v_mac")) or "UNUSED_PRESERVE" in mods:
                    rd += wr
                if mn.startswith("v_cndmask") and len(ops) == 3:
                    rd += [("s", "vcc")]
        elif mn.startswith("ds_"):
            self.kind = "ds"
            if mn.startswith(("ds_read", "ds_bpermute", "ds_swizzle")) or "_rtn" in mn:
                wr = R(ops[0]); rd = sum((R(o) for o in ops[1:]), [])
            else:
                rd = sum((R(o) for o in ops), [])
        elif mn.startswith(("buffer_", "global_")):
            self.kind = "vmem"
            lds = " lds" in (" " + mods) or "_lds_" in mn
            if mn in ("buffer_inv", "buffer_wbl2"):
                pass
            elif "load" in mn and not lds:
                wr = R(ops[0]); rd = sum((R(o) for o in ops[1:]), [])
            elif "atomic" in mn and "sc0" in mods:
                if mn.startswith("buffer_"):
                    wr = R(ops[0]); rd = sum((R(o) for o in ops), [])
                else:
                    wr = R(ops[0]); rd = sum((R(o) for o in ops[1:]), [])
            else:
                rd = sum((R(o) for o in ops), [])
                if lds: rd += [("s", "m0")]
        elif mn.startswith("s_load") or mn.startswith("s_memtime") or mn.startswith("s_memrealtime"):
            self.kind = "smem"
            wr = R(ops[0]); rd = sum((R(o) for o in ops[1:]), [])
        elif mn in ("s_waitcnt", "s_nop", "s_barrier", "s_endpgm", "s_sleep", "s_setprio", "s_branch") or mn.startswith("s_cbranch"):
            self.kind = "ctl"
        elif mn.startswith("s_"):
            self.kind = "salu"
            if mn.startswith("s_cmp") or mn.startswith("s_bitcmp"):
                rd = sum((R(o) for o in ops), [])
            else:
                wr = R(ops[0]); rd = sum((R(o) for o in ops[1:]), [])
                if "saveexec" in mn: wr += [("s", "exec")]; rd += [("s", "exec")]
                if mn.startswith(("s_addk", "s_mulk")): rd += wr
        else:
            raise ValueError("unknown instruction: " + text)
        self.wr = set(wr); self.rd = set(rd)
    def states(self):
        if self.mn == "s_nop": return int(self.ops[0], 0) + 1
        return 1

def parse(text):
    ins, labels = [], {}
    for ln in text.split("\n"):
        t = ln.split(";")[0].strip()
        if not t or t.startswith("."): continue
        if t.endswith(":"):
            labels[t[:-1]] = len(ins); continue
        ins.append(Ins(ln.strip(), len(ins)))
    return ins, labels

def trace(ins, labels, start, decisions=None, loops=2, maxlen=400000):
    decisions = decisions or {}
    pc = labels[start]; out = []; cnt = {}
    while pc < len(ins) and len(out) < maxlen:
        i = ins[pc]; out.append(i)
        if i.mn == "s_endpgm": break
        if i.mn == "s_branch":
            pc = labels[i.ops[0]]; continue
        if i.mn.startswith("s_cbranch"):
            tgt = labels[i.ops[0]]
            if tgt <= pc:
                n = cnt.get(pc, 0) + 1
                lim = decisions.get(i.ops[0], loops)
                if n < lim:
                    cnt[pc] = n; pc = tgt; continue
                cnt[pc] = 0
            else:
                d = decisions.get(i.ops[0], False)
                if isinstance(d, list):
                    d = d.pop(0) if d else False
                if d:
                    pc = tgt; continue
        pc += 1
    return out

def vonly(rs):
    return {r for r in rs if r[0] in "va"}

def lint(tr, name=""):
    errs = []
    def err(i, j, msg):
        errs.append(f"[{name}] {msg}\n      producer: {tr[i].text}\n      consumer: {tr[j].text}")
    n = len(tr)
    for i in range(n):
        p = tr[i]
        if p.kind not in ("valu", "mfma", "salu", "vmem"): continue
        dist = 0
        for j in range(i + 1, min(n, i + 24)):
            c = tr[j]
            if p.kind == "valu":
                wv = vonly(p.wr); ws = {r for r in p.wr if r[0] == "s"}
                if c.kind == "mfma" and wv & c.rd and dist < 2: err(i, j, f"VALU->MFMA needs 2, has {dist}")
                if p.mn.startswith(TRANS) and c.kind == "valu" and not c.mn.startswith(TRANS) and wv & c.rd and dist < 1:
                    err(i, j, "trans->VALU needs 1")
                if p.mn.startswith(TRANS) and c.kind == "valu" and c.mn.startswith(TRANS) and wv & c.rd and dist < 1:
                    err(i, j, "trans->trans dependent (pad 1 to be safe)")
                if c.mn.startswith(("v_readfirstlane", "v_readlane")) and wv & c.rd and dist < 1: err(i, j, "VALU->readlane needs 1")
                if c.mn.startswith("v_permlane") and wv & c.rd and dist < 2: err(i, j, "VALU->permlane needs 2")
                if c.kind == "valu" and ("dpp" in c.mn or "quad_perm" in c.mods or "row_" in c.mods) and wv & c.rd and dist < 2:
                    err(i, j, "VALU->DPP needs 2")
                if ws:
                    if c.kind == "valu" and ws & c.rd and dist < 2: err(i, j, "VALU sgpr write->VALU read needs 2")
                    if c.kind == "vmem" and ws & c.rd and dist < 5: err(i, j, "VALU sgpr write->VMEM needs 5")
                    if c.kind == "salu" and ws & c.rd and dist < 1: err(i, j, "VALU sgpr write->SALU read (pad 1)")
                if ("sdwa" in p.mn or "op_sel" in p.mods) and c.kind == "valu" and wv & c.rd and dist < 1 and "pk_" not in p.mn:
                    err(i, j, "SDWA/opsel->VALU needs 1")
            elif p.kind == "mfma":
                D = p.wr; need = 12 if p.passes == 8 else 8
                if c.kind in ("valu", "vmem", "ds") and (D & (c.rd | c.wr)) and dist < need:
                    err(i, j, f"MFMA D->{c.kind} needs {need}, has {dist}")
                if c.kind == "mfma":
                    if D & (set(c.A) | set(c.B)) and dist < need: err(i, j, f"MFMA D->MFMA A/B needs {need}, has {dist}")
                    if D & set(c.C):
                        if set(c.C) != D or c.passes != p.passes:
                            nd = 10 if p.passes == 8 else 6
                            if dist < nd: err(i, j, f"MFMA D->overlapping C needs {nd}")
                    elif D & c.wr and dist < need and not (set(c.C) & D):
                        err(i, j, f"MFMA D->MFMA D WAW needs {need} (conservative), has {dist}")
                nd = 7 if p.passes == 8 else 3
                if c.kind == "valu" and set(p.C) & c.wr and dist < nd and not (set(p.C) & D):
                    err(i, j, f"MFMA C read->VALU write needs {nd}")
            elif p.kind == "salu":
                if ("s", "m0") in p.wr and c.kind == "vmem" and ("s", "m0") in c.rd and dist < 1:
                    err(i, j, "M0 write->LDS DMA needs 1")
            elif p.kind == "vmem":
                if "store" in p.mn and ("x4" in p.mn or "x3" in p.mn):
                    data = set(regs_of(p.ops[0])) if p.mn.startswith("buffer") else set(regs_of(p.ops[1]))
                    if c.kind == "valu" and data & c.wr and dist < 2: err(i, j, "wide store data overwritten needs 2")
                    if c.kind in ("vmem", "ds", "mfma") and data & c.wr and dist < 1: err(i, j, "wide store data overwritten needs 1")
            dist += c.states()
            if dist >= 20: break
    vq, lq = [], []
    smem_pending = set()
    for k, c in enumerate(tr):
        if c.mn == "s_waitcnt":
            t = c.text.split(";")[0]
            m = re.search(r"vmcnt\((\d+)\)", t)
            if m:
                N = int(m.group(1))
                while len(vq) > N: vq.pop(0)
            m = re.search(r"lgkmcnt\((\d+)\)", t)
            if m:
                N = int(m.group(1))
                if N == 0: lq.clear(); smem_pending.clear()
                else:
                    if smem_pending: errs.append(f"[{name}] counted lgkmcnt with SMEM outstanding: {c.text}")
                    while len(lq) > N: lq.pop(0)
            continue
        touched = c.rd | c.wr
        for q, nm in ((vq, "vmcnt"), (lq, "lgkmcnt")):
            for (idx, dst) in q:
                if dst & touched:
                    if tr[idx].kind == c.kind and not (dst & c.rd) and c.kind in ("vmem", "ds"):
                        continue
                    errs.append(f"[{name}] register used while {nm} pending\n      load: {tr[idx].text}\n      use:  {c.text}")
        if smem_pending & touched:
            errs.append(f"[{name}] sgpr used while SMEM pending: {c.text}")
        if c.kind == "vmem":
            vq.append((k, set(c.wr)))
            if len(vq) > 63: errs.append(f"[{name}] vmcnt overflow (>63 outstanding) at {c.text}")
        elif c.kind == "ds":
            lq.append((k, set(c.wr)))
        elif c.kind == "smem":
            smem_pending |= c.wr
    seen, out = set(), []
    for e in errs:
        if e not in seen:
            seen.add(e); out.append(e)
    return out
```

```python
from common import *
import common

SLOT = 24576
DSHIFT = 96.0

def lds_arrive(A, vAddr, vOne):
    A("s_mov_b64 exec, 1")
    A(f"ds_add_u32 {v(vAddr)}, {v(vOne)}")
    A("s_mov_b64 exec, -1")

def lds_wait(A, tag, vAddr, vTmp, sTmp, sTarget, sSpin=78):
    A(f"s_mov_b32 {s(sSpin)}, 0x40000")
    A.label(f"L_wait_{tag}")
    A(f"ds_read_b32 {v(vTmp)}, {v(vAddr)}")
    A("s_waitcnt lgkmcnt(0)")
    A(f"v_readfirstlane_b32 {s(sTmp)}, {v(vTmp)}")
    A(f"s_sub_u32 {s(sSpin)}, {s(sSpin)}, 1")
    A(f"s_cbranch_scc1 L_go_{tag}")
    A(f"s_cmp_ge_u32 {s(sTmp)}, {s(sTarget)}")
    A(f"s_cbranch_scc1 L_go_{tag}")
    A("s_sleep 1")
    A(f"s_branch L_wait_{tag}")
    A.label(f"L_go_{tag}")

def role(A, sWS, sWv, sHead, sQb, lds_kv, lds_cnt, vL, sb=40, on_stored=None, variant=''):
    sT0, sT1, sT2, sKoff, sVoff, sM, sChunk, sTarget, sSlot, sSlotN, sTile = [sb + i for i in range(11)]
    vT, vHf, vKa, vKb, vV, vKa0, vKb0, vV0, vCnt, vOne, vTmp, vDma = 3, 4, 5, 6, 7, 8, 9, 10, 11, 12, 13, 14
    Q1, Q2 = 16, 20
    KA, KB = 24, 28
    VA, VB = 32, 36
    P = 40
    SB = [48, 64]
    O = 80
    T = 96
    A(f"v_and_b32 {v(vT)}, 31, {v(vL)}")
    A(f"v_lshrrev_b32 {v(vHf)}, 5, {v(vL)}")
    A(f"v_lshlrev_b32 {v(vDma)}, 4, {v(vL)}")
    A.c("global offsets of this head's K and V; this wave copies 3 KiB of every 24 KiB chunk")
    A(f"s_add_u32 {s(sT0)}, {s(sHead)}, 32")
    A(f"s_mul_i32 {s(sKoff)}, {s(sT0)}, {QKV_HEAD}")
    A(f"s_add_u32 {s(sVoff)}, {s(sKoff)}, {32*QKV_HEAD}")
    A.c("pieces 3w..3w+2 of 24: pieces 0..11 are K, 12..23 are V, so waves 0..3 copy K and 4..7 copy V")
    A(f"s_cmp_lt_u32 {s(sWv)}, 4")
    A(f"s_cselect_b32 {s(sKoff)}, {s(sKoff)}, {s(sVoff)}")
    A(f"s_and_b32 {s(sT0)}, {s(sWv)}, 3")
    A(f"s_mul_i32 {s(sT0)}, {s(sT0)}, 3072")
    A(f"s_add_u32 {s(sKoff)}, {s(sKoff)}, {s(sT0)}")
    A(f"s_mul_i32 {s(sM)}, {s(sWv)}, 3072")
    A(f"s_add_u32 {s(sM)}, {s(sM)}, {lds_kv}")

    def dma(chunk_reg_off, slot_off, in_reg=False):
        for i in range(3):
            if not in_reg:
                A(f"s_add_u32 m0, {s(sM)}, {slot_off + i*1024}")
            else:
                A(f"s_add_u32 m0, {s(sM)}, {s(slot_off)}")
                if i: A(f"s_add_u32 m0, m0, {i*1024}")
            A(f"s_add_u32 {s(sT0)}, {s(chunk_reg_off)}, {i*1024}")
            A(f"buffer_load_dwordx4 {v(vDma)}, {s(sWS,4)}, {s(sT0)} offen lds")
    dma(sKoff, 0)
    A(f"s_add_u32 {s(sKoff)}, {s(sKoff)}, 12288")
    dma(sKoff, SLOT)
    A(f"s_add_u32 {s(sKoff)}, {s(sKoff)}, 12288")
    A.c("query fragments")
    A(f"s_lshl_b32 {s(sTile)}, {s(sQb)}, 3")
    A(f"s_add_u32 {s(sTile)}, {s(sTile)}, {s(sWv)}")
    A(f"s_mul_i32 {s(sT1)}, {s(sTile)}, {32*48}")
    A(f"s_mul_i32 {s(sT2)}, {s(sHead)}, {QKV_HEAD}")
    A(f"s_add_u32 {s(sT1)}, {s(sT1)}, {s(sT2)}")
    A(f"v_mul_u32_u24 {v(vKb0)}, 48, {v(vT)}")
    A(f"v_lshl_add_u32 {v(vKa0)}, {v(vHf)}, 4, {v(vKb0)}")
    A(f"buffer_load_dwordx4 {v(Q1,4)}, {v(vKa0)}, {s(sWS,4)}, {s(sT1)} offen")
    A(f"buffer_load_dwordx4 {v(Q2,4)}, {v(vKb0)}, {s(sWS,4)}, {s(sT1)} offen offset:32")
    A.c("LDS addresses")
    A(f"v_add_u32 {v(vKa0)}, {lds_kv}, {v(vKa0)}")
    A(f"v_add_u32 {v(vKb0)}, {lds_kv + 32}, {v(vKb0)}")
    A(f"v_bfe_u32 {v(T)}, {v(vL)}, 2, 2")
    A(f"v_lshl_add_u32 {v(T)}, {v(vHf)}, 2, {v(T)}")
    A(f"v_mul_u32_u24 {v(vV0)}, 48, {v(T)}")
    A(f"v_and_b32 {v(T)}, 3, {v(vL)}")
    A(f"v_lshlrev_b32 {v(T+1)}, 3, {v(T)}")
    A(f"v_min_u32 {v(T)}, 1, {v(T)}")
    A(f"v_lshlrev_b32 {v(T)}, 3, {v(T)}")
    A(f"v_add_u32 {v(T)}, 32, {v(T)}")
    A(f"v_bfe_u32 {v(T+2)}, {v(vL)}, 4, 1")
    A(f"v_cmp_eq_u32 vcc, 0, {v(T+2)}")
    A(f"v_mov_b32 {v(vOne)}, 1")
    A(f"v_mov_b32 {v(vCnt)}, {lds_cnt}")
    A(f"v_cndmask_b32 {v(T)}, {v(T)}, {v(T+1)}, vcc")
    A(f"v_add_u32 {v(vV0)}, {v(vV0)}, {v(T)}")
    A(f"v_add_u32 {v(vV0)}, {lds_kv + 12288}, {v(vV0)}")
    A(f"v_mov_b32 {v(vKa)}, {v(vKa0)}")
    A(f"v_mov_b32 {v(vKb)}, {v(vKb0)}")
    A(f"v_mov_b32 {v(vV)}, {v(vV0)}")
    for r in range(16): A(f"v_mov_b32 {v(O+r)}, 0")
    A.c("second query operand: lanes of the upper half hold zeros, slot 20 starts at zero")
    A(f"v_cmp_eq_u32 vcc, 0, {v(vHf)}")
    A("s_waitcnt vmcnt(0)")
    A("s_nop 0")
    A(f"v_cndmask_b32 {v(Q2)}, 0, {v(Q2)}, vcc")
    A(f"v_cndmask_b32 {v(Q2+1)}, 0, {v(Q2+1)}, vcc")
    A(f"v_mov_b32 {v(Q2+2)}, 0")
    A(f"v_mov_b32 {v(Q2+3)}, 0")
    A.c("chunks 0 and 1 of this wave have landed")
    lds_arrive(A, vCnt, vOne)
    A(f"s_mov_b32 {s(sTarget)}, 8")
    lds_wait(A, "attn0", vCnt, vTmp, sT0, sTarget)
    stamp(A, 1)

    kreads = lambda t, rk, rb: [f"ds_read_b128 {v(KA,4)}, {v(rk)} offset:{t*1536}", f"ds_read_b128 {v(KB,4)}, {v(rb)} offset:{t*1536}"]
    def vreads(t, m):
        dst = VA if m == 0 else VB
        return [f"ds_read_b64_tr_b16 {v(dst+2*i,2)}, {v(vV)} offset:{t*1536 + (16*m+8*i)*48}" for i in range(2)]
    s1 = lambda b: f"v_mfma_f32_32x32x16_bf16 {v(SB[b],16)}, {v(KA,4)}, {v(Q1,4)}, 0"
    s2 = lambda b: f"v_mfma_f32_32x32x16_bf16 {v(SB[b],16)}, {v(KB,4)}, {v(Q2,4)}, {v(SB[b],16)}"

    A.c("reference value: maximum over the first key tile plus a fixed offset, rounded to bf16")
    for ln in kreads(0, vKa, vKb): A(ln)
    A("s_waitcnt lgkmcnt(0)")
    A(s1(0)); A(s2(0))
    A("s_nop 7"); A("s_nop 3")
    b = SB[0]
    A(f"v_max3_f32 {v(T)}, {v(b)}, {v(b+1)}, {v(b+2)}")
    A(f"v_max3_f32 {v(T+1)}, {v(b+3)}, {v(b+4)}, {v(b+5)}")
    A(f"v_max3_f32 {v(T+2)}, {v(b+6)}, {v(b+7)}, {v(b+8)}")
    A(f"v_max3_f32 {v(T+3)}, {v(b+9)}, {v(b+10)}, {v(b+11)}")
    A(f"v_max3_f32 {v(T)}, {v(T)}, {v(b+12)}, {v(b+13)}")
    A(f"v_max3_f32 {v(T+1)}, {v(T+1)}, {v(b+14)}, {v(b+15)}")
    A(f"v_max3_f32 {v(T)}, {v(T)}, {v(T+1)}, {v(T+2)}")
    A(f"v_max_f32 {v(T)}, {v(T)}, {v(T+3)}")
    A(f"v_mov_b32 {v(T+1)}, {v(T)}")
    A("s_nop 1")
    A(f"v_permlane32_swap_b32 {v(T)}, {v(T+1)}")
    A("s_nop 0")
    A(f"v_max_f32 {v(T)}, {v(T)}, {v(T+1)}")
    A(f"v_add_f32 {v(T)}, {f32bits(DSHIFT):#x}, {v(T)}")
    A(f"v_sub_f32 {v(T)}, 0, {v(T)}")
    A(f"v_cvt_pk_bf16_f32 {v(T)}, {v(T)}, 0")
    A(f"v_cmp_eq_u32 vcc, 0, {v(vHf)}")
    A("s_nop 1")
    A(f"v_cndmask_b32 {v(Q2+2)}, 0, {v(T)}, vcc")
    A("s_nop 1")
    if common.DEBUG:
        dump_regs(A, [Q1, Q1+1, Q1+2, Q1+3, Q2, Q2+1, Q2+2, Q2+3, KA, KA+1, KA+2, KA+3, KB, KB+1, KB+2, KB+3] + [SB[0]+i for i in range(16)], 0, sWS, sWv, 104, "a")
    A.c("pipeline prologue: S(0), K(1), V(0)")
    A(s1(0)); A(s2(0))
    for ln in kreads(1, vKa, vKb): A(ln)
    for ln in vreads(0, 0) + vreads(0, 1): A(ln)
    A(f"s_mov_b32 {s(sChunk)}, 0")
    A(f"s_mov_b32 {s(sSlot)}, 0")
    A(f"s_mov_b32 {s(sTarget)}, 8")
    A("s_nop 7")
    A(".p2align 3")
    A.label("L_attn_chunk")
    A.c("arrive: own copy of the next chunk has landed and the previous chunk is no longer read")
    A("s_waitcnt vmcnt(0)")
    lds_arrive(A, vCnt, vOne)
    A(f"s_add_u32 {s(sTarget)}, {s(sTarget)}, 8")
    A(f"s_add_u32 {s(sSlotN)}, {s(sSlot)}, {SLOT}")
    A(f"s_cmp_eq_u32 {s(sSlotN)}, {3*SLOT}")
    A(f"s_cselect_b32 {s(sSlotN)}, 0, {s(sSlotN)}")
    A0 = A
    class Filt:
        def __call__(self, ln):
            if "nolds" in variant and ((ln.startswith("ds_read") and "b32" not in ln) or "lgkmcnt(4)" in ln): return
            if "nomfma" in variant and ln.startswith("v_mfma"): return
            if "noexp" in variant and ln.startswith("v_exp"): return
            if "nocvt" in variant and ln.startswith("v_cvt"): return
            A0(ln)
        def c(self, t): A0.c(t)
        def label(self, t): A0.label(t)
    A = Filt()
    for t in range(8):
        cur, nxt = t & 1, (t + 1) & 1
        sb_ = SB[cur]
        ex = lambda i: f"v_exp_f32 {v(sb_+i)}, {v(sb_+i)}"
        cv = lambda e: f"v_cvt_pk_bf16_f32 {v(P+e)}, {v(sb_+2*e)}, {v(sb_+2*e+1)}"
        A("s_waitcnt lgkmcnt(4)")
        A(s1(nxt))
        for i in range(4): A(ex(i))
        A(s2(nxt))
        if t == 6:
            A(f"v_add_u32 {v(vKa)}, {s(sSlotN)}, {v(vKa0)}")
            A(f"v_add_u32 {v(vKb)}, {s(sSlotN)}, {v(vKb0)}")
        for ln in kreads((t + 2) & 7, vKa, vKb): A(ln)
        A(ex(4)); A(ex(5)); A(cv(0)); A(ex(6)); A(cv(1)); A(ex(7)); A(cv(2)); A(ex(8)); A(cv(3)); A(ex(9))
        A("s_waitcnt lgkmcnt(4)")
        A(f"v_mfma_f32_32x32x16_bf16 {v(O,16)}, {v(VA,4)}, {v(P,4)}, {v(O,16)}")
        if t == 7:
            A(f"v_add_u32 {v(vV)}, {s(sSlotN)}, {v(vV0)}")
        for ln in vreads((t + 1) & 7, 0): A(ln)
        A(ex(10)); A(ex(11)); A(cv(4)); A(ex(12)); A(ex(13)); A(cv(5)); A(ex(14)); A(ex(15)); A(cv(6))
        A(cv(7))
        A("s_waitcnt lgkmcnt(4)")
        if t == 4:
            A.c("all waves left the previous chunk: refill its slot with chunk c+2")
            A(f"s_cmp_ge_u32 {s(sChunk)}, 6")
            A("s_cbranch_scc1 L_attn_nodma")
            lds_wait(A, "attn", vCnt, vTmp, sT0, sTarget)
            A(f"s_add_u32 {s(sT1)}, {s(sSlotN)}, {SLOT}")
            A(f"s_cmp_eq_u32 {s(sT1)}, {3*SLOT}")
            A(f"s_cselect_b32 {s(sT1)}, 0, {s(sT1)}")
            dma(sKoff, sT1, True)
            A(f"s_add_u32 {s(sKoff)}, {s(sKoff)}, 12288")
            A("s_branch L_attn_dmadone")
            A.label("L_attn_nodma")
            A(f"s_cmp_eq_u32 {s(sChunk)}, 7")
            A("s_cbranch_scc1 L_attn_dmadone")
            lds_wait(A, "attn2", vCnt, vTmp, sT0, sTarget)
            A.label("L_attn_dmadone")
        else:
            A("s_nop 0")
        A(f"v_mfma_f32_32x32x16_bf16 {v(O,16)}, {v(VB,4)}, {v(P+4,4)}, {v(O,16)}")
        for ln in vreads((t + 1) & 7, 1): A(ln)
    A = A0
    A(f"s_mov_b32 {s(sSlot)}, {s(sSlotN)}")
    A(f"s_add_u32 {s(sChunk)}, {s(sChunk)}, 1")
    A(f"s_cmp_lt_u32 {s(sChunk)}, 8")
    A("s_cbranch_scc1 L_attn_chunk")
    stamp(A, 2)

    A.c("normalise by the row sum (row 20 of the accumulator, held by the upper half in register 8)")
    A("s_waitcnt lgkmcnt(0)")
    A("s_nop 7"); A("s_nop 3")
    if common.DEBUG:
        dump_regs(A, [O+i for i in range(16)] + [VA+i for i in range(8)] + [P+i for i in range(8)], 32, sWS, sWv, 104, "b")
    A(f"v_mov_b32 {v(T)}, {v(O+8)}")
    A(f"v_mov_b32 {v(T+1)}, {v(O+8)}")
    A("s_nop 1")
    A(f"v_permlane32_swap_b32 {v(T)}, {v(T+1)}")
    A("s_nop 0")
    A(f"v_rcp_f32 {v(T)}, {v(T+1)}")
    A("s_nop 0")
    for r in range(12): A(f"v_mul_f32 {v(O+r)}, {v(O+r)}, {v(T)}")
    for e in range(6): A(f"v_cvt_pk_bf16_f32 {v(P+e)}, {v(O+2*e)}, {v(O+2*e+1)}")
    A(f"s_mul_i32 {s(sT1)}, {s(sTile)}, 40")
    A(f"s_add_u32 {s(sT0)}, {s(sT1)}, {s(sHead)}")
    A(f"s_lshl_b32 {s(sT0)}, {s(sT0)}, 10")
    A(f"s_add_u32 {s(sT0)}, {s(sT0)}, {WS_O}")
    A(f"buffer_store_dwordx4 {v(P,4)}, {v(vDma)}, {s(sWS,4)}, {s(sT0)} offen")
    A.c("leftover four dims: step 32 + head/4, unit head&3")
    A(f"s_lshr_b32 {s(sT0)}, {s(sHead)}, 2")
    A(f"s_add_u32 {s(sT0)}, {s(sT0)}, {s(sT1)}")
    A(f"s_add_u32 {s(sT0)}, {s(sT0)}, 32")
    A(f"s_lshl_b32 {s(sT0)}, {s(sT0)}, 10")
    A(f"s_bfe_u32 {s(sT1)}, {s(sHead)}, 0x10001")
    A(f"s_lshl_b32 {s(sT1)}, {s(sT1)}, 9")
    A(f"s_add_u32 {s(sT0)}, {s(sT0)}, {s(sT1)}")
    A(f"s_and_b32 {s(sT1)}, {s(sHead)}, 1")
    A(f"s_lshl_b32 {s(sT1)}, {s(sT1)}, 3")
    A(f"s_add_u32 {s(sT0)}, {s(sT0)}, {s(sT1)}")
    A(f"s_add_u32 {s(sT0)}, {s(sT0)}, {WS_O}")
    A(f"v_lshlrev_b32 {v(T)}, 4, {v(vT)}")
    A("s_mov_b32 exec_hi, 0")
    A(f"buffer_store_dwordx2 {v(P+4,2)}, {v(T)}, {s(sWS,4)}, {s(sT0)} offen")
    A("s_mov_b64 exec, -1")
    if on_stored: on_stored(A)

NAME = "attn_kernel"
def gen(A, variant=''):
    sWS, sWave, sHead, sQb, sT0 = 16, 20, 21, 22, 23
    LDS_CNT = 3 * SLOT
    kernel_header(A, NAME)
    A("s_cmp_ge_u32 s2, 256")
    A("s_cbranch_scc1 L_attn_end")
    A(f"s_load_dwordx2 s[28:29], s[0:1], {K_WS}")
    A("v_lshrrev_b32 v1, 6, v0")
    A("v_and_b32 v2, 63, v0")
    A(f"v_readfirstlane_b32 {s(sWave)}, v1")
    A(f"s_and_b32 {s(sT0)}, s2, 7")
    A(f"s_lshr_b32 {s(sQb)}, s2, 3")
    A(f"s_lshr_b32 {s(sHead)}, {s(sQb)}, 3")
    A(f"s_lshl_b32 {s(sT0)}, {s(sT0)}, 2")
    A(f"s_add_u32 {s(sHead)}, {s(sHead)}, {s(sT0)}")
    A(f"s_and_b32 {s(sQb)}, {s(sQb)}, 7")
    A(f"v_mov_b32 v3, {LDS_CNT}")
    A(f"v_mov_b32 v4, 0")
    A("ds_write_b32 v3, v4")
    A("s_waitcnt lgkmcnt(0)")
    srd(A, sWS, 28, WS_SIZE)
    stamp(A, 0)
    if common.STAMPS:
        A(f"s_lshl_b32 s27, s2, 3")
        A(f"s_add_u32 s27, s27, {s(sWave)}")
    A("s_barrier")
    if 'prio' in variant:
        A(f's_cmp_lt_u32 {s(sWave)}, 4')
        A('s_cbranch_scc1 L_attn_noprio')
        A('s_setprio 1')
        A.label('L_attn_noprio')
    role(A, sWS, sWave, sHead, sQb, 0, LDS_CNT, 2, variant=variant)
    stamp(A, 3)
    stamp_flush(A, 4, 27, sWS, 96)
    A.label("L_attn_end")
    A("s_endpgm")
    return NAME, 512, 90112, descriptor(NAME, 112)
```

```python
from asm import *

S, D, H, DH, F = 2048, 640, 32, 20, 1536
WS_QKV = 0
QKV_HEAD = S * 48
WS_XN = 0x00A00000
WS_H = 0x00D00000
WS_O = 0x01400000
WS_FLAG = 0x01700000
WS_SIZE = 0x01800000
LOG2E = 1.4426950408889634
QSCALE = (DH ** -0.5) * LOG2E

K_X, K_WQKV, K_WO, K_BX, K_WG, K_WU, K_WD, K_OUT, K_DBG, K_WS = [8 * i for i in range(10)]

def f32bits(x):
    import struct
    return struct.unpack("<I", struct.pack("<f", x))[0]

def srd(A, d, base, nbytes):
    A(f"s_mov_b32 {s(d)}, {s(base)}")
    A(f"s_and_b32 {s(d+1)}, {s(base+1)}, 0xffff")
    A(f"s_mov_b32 {s(d+2)}, {nbytes}")
    A(f"s_mov_b32 {s(d+3)}, 0x00020000")

def code_prefetch(A, tag, start_label, nkb, sp, vt, vd, lane_reg):
    A(f"s_getpc_b64 {s(sp,2)}")
    A.label(f"L_pc_{tag}")
    A(f"s_add_u32 {s(sp)}, {s(sp)}, {start_label}-L_pc_{tag}")
    A(f"s_addc_u32 {s(sp+1)}, {s(sp+1)}, 0")
    A(f"v_lshlrev_b32 {v(vt)}, 4, {v(lane_reg)}")
    for i in range(nkb):
        A(f"global_load_dwordx4 {v(vd,4)}, {v(vt)}, {s(sp,2)}")
        if i + 1 < nkb:
            A(f"v_add_u32 {v(vt)}, 1024, {v(vt)}")

def kernel_header(A, name):
    A(f".globl {name}")
    A(".p2align 8")
    A(f".type {name},@function")
    A.label(name)

def descriptor(name, nvgpr, nsgpr=96, accum=None):
    accum = accum or ((nvgpr + 3) // 4 * 4)
    return f""".amdhsa_kernel {name}
  .amdhsa_next_free_vgpr {nvgpr}
  .amdhsa_next_free_sgpr {nsgpr}
  .amdhsa_accum_offset {accum}
  .amdhsa_group_segment_fixed_size 0
  .amdhsa_kernarg_size 80
  .amdhsa_user_sgpr_count 2
  .amdhsa_user_sgpr_kernarg_segment_ptr 1
  .amdhsa_system_sgpr_workgroup_id_x 1
.end_amdhsa_kernel
"""

STAMPS = False
DEBUG = False
WS_STAMP = 0x01780000
def stamp(A, idx):
    import common
    if common.STAMPS:
        A(f"s_memtime {s(80+2*idx,2)}")
def stamp_flush(A, n, slot_sreg, sws, vtmp):
    import common
    if not common.STAMPS: return
    A("s_waitcnt lgkmcnt(0)")
    A(f"s_lshl_b32 s79, {s(slot_sreg)}, 6")
    A(f"s_add_u32 s79, s79, {WS_STAMP}")
    A(f"v_mov_b32 {v(vtmp+1)}, 0")
    for i in range(n):
        if i == 0:
            A(f"v_mov_b32 {v(vtmp)}, s80")
        else:
            A(f"s_sub_u32 s78, {s(80+2*i)}, s80")
            A(f"v_mov_b32 {v(vtmp)}, s78")
        A(f"buffer_store_dword {v(vtmp)}, {v(vtmp+1)}, {s(sws,4)}, s79 offen offset:{4*i}")
        A("s_nop 0")

WS_DBG = 0x01790000
def dump_regs(A, regs, slot0, sWS, sWave, vtmp, tag):
    A(f"s_or_b32 s77, s2, {s(sWave)}")
    A(f"s_cmp_lg_u32 s77, 0")
    A(f"s_cbranch_scc1 L_dump_{tag}")
    A(f"v_and_b32 {v(vtmp)}, 63, v0")
    A(f"v_lshlrev_b32 {v(vtmp)}, 2, {v(vtmp)}")
    for i, r in enumerate(regs):
        A(f"s_mov_b32 s77, {WS_DBG + (slot0 + i) * 256}")
        A(f"buffer_store_dword {v(r)}, {v(vtmp)}, {s(sWS,4)}, s77 offen")
    A("s_waitcnt vmcnt(0)")
    A.label(f"L_dump_{tag}")
```

```python
from common import *
from attn import lds_arrive, lds_wait
import common

W1_SLOT = 24576

def ffn1_role(A, sWS, sWG, sWU, sW, sRb, sCt, lds_w, lds_cnt, vL, sb=40, on_stored=None, tag="f1"):
    sT0, sT1, sT2, sSrc, sM, sChunk, sTarget, sSlot, sSlotN, sXn, sDm = [sb + i for i in range(11)]
    sSel = (sb + 11 + 3) // 4 * 4
    vA, vA0, vCnt, vOne, vTmp, vLin = 3, 4, 5, 6, 7, 8
    vD = [9, 10, 11]
    XF = lambda i: 12 + 4 * i
    WF = lambda m, b: 28 + 12 * m + 4 * b
    ACC = lambda m, b: 52 + 48 * m + 16 * b
    T = 148
    A(f"v_lshlrev_b32 {v(vLin)}, 4, {v(vL)}")
    A.c("copy offsets: granule g = 64e + l -> row g/12, column granule g%12")
    for e in range(3):
        A(f"v_add_u32 {v(T)}, {64*e}, {v(vL)}")
        A(f"v_mul_u32_u24 {v(T+1)}, 43691, {v(T)}")
        A(f"v_lshrrev_b32 {v(T+1)}, 19, {v(T+1)}")
        A(f"v_mul_u32_u24 {v(T+2)}, 12, {v(T+1)}")
        A(f"v_sub_u32 {v(T+2)}, {v(T)}, {v(T+2)}")
        A(f"v_mul_u32_u24 {v(T+1)}, 3072, {v(T+1)}")
        A(f"v_lshl_add_u32 {v(vD[e])}, {v(T+2)}, 4, {v(T+1)}")
    A.c("waves 0,1 copy gate rows 0..31 / 32..63 of a chunk, waves 2,3 the up rows")
    A(f"s_cmp_lt_u32 {s(sW)}, 2")
    for k in range(4):
        A(f"s_cselect_b32 {s(sSel+k)}, {s(sWG+k)}, {s(sWU+k)}")
    A(f"s_and_b32 {s(sT0)}, {s(sW)}, 1")
    A(f"s_mul_i32 {s(sSrc)}, {s(sT0)}, {32*3072}")
    A(f"s_mul_i32 {s(sT1)}, {s(sCt)}, 192")
    A(f"s_add_u32 {s(sSrc)}, {s(sSrc)}, {s(sT1)}")
    A(f"s_mul_i32 {s(sM)}, {s(sW)}, 6144")
    A(f"s_add_u32 {s(sM)}, {s(sM)}, {lds_w}")
    def dma(slot, in_reg=False):
        for q in range(2):
            for e in range(3):
                off = (3 * q + e) * 1024
                if in_reg:
                    A(f"s_add_u32 m0, {s(sM)}, {s(slot)}")
                    if off: A(f"s_add_u32 m0, m0, {off}")
                else:
                    A(f"s_add_u32 m0, {s(sM)}, {slot + off}")
                A(f"s_add_u32 {s(sT0)}, {s(sSrc)}, {q*16*3072}")
                A(f"buffer_load_dwordx4 {v(vD[e])}, {s(sSel,4)}, {s(sT0)} offen lds")
        A(f"s_add_u32 {s(sSrc)}, {s(sSrc)}, {64*3072}")
    def xload(i):
        A(f"buffer_load_dwordx4 {v(XF(i),4)}, {v(vLin)}, {s(sWS,4)}, {s(sXn)} offen")
        A(f"s_add_u32 {s(sXn)}, {s(sXn)}, 1024")
    A(f"s_lshl_b32 {s(sT0)}, {s(sRb)}, 2")
    A(f"s_add_u32 {s(sT0)}, {s(sT0)}, {s(sW)}")
    A(f"s_mul_i32 {s(sXn)}, {s(sT0)}, {40*1024}")
    A(f"s_add_u32 {s(sXn)}, {s(sXn)}, {WS_XN}")
    dma(0)
    dma(W1_SLOT)
    for i in range(4): xload(i)
    A.c("fragment read address: (8h+r)*192 + cg*32 + c*8")
    A(f"v_lshrrev_b32 {v(T)}, 5, {v(vL)}")
    A(f"v_bfe_u32 {v(T+1)}, {v(vL)}, 2, 2")
    A(f"v_lshl_add_u32 {v(T)}, {v(T)}, 3, {v(T+1)}")
    A(f"v_mul_u32_u24 {v(vA0)}, 192, {v(T)}")
    A(f"v_bfe_u32 {v(T)}, {v(vL)}, 4, 1")
    A(f"v_lshl_add_u32 {v(vA0)}, {v(T)}, 5, {v(vA0)}")
    A(f"v_and_b32 {v(T)}, 3, {v(vL)}")
    A(f"v_lshl_add_u32 {v(vA0)}, {v(T)}, 3, {v(vA0)}")
    A(f"v_add_u32 {v(vA0)}, {lds_w}, {v(vA0)}")
    A(f"v_mov_b32 {v(vA)}, {v(vA0)}")
    A(f"v_mov_b32 {v(vOne)}, 1")
    A(f"v_mov_b32 {v(vCnt)}, {lds_cnt}")
    for r in range(ACC(0, 0), ACC(1, 2) + 16): A(f"v_mov_b32 {v(r)}, 0")
    A("s_waitcnt vmcnt(10)")
    lds_arrive(A, vCnt, vOne)
    A(f"s_mov_b32 {s(sTarget)}, 4")
    lds_wait(A, tag + "0", vCnt, vTmp, sT0, sTarget)
    def wreads(sp, m, b):
        return [f"ds_read_b64_tr_b16 {v(WF(m,b)+2*i,2)}, {v(vA)} offset:{m*12288 + (16*sp+4*i)*192 + b*64}" for i in range(2)]
    order = [(m, b) for b in range(3) for m in range(2)]
    for (m, b) in order:
        for ln in wreads(0, m, b): A(ln)
    A(f"s_mov_b32 {s(sChunk)}, 0")
    A(f"s_mov_b32 {s(sSlot)}, 0")
    A(".p2align 3")
    A.label(f"L_{tag}_chunk")
    A.c("arrive: own copy of the next chunk landed, previous chunk no longer read")
    A("s_waitcnt vmcnt(3)")
    lds_arrive(A, vCnt, vOne)
    A(f"s_add_u32 {s(sTarget)}, {s(sTarget)}, 4")
    A(f"s_add_u32 {s(sSlotN)}, {s(sSlot)}, {W1_SLOT}")
    A(f"s_cmp_eq_u32 {s(sSlotN)}, {3*W1_SLOT}")
    A(f"s_cselect_b32 {s(sSlotN)}, 0, {s(sSlotN)}")
    for sp in range(4):
        if sp == 3:
            A(f"v_add_u32 {v(vA)}, {s(sSlotN)}, {v(vA0)}")
        if sp == 1: A("s_waitcnt vmcnt(3)")
        if sp >= 2: A("s_waitcnt vmcnt(9)")
        for j, (m, b) in enumerate(order):
            A("s_waitcnt lgkmcnt(10)")
            A(f"v_mfma_f32_32x32x16_bf16 {v(ACC(m,b),16)}, {v(WF(m,b),4)}, {v(XF(sp),4)}, {v(ACC(m,b),16)}")
            for ln in wreads((sp + 1) & 3, m, b): A(ln)
        if sp == 1:
            A.c("wait for everybody, then refill the slot of the previous chunk (past the end the rows read as zeros)")
            lds_wait(A, tag + "w", vCnt, vTmp, sT0, sTarget)
            A(f"s_add_u32 {s(sT1)}, {s(sSlotN)}, {W1_SLOT}")
            A(f"s_cmp_eq_u32 {s(sT1)}, {3*W1_SLOT}")
            A(f"s_cselect_b32 {s(sT1)}, 0, {s(sT1)}")
            dma(sT1, True)
        xload(sp)
    A(f"s_mov_b32 {s(sSlot)}, {s(sSlotN)}")
    A(f"s_add_u32 {s(sChunk)}, {s(sChunk)}, 1")
    A(f"s_cmp_lt_u32 {s(sChunk)}, 10")
    A(f"s_cbranch_scc1 L_{tag}_chunk")
    return dict(ACC=ACC, T=T, vLin=vLin, sT0=sT0, sT1=sT1)

def ffn1_epilogue(A, R, sWS, sW, sRb, sCt):
    ACC, T, vLin, sT0, sT1 = R["ACC"], R["T"], R["vLin"], R["sT0"], R["sT1"]
    A("s_waitcnt vmcnt(0) lgkmcnt(0)")
    A("s_nop 7"); A("s_nop 3")
    A(f"s_lshl_b32 {s(sT0)}, {s(sRb)}, 2")
    A(f"s_add_u32 {s(sT0)}, {s(sT0)}, {s(sW)}")
    A(f"s_mul_i32 {s(sT0)}, {s(sT0)}, 96")
    A(f"s_mul_i32 {s(sT1)}, {s(sCt)}, 6")
    A(f"s_add_u32 {s(sT0)}, {s(sT0)}, {s(sT1)}")
    A(f"s_lshl_b32 {s(sT0)}, {s(sT0)}, 10")
    A(f"s_add_u32 {s(sT0)}, {s(sT0)}, {WS_H}")
    vC = T + 4
    A(f"v_mov_b32 {v(vC)}, {f32bits(-LOG2E):#x}")
    for b in range(3):
        for s2 in range(2):
            g0 = ACC(0, b) + 8 * s2; u0 = ACC(1, b) + 8 * s2
            for q in range(2):
                for e in range(4): A(f"v_mul_f32 {v(T+e)}, {v(vC)}, {v(g0+4*q+e)}")
                for e in range(4): A(f"v_exp_f32 {v(T+e)}, {v(T+e)}")
                for e in range(4): A(f"v_mul_f32 {v(u0+4*q+e)}, {v(u0+4*q+e)}, {v(g0+4*q+e)}")
                for e in range(4): A(f"v_add_f32 {v(T+e)}, 1.0, {v(T+e)}")
                for e in range(4): A(f"v_rcp_f32 {v(T+e)}, {v(T+e)}")
                A("s_nop 0")
                for e in range(4): A(f"v_mul_f32 {v(u0+4*q+e)}, {v(u0+4*q+e)}, {v(T+e)}")
            for e in range(4): A(f"v_cvt_pk_bf16_f32 {v(g0+e)}, {v(u0+2*e)}, {v(u0+2*e+1)}")
            A(f"buffer_store_dwordx4 {v(g0,4)}, {v(vLin)}, {s(sWS,4)}, {s(sT0)} offen")
            A(f"s_add_u32 {s(sT0)}, {s(sT0)}, 1024")

NAME1 = "ffn1_kernel"
def gen_ffn1(A):
    sWS, sWG, sWU, sWave, sRb, sCt, sT0 = 8, 12, 16, 20, 21, 22, 23
    CNT = 3 * W1_SLOT
    kernel_header(A, NAME1)
    A("s_cmp_ge_u32 s2, 256")
    A("s_cbranch_scc1 L_f1_end")
    A(f"s_load_dwordx4 s[4:7], s[0:1], {K_WG}")
    A(f"s_load_dwordx2 s[28:29], s[0:1], {K_WS}")
    A("v_lshrrev_b32 v1, 6, v0")
    A("v_and_b32 v2, 63, v0")
    A(f"v_readfirstlane_b32 {s(sWave)}, v1")
    A(f"s_and_b32 {s(sT0)}, s2, 7")
    A(f"s_lshr_b32 {s(sCt)}, s2, 3")
    A(f"s_lshr_b32 {s(sRb)}, {s(sCt)}, 4")
    A(f"s_lshl_b32 {s(sT0)}, {s(sT0)}, 1")
    A(f"s_add_u32 {s(sRb)}, {s(sRb)}, {s(sT0)}")
    A(f"s_and_b32 {s(sCt)}, {s(sCt)}, 15")
    A(f"v_mov_b32 v3, {CNT}")
    A(f"v_mov_b32 v4, 0")
    A("ds_write_b32 v3, v4")
    A("s_waitcnt lgkmcnt(0)")
    srd(A, sWG, 4, D * F * 2)
    srd(A, sWU, 6, D * F * 2)
    srd(A, sWS, 28, WS_SIZE)
    A("s_barrier")
    R = ffn1_role(A, sWS, sWG, sWU, sWave, sRb, sCt, 0, CNT, 2)
    ffn1_epilogue(A, R, sWS, sWave, sRb, sCt)
    A.label("L_f1_end")
    A("s_endpgm")
    return NAME1, 256, 90112, descriptor(NAME1, 160)

OUT_SLOT = 5120
def out_setup(A, vL, vA, vD, vDr, T):
    A.c("copy offsets: granule g = 64e + l -> row g/20, column granule g%20")
    for e in range(5):
        A(f"v_add_u32 {v(T)}, {64*e}, {v(vL)}")
        A(f"v_mul_u32_u24 {v(T+1)}, 52429, {v(T)}")
        A(f"v_lshrrev_b32 {v(T+1)}, 20, {v(T+1)}")
        A(f"v_mul_u32_u24 {v(T+2)}, 20, {v(T+1)}")
        A(f"v_sub_u32 {v(T+2)}, {v(T)}, {v(T+2)}")
        A(f"v_mul_u32_u24 {v(T+3)}, 1280, {v(T+1)}")
        A(f"v_lshl_add_u32 {v(vD[e])}, {v(T+2)}, 4, {v(T+3)}")
        A.c("leftover steps: image row 8i+4h+r comes from weight row (2h+i)*20 + r")
        A(f"v_bfe_u32 {v(T+3)}, {v(T+1)}, 2, 1")
        A(f"v_lshlrev_b32 {v(T+3)}, 1, {v(T+3)}")
        A(f"v_bfe_u32 {v(T+4)}, {v(T+1)}, 3, 1")
        A(f"v_add_u32 {v(T+3)}, {v(T+3)}, {v(T+4)}")
        A(f"v_mul_u32_u24 {v(T+3)}, 20, {v(T+3)}")
        A(f"v_and_b32 {v(T+4)}, 3, {v(T+1)}")
        A(f"v_add_u32 {v(T+3)}, {v(T+3)}, {v(T+4)}")
        A(f"v_mul_u32_u24 {v(T+3)}, 1280, {v(T+3)}")
        A(f"v_lshl_add_u32 {v(vDr[e])}, {v(T+2)}, 4, {v(T+3)}")
    A.c("fragment read address: (4h+r)*320 + cg*32 + c*8")
    A(f"v_lshrrev_b32 {v(T)}, 5, {v(vL)}")
    A(f"v_bfe_u32 {v(T+1)}, {v(vL)}, 2, 2")
    A(f"v_lshl_add_u32 {v(T)}, {v(T)}, 2, {v(T+1)}")
    A(f"v_mul_u32_u24 {v(vA)}, 320, {v(T)}")
    A(f"v_bfe_u32 {v(T)}, {v(vL)}, 4, 1")
    A(f"v_lshl_add_u32 {v(vA)}, {v(T)}, 5, {v(vA)}")
    A(f"v_and_b32 {v(T)}, 3, {v(vL)}")
    A(f"v_lshl_add_u32 {v(vA)}, {v(T)}, 3, {v(vA)}")

def out_phase(A, tag, steps, sWS, sWdesc, vA, AF, WF, ACC, sM, sT0, vLin):
    n = len(steps)
    def issue(k):
        vd, sbase, off, sact, aoff = steps[k]
        slot = k & 3
        for e in range(5):
            A(f"s_add_u32 m0, {s(sM)}, {slot*OUT_SLOT + e*1024}")
            A(f"s_add_u32 {s(sT0)}, {s(sbase)}, {off}")
            A(f"buffer_load_dwordx4 {v(vd[e])}, {s(sWdesc,4)}, {s(sT0)} offen lds")
        A(f"s_add_u32 {s(sT0)}, {s(sact)}, {aoff}")
        A(f"buffer_load_dwordx4 {v(AF(slot),4)}, {v(vLin)}, {s(sWS,4)}, {s(sT0)} offen")
    def wreads(k, j):
        slot = k & 3
        return [f"ds_read_b64_tr_b16 {v(WF(j)+2*i,2)}, {v(vA)} offset:{slot*OUT_SLOT + i*2560 + j*64}" for i in range(2)]
    for k in range(min(3, n)): issue(k)
    A(f"s_waitcnt vmcnt({6*(min(3,n)-1)})")
    for j in range(5):
        for ln in wreads(0, j): A(ln)
    for k in range(n):
        later = min(k + 2, n - 1) - k
        if k + 1 < n:
            A(f"s_waitcnt vmcnt({6*(later-1)})")
        for j in range(5):
            A(f"s_waitcnt lgkmcnt({8 if k + 1 < n or j < 4 else 0})" if (k + 1 < n) else f"s_waitcnt lgkmcnt({2*(4-j)})")
            A(f"v_mfma_f32_32x32x16_bf16 {v(ACC(j),16)}, {v(WF(j),4)}, {v(AF(k&3),4)}, {v(ACC(j),16)}")
            if k + 1 < n:
                for ln in wreads(k + 1, j): A(ln)
        if k + 3 < n:
            issue(k + 3)

NAME2 = "out_kernel"
def gen_out(A):
    sWS, sWD, sWO, sXd, sOut = 8, 12, 16, 32, 36
    sWave, sTb, sCq, sT0, sT1, sM, sB1, sB2, sA1, sB3 = 20, 21, 22, 23, 24, 25, 26, 27, 40, 41
    RED = 0; PITCH = 656
    kernel_header(A, NAME2)
    A("s_cmp_ge_u32 s2, 256")
    A("s_cbranch_scc1 L_out_end")
    A(f"s_load_dwordx2 s[4:5], s[0:1], {K_WD}")
    A(f"s_load_dwordx2 s[6:7], s[0:1], {K_WO}")
    A(f"s_load_dwordx2 s[28:29], s[0:1], {K_WS}")
    A(f"s_load_dwordx2 s[30:31], s[0:1], {K_X}")
    A(f"s_load_dwordx2 s[42:43], s[0:1], {K_OUT}")
    A("v_lshrrev_b32 v1, 6, v0")
    A("v_and_b32 v2, 63, v0")
    A(f"v_readfirstlane_b32 {s(sWave)}, v1")
    A(f"s_and_b32 {s(sT0)}, s2, 7")
    A(f"s_lshr_b32 {s(sCq)}, s2, 3")
    A(f"s_lshr_b32 {s(sTb)}, {s(sCq)}, 2")
    A(f"s_lshl_b32 {s(sT0)}, {s(sT0)}, 3")
    A(f"s_add_u32 {s(sTb)}, {s(sTb)}, {s(sT0)}")
    A(f"s_and_b32 {s(sCq)}, {s(sCq)}, 3")
    A("s_waitcnt lgkmcnt(0)")
    srd(A, sWD, 4, F * D * 2)
    srd(A, sWO, 6, D * D * 2)
    srd(A, sWS, 28, WS_SIZE)
    srd(A, sXd, 30, S * D * 2)
    srd(A, sOut, 42, S * D * 2)
    vL, vA, vLin = 2, 3, 4
    vD = [5, 6, 7, 8, 9]; vDr = [10, 11, 12, 13, 14]
    AF = lambda i: 16 + 4 * i
    WF = lambda j: 32 + 4 * j
    ACC = lambda j: 52 + 16 * j
    T = 132
    XR = 148
    A(f"v_lshlrev_b32 {v(vLin)}, 4, {v(vL)}")
    out_setup(A, vL, vA, vD, vDr, T)
    A(f"s_mul_i32 {s(sM)}, {s(sWave)}, {4*OUT_SLOT}")
    A(f"v_add_u32 {v(vA)}, {s(sM)}, {v(vA)}")
    for r in range(ACC(0), ACC(4) + 16): A(f"v_mov_b32 {v(r)}, 0")
    A.c("residual rows: thread handles granules tid, tid+256, tid+512 of the 32x20 granule tile")
    vXo = [T + 8, T + 9, T + 10]
    for i in range(3):
        A(f"v_add_u32 {v(T)}, {256*i}, v0")
        A(f"v_mul_u32_u24 {v(T+1)}, 52429, {v(T)}")
        A(f"v_lshrrev_b32 {v(T+1)}, 20, {v(T+1)}")
        A(f"v_mul_u32_u24 {v(T+2)}, 20, {v(T+1)}")
        A(f"v_sub_u32 {v(T+2)}, {v(T)}, {v(T+2)}")
        A(f"v_mul_u32_u24 {v(T+3)}, 1280, {v(T+1)}")
        A(f"v_lshl_add_u32 {v(vXo[i])}, {v(T+2)}, 4, {v(T+3)}")
        A(f"v_mul_u32_u24 {v(T+3)}, {PITCH}, {v(T+1)}")
        A(f"v_lshl_add_u32 {v(T+12+i)}, {v(T+2)}, 5, {v(T+3)}")
    vRo = [T + 12, T + 13, T + 14]
    sXo = sB3
    A(f"s_mul_i32 {s(sXo)}, {s(sTb)}, {32*1280}")
    A(f"s_mul_i32 {s(sT1)}, {s(sCq)}, 320")
    A(f"s_add_u32 {s(sXo)}, {s(sXo)}, {s(sT1)}")
    A(f"s_mul_i32 {s(sB1)}, {s(sWave)}, {24*16*1280}")
    A(f"s_add_u32 {s(sB1)}, {s(sB1)}, {s(sT1)}")
    A(f"s_mul_i32 {s(sA1)}, {s(sTb)}, 96")
    A(f"s_mul_i32 {s(sT0)}, {s(sWave)}, 24")
    A(f"s_add_u32 {s(sA1)}, {s(sA1)}, {s(sT0)}")
    A(f"s_lshl_b32 {s(sA1)}, {s(sA1)}, 10")
    A(f"s_add_u32 {s(sA1)}, {s(sA1)}, {WS_H}")
    steps = [(vD, sB1, k * 16 * 1280, sA1, k * 1024) for k in range(24)]
    out_phase(A, "h", steps, sWS, sWD, vA, AF, WF, ACC, sM, sT0, vLin)
    A(f"s_mul_i32 {s(sB1)}, {s(sWave)}, {8*20*1280}")
    A(f"s_add_u32 {s(sB1)}, {s(sB1)}, {s(sT1)}")
    A(f"s_add_u32 {s(sB2)}, {s(sB1)}, {16*1280}")
    A(f"s_mul_i32 {s(sA1)}, {s(sTb)}, 40")
    A(f"s_lshl_b32 {s(sT0)}, {s(sWave)}, 3")
    A(f"s_add_u32 {s(sT0)}, {s(sT0)}, {s(sA1)}")
    A(f"s_lshl_b32 {s(sT0)}, {s(sT0)}, 10")
    sA2, sA3 = 44, 45
    A(f"s_add_u32 {s(sA2)}, {s(sT0)}, {WS_O}")
    A(f"s_lshl_b32 {s(sT0)}, {s(sWave)}, 1")
    A(f"s_add_u32 {s(sT0)}, {s(sT0)}, {s(sA1)}")
    A(f"s_add_u32 {s(sT0)}, {s(sT0)}, 32")
    A(f"s_lshl_b32 {s(sT0)}, {s(sT0)}, 10")
    A(f"s_add_u32 {s(sA3)}, {s(sT0)}, {WS_O}")
    steps = [(vD, sB1, k * 20 * 1280, sA2, k * 1024) for k in range(8)]
    steps += [(vDr, sB2, k * 80 * 1280, sA3, k * 1024) for k in range(2)]
    out_phase(A, "o", steps, sWS, sWO, vA, AF, WF, ACC, sM, sT0, vLin)
    A.c("residual rows")
    for i in range(3):
        if i == 2:
            A(f"v_cmp_gt_u32 vcc, 128, v0")
            A("s_nop 0")
            A("s_and_saveexec_b64 s[46:47], vcc")
            A("s_cbranch_execz L_out_nores")
        A(f"buffer_load_dwordx4 {v(XR+4*i,4)}, {v(vXo[i])}, {s(sXd,4)}, {s(sXo)} offen")
    A.label("L_out_nores")
    A("s_mov_b64 exec, -1")
    A.c("cross-wave reduction through LDS: [wave][token][164 floats]")
    A("s_barrier")
    A(f"v_and_b32 {v(T)}, 31, {v(vL)}")
    A(f"v_mul_u32_u24 {v(T)}, {PITCH}, {v(T)}")
    A(f"v_lshrrev_b32 {v(T+1)}, 5, {v(vL)}")
    A(f"v_lshl_add_u32 {v(T)}, {v(T+1)}, 4, {v(T)}")
    A(f"s_mul_i32 {s(sT0)}, {s(sWave)}, {32*PITCH}")
    A(f"v_add_u32 {v(T)}, {s(sT0)}, {v(T)}")
    A("s_nop 3")
    for j in range(5):
        for g in range(4):
            A(f"ds_write_b128 {v(T)}, {v(ACC(j)+4*g,4)} offset:{j*128 + g*32}")
    A("s_waitcnt lgkmcnt(0)")
    A("s_barrier")
    P0 = 16
    for i in range(3):
        if i == 2:
            A(f"v_cmp_gt_u32 vcc, 128, v0")
            A("s_nop 0")
            A("s_and_saveexec_b64 s[46:47], vcc")
            A("s_cbranch_execz L_out_end")
        for w in range(4):
            for hh in range(2):
                A(f"ds_read_b128 {v(P0+8*w+4*hh,4)}, {v(vRo[i])} offset:{w*32*PITCH + 16*hh}")
        A("s_waitcnt vmcnt(0) lgkmcnt(0)" if i == 0 else "s_waitcnt lgkmcnt(0)")
        for e in range(8):
            A(f"v_add_f32 {v(P0+e)}, {v(P0+e)}, {v(P0+8+e)}")
            A(f"v_add_f32 {v(P0+16+e)}, {v(P0+16+e)}, {v(P0+24+e)}")
        for e in range(4):
            A(f"v_lshlrev_b32 {v(P0+8+2*e)}, 16, {v(XR+4*i+e)}")
            A(f"v_and_b32 {v(P0+9+2*e)}, 0xffff0000, {v(XR+4*i+e)}")
        for e in range(8):
            A(f"v_add_f32 {v(P0+e)}, {v(P0+e)}, {v(P0+16+e)}")
        for e in range(8):
            A(f"v_add_f32 {v(P0+e)}, {v(P0+e)}, {v(P0+8+e)}")
        for e in range(4):
            A(f"v_cvt_pk_bf16_f32 {v(P0+32+e)}, {v(P0+2*e)}, {v(P0+2*e+1)}")
        A(f"buffer_store_dwordx4 {v(P0+32,4)}, {v(vXo[i])}, {s(sOut,4)}, {s(sXo)} offen")
        A("s_nop 1")
    A.label("L_out_end")
    A("s_endpgm")
    return NAME2, 256, 4 * 32 * PITCH, descriptor(NAME2, 160)
```

```python
from common import *
import common

NAME = "qkv_kernel"
LDS_X, LDS_W = 0, 65536
LDS_STATS, LDS_CS = 131072, 132096
LDS_BYTES = 132608
NV = 128

def gen(A, prefetch=None, variant=''):
    sX, sW, sWS = 8, 12, 16
    sWave, sRb, sCt, sT0, sT1, sT2, sT3 = 20, 21, 22, 23, 24, 25, 26
    kernel_header(A, NAME)
    A("s_cmp_ge_u32 s2, 256")
    A(f"s_cbranch_scc1 L_k1_end")
    A(f"s_load_dwordx4 s[4:7], s[0:1], {K_X}")
    A(f"s_load_dwordx2 s[28:29], s[0:1], {K_WS}")
    A("v_lshrrev_b32 v1, 6, v0")
    A("v_and_b32 v2, 63, v0")
    A(f"v_readfirstlane_b32 {s(sWave)}, v1")
    A.c("workgroup -> (row block, column tile): each XCD covers 8 row blocks x 4 column tiles")
    A(f"s_and_b32 {s(sT0)}, s2, 7")
    A(f"s_lshr_b32 {s(sT1)}, s2, 3")
    A(f"s_and_b32 {s(sRb)}, {s(sT0)}, 1")
    A(f"s_lshl_b32 {s(sRb)}, {s(sRb)}, 3")
    A(f"s_and_b32 {s(sT2)}, {s(sT1)}, 7")
    A(f"s_add_u32 {s(sRb)}, {s(sRb)}, {s(sT2)}")
    A(f"s_lshr_b32 {s(sCt)}, {s(sT0)}, 1")
    A(f"s_lshl_b32 {s(sCt)}, {s(sCt)}, 2")
    A(f"s_lshr_b32 {s(sT2)}, {s(sT1)}, 3")
    A(f"s_add_u32 {s(sCt)}, {s(sCt)}, {s(sT2)}")
    A("s_waitcnt lgkmcnt(0)")
    srd(A, sX, 4, S * D * 2)
    srd(A, sW, 6, D * 3 * D * 2)
    srd(A, sWS, 28, WS_SIZE)
    stamp(A, 0)
    if common.STAMPS:
        A(f"s_lshl_b32 s27, s2, 3")
        A(f"s_add_u32 s27, s27, {s(sWave)}")
    A(f"s_cmp_ge_u32 {s(sWave)}, 4")
    A("s_cbranch_scc1 L_k1_loader")

    vL = 2
    vT, vHf = 3, 4
    vXa = [[8 + 4 * sg + k for k in range(4)] for sg in range(2)]
    vWa = [16, 17]
    vSum, vSq, vCs, vOnes = 18, 19, 20, 21
    vTmp = 22
    FX = lambda p, sg: 32 + 16 * p + 4 * sg
    FW = lambda p, ph: 32 + 16 * p + 8 + 4 * ph
    ACC = lambda ph, sg: 64 + 32 * ph + 16 * sg
    sWm, sWn, sTT0, sTT1, sTF0, sTF1 = 30, 31, 32, 33, 34, 35
    A(f"s_lshr_b32 {s(sWm)}, {s(sWave)}, 1")
    A(f"s_and_b32 {s(sWn)}, {s(sWave)}, 1")
    A(f"s_lshl_b32 {s(sT0)}, {s(sWm)}, 1")
    A(f"s_add_u32 {s(sTT0)}, {s(sT0)}, {s(sWn)}")
    A(f"s_xor_b32 {s(sTT1)}, {s(sTT0)}, 1")
    A(f"s_lshl_b32 {s(sT0)}, {s(sWn)}, 1")
    A(f"s_add_u32 {s(sTF0)}, {s(sT0)}, {s(sWm)}")
    A(f"s_xor_b32 {s(sTF1)}, {s(sTF0)}, 1")
    A(f"v_and_b32 {v(vT)}, 31, {v(vL)}")
    A(f"v_lshrrev_b32 {v(vHf)}, 5, {v(vL)}")
    A.c("x fragment addresses: t*128 + 16*((2s+h) ^ ((t>>1)&7)) + tile*4096")
    A(f"v_bfe_u32 {v(vTmp)}, {v(vT)}, 1, 3")
    A(f"v_xor_b32 {v(vTmp)}, {v(vTmp)}, {v(vHf)}")
    A(f"v_lshlrev_b32 {v(vTmp)}, 4, {v(vTmp)}")
    A(f"v_lshl_add_u32 {v(vTmp)}, {v(vT)}, 7, {v(vTmp)}")
    for sg, st in ((0, sTT0), (1, sTT1)):
        A(f"s_lshl_b32 {s(sT0)}, {s(st)}, 12")
        A(f"v_add_u32 {v(vXa[sg][0])}, {s(sT0)}, {v(vTmp)}")
        for k in range(1, 4):
            A(f"v_xor_b32 {v(vXa[sg][k])}, {32*k}, {v(vXa[sg][0])}")
    A.c("w fragment addresses: (8h+r)*256 + ((tf^r)*64) + cg*32 + c*8")
    vR, vC = vTmp + 1, vTmp + 2
    A(f"v_bfe_u32 {v(vR)}, {v(vL)}, 2, 2")
    A(f"v_lshl_add_u32 {v(vC)}, {v(vHf)}, 3, {v(vR)}")
    A(f"v_lshlrev_b32 {v(vC)}, 8, {v(vC)}")
    A(f"v_bfe_u32 {v(vTmp)}, {v(vL)}, 4, 1")
    A(f"v_lshl_add_u32 {v(vC)}, {v(vTmp)}, 5, {v(vC)}")
    A(f"v_and_b32 {v(vTmp)}, 3, {v(vL)}")
    A(f"v_lshl_add_u32 {v(vC)}, {v(vTmp)}, 3, {v(vC)}")
    A(f"v_add_u32 {v(vC)}, {LDS_W}, {v(vC)}")
    for ph, st in ((0, sTF0), (1, sTF1)):
        A(f"v_xor_b32 {v(vTmp)}, {s(st)}, {v(vR)}")
        A(f"v_lshl_add_u32 {v(vWa[ph])}, {v(vTmp)}, 6, {v(vC)}")
    A(f"v_mov_b32 {v(vSum)}, 0")
    A(f"v_mov_b32 {v(vSq)}, 0")
    A(f"v_mov_b32 {v(vCs)}, 0")
    A(f"v_mov_b32 {v(vOnes)}, 0x3f803f80")
    for r in range(64, 128):
        A(f"v_mov_b32 {v(r)}, 0")

    def reads(n, which):
        p = n & 1; stage = (n >> 2) & 1; sp = n & 3
        out = []
        if "x0" in which: out.append(f"ds_read_b128 {v(FX(p,0),4)}, {v(vXa[0][sp])} offset:{stage*16384}")
        if "x1" in which: out.append(f"ds_read_b128 {v(FX(p,1),4)}, {v(vXa[1][sp])} offset:{stage*16384}")
        for ph in range(2):
            if f"w{ph}" in which:
                for i in range(2):
                    out.append(f"ds_read_b64_tr_b16 {v(FW(p,ph)+2*i,2)}, {v(vWa[ph])} offset:{stage*16384 + (16*sp+4*i)*256}")
        return out

    if prefetch: prefetch(A, 46, 7, 28, vL)
    stamp(A, 1)
    A("s_barrier")
    stamp(A, 2)
    for ln in reads(0, ("x0", "x1", "w0", "w1")): A(ln)
    A(f"s_mov_b32 {s(sT3)}, 5")
    A(".p2align 3")
    A.label("L_k1_loop")
    for n in range(8):
        p = n & 1; nn = (n + 1) & 7
        A("s_waitcnt lgkmcnt(0)")
        if n & 3 == 3: A("s_barrier")
        if n == 7:
            for r in [x for row in vXa for x in row] + vWa:
                A(f"v_xor_b32 {v(r)}, 0x8000, {v(r)}")
        mf = lambda ph, sg: f"v_mfma_f32_32x32x16_bf16 {v(ACC(ph,sg),16)}, {v(FW(p,ph),4)}, {v(FX(p,sg),4)}, {v(ACC(ph,sg),16)}"
        dots = []
        for k in range(4):
            dots.append(f"v_dot2c_f32_bf16 {v(vSum)}, {v(FX(p,0)+k)}, {v(vOnes)}")
            dots.append(f"v_dot2c_f32_bf16 {v(vSq)}, {v(FX(p,0)+k)}, {v(FX(p,0)+k)}")
            dots.append(f"v_dot2c_f32_bf16 {v(vCs)}, {v(FW(p,0)+k)}, {v(vOnes)}")
        if "nodots" in variant: dots = ["s_nop 0"] * 0 + [""] * 12
        if "early" in variant:
            A(mf(0, 0))
            for ln in reads(nn, ("x0", "w0", "x1", "w1")): A(ln)
            A(mf(0, 1))
            for ln in dots[0:4]: A(ln)
            A(mf(1, 0))
            for ln in dots[4:8]: A(ln)
            A(mf(1, 1))
            for ln in dots[8:12]: A(ln)
        else:
            A(mf(0, 0))
            for ln in reads(nn, ("x0", "w0")): A(ln)
            for ln in dots[0:3]: A(ln)
            A(mf(0, 1))
            for ln in reads(nn, ("x1",)): A(ln)
            for ln in dots[3:7]: A(ln)
            A(mf(1, 0))
            for ln in reads(nn, ("w1",)): A(ln)
            for ln in dots[7:10]: A(ln)
            A(mf(1, 1))
            for ln in dots[10:12]: A(ln)
    A(f"s_sub_u32 {s(sT3)}, {s(sT3)}, 1")
    A(f"s_cmp_lg_u32 {s(sT3)}, 0")
    A("s_cbranch_scc1 L_k1_loop")

    stamp(A, 3)
    A.c("row statistics and column sums: add the two k halves, publish through LDS")
    t0, t1, t2 = vTmp, vTmp + 1, vTmp + 2
    A("s_waitcnt vmcnt(0) lgkmcnt(0)")
    A("s_nop 2")
    A(f"v_mov_b32 {v(t0)}, {v(vSum)}")
    A(f"v_mov_b32 {v(t1)}, {v(vSq)}")
    A(f"v_mov_b32 {v(t2)}, {v(vCs)}")
    A("s_nop 1")
    A(f"v_permlane32_swap_b32 {v(vSum)}, {v(t0)}")
    A(f"v_permlane32_swap_b32 {v(vSq)}, {v(t1)}")
    A(f"v_permlane32_swap_b32 {v(vCs)}, {v(t2)}")
    A("s_nop 0")
    A(f"v_add_f32 {v(vSum)}, {v(vSum)}, {v(t0)}")
    A(f"v_add_f32 {v(vSq)}, {v(vSq)}, {v(t1)}")
    A(f"v_add_f32 {v(vCs)}, {v(vCs)}, {v(t2)}")
    vMu, vRs = vTmp + 4, vTmp + 5
    assert vMu % 2 == 0
    A(f"v_mul_f32 {v(vMu)}, {f32bits(1.0/D):#x}, {v(vSum)}")
    A(f"v_mul_f32 {v(t1)}, {f32bits(1.0/D):#x}, {v(vSq)}")
    A(f"v_fma_f32 {v(t1)}, -{v(vMu)}, {v(vMu)}, {v(t1)}")
    A(f"v_max_f32 {v(t1)}, 0, {v(t1)}")
    A(f"v_add_f32 {v(t1)}, {f32bits(1e-5):#x}, {v(t1)}")
    A(f"v_rsq_f32 {v(vRs)}, {v(t1)}")
    A(f"s_lshl_b32 {s(sT0)}, {s(sTT0)}, 8")
    A(f"s_add_u32 {s(sT0)}, {s(sT0)}, {LDS_STATS}")
    A(f"v_lshl_add_u32 {v(t0)}, {v(vT)}, 3, {s(sT0)}")
    A(f"s_lshl_b32 {s(sT0)}, {s(sTF0)}, 7")
    A(f"s_add_u32 {s(sT0)}, {s(sT0)}, {LDS_CS}")
    A(f"v_lshl_add_u32 {v(t1)}, {v(vT)}, 2, {s(sT0)}")
    A(f"ds_write_b64 {v(t0)}, {v(vMu,2)}")
    A(f"ds_write_b32 {v(t1)}, {v(vCs)}")
    A("s_waitcnt lgkmcnt(0)")
    A("s_barrier")
    stamp(A, 4)
    ST = [8, 10]
    CS = lambda ph, g: 32 + 16 * ph + 4 * g
    for sg, st in ((0, sTT0), (1, sTT1)):
        A(f"s_lshl_b32 {s(sT0)}, {s(st)}, 8")
        A(f"s_add_u32 {s(sT0)}, {s(sT0)}, {LDS_STATS}")
        A(f"v_lshl_add_u32 {v(t0)}, {v(vT)}, 3, {s(sT0)}")
        A(f"ds_read_b64 {v(ST[sg],2)}, {v(t0)}")
    for ph, st in ((0, sTF0), (1, sTF1)):
        A(f"s_lshl_b32 {s(sT0)}, {s(st)}, 7")
        A(f"s_add_u32 {s(sT0)}, {s(sT0)}, {LDS_CS}")
        A(f"v_lshl_add_u32 {v(t0)}, {v(vHf)}, 4, {s(sT0)}")
        for g in range(4):
            A(f"ds_read_b128 {v(CS(ph,g),4)}, {v(t0)} offset:{32*g}")
    vT48, vOff = 12, 13
    NMU = [14, 16]
    RF = 18
    PK = 22
    TM = 24
    A(f"v_mul_u32_u24 {v(vT48)}, 48, {v(vT)}")
    sTokOff = [36, 37]
    sHead0, sU0, sG0, sQ, sR, sDelta, sFac, sOff = 38, 39, 40, 41, 42, 43, 44, 45
    for sg, st in ((0, sTT0), (1, sTT1)):
        A(f"s_lshl_b32 {s(sT0)}, {s(sRb)}, 2")
        A(f"s_add_u32 {s(sT0)}, {s(sT0)}, {s(st)}")
        A(f"s_mul_i32 {s(sTokOff[sg])}, {s(sT0)}, {32*48}")
    A(f"s_mul_i32 {s(sHead0)}, {s(sCt)}, 6")
    A(f"s_mul_i32 {s(sU0)}, {s(sCt)}, 30")
    A("s_waitcnt lgkmcnt(0)")
    for sg in range(2):
        A(f"v_sub_f32 {v(NMU[sg])}, 0, {v(ST[sg])}")
    for ph, st in ((0, sTF0), (1, sTF1)):
        for g in range(4):
            A(f"s_lshl_b32 {s(sG0)}, {s(st)}, 3")
            A(f"s_add_u32 {s(sG0)}, {s(sG0)}, {2*g}")
            if g == 3:
                A(f"s_cmp_ge_u32 {s(sG0)}, 30")
                A(f"s_cbranch_scc1 L_k1_skip{ph}")
            A(f"s_mul_i32 {s(sQ)}, {s(sG0)}, 205")
            A(f"s_lshr_b32 {s(sQ)}, {s(sQ)}, 10")
            A(f"s_mul_i32 {s(sR)}, {s(sQ)}, 5")
            A(f"s_sub_u32 {s(sR)}, {s(sG0)}, {s(sR)}")
            A(f"s_cmp_eq_u32 {s(sR)}, 4")
            A(f"s_cselect_b32 {s(sDelta)}, {QKV_HEAD-32}, 8")
            A(f"s_add_u32 {s(sQ)}, {s(sQ)}, {s(sHead0)}")
            A(f"s_mul_i32 {s(sOff)}, {s(sQ)}, {QKV_HEAD}")
            A(f"s_lshl_b32 {s(sR)}, {s(sR)}, 3")
            A(f"s_add_u32 {s(sOff)}, {s(sOff)}, {s(sR)}")
            A(f"s_add_u32 {s(sG0)}, {s(sG0)}, {s(sU0)}")
            A(f"s_cmp_lt_u32 {s(sG0)}, 160")
            A(f"s_cselect_b32 {s(sFac)}, {f32bits(QSCALE):#x}, 1.0")
            A(f"v_mad_u32_u24 {v(vOff)}, {v(vHf)}, {s(sDelta)}, {v(vT48)}")
            for sg in range(2):
                acc = ACC(ph, sg) + 4 * g
                A(f"v_mul_f32 {v(RF)}, {s(sFac)}, {v(ST[sg]+1)}")
                for e in range(2):
                    A(f"v_pk_fma_f32 {v(TM+2*e,2)}, {v(CS(ph,g)+2*e,2)}, {v(NMU[sg],2)}, {v(acc+2*e,2)} op_sel_hi:[1,0,1]")
                for e in range(2):
                    A(f"v_pk_mul_f32 {v(TM+2*e,2)}, {v(TM+2*e,2)}, {v(RF,2)} op_sel_hi:[1,0]")
                pk = PK if sg == 0 else 28
                for e in range(2):
                    A(f"v_cvt_pk_bf16_f32 {v(pk+e)}, {v(TM+2*e)}, {v(TM+2*e+1)}")
                A(f"s_add_u32 {s(sT0)}, {s(sOff)}, {s(sTokOff[sg])}")
                A(f"buffer_store_dwordx2 {v(pk,2)}, {v(vOff)}, {s(sWS,4)}, {s(sT0)} offen")
            if g == 3:
                A.label(f"L_k1_skip{ph}")
    stamp(A, 5)
    if common.STAMPS: A("s_waitcnt vmcnt(0)")
    stamp(A, 6)
    stamp_flush(A, 7, 27, sWS, 22)
    A("s_endpgm")

    A.label("L_k1_loader")
    sLw, sXo, sWo, sM = 30, 31, 32, 33
    vXe, vXo, vWv = 3, 4, 5
    A(f"s_sub_u32 {s(sLw)}, {s(sWave)}, 4")
    A.c("x pieces: 8 rows x 128 B, granule p of row t holds source granule p ^ ((t>>1)&7)")
    A(f"v_lshrrev_b32 v6, 3, {v(vL)}")
    A(f"v_mul_u32_u24 v6, 1280, v6")
    A(f"v_and_b32 v7, 7, {v(vL)}")
    A(f"v_lshrrev_b32 v8, 4, {v(vL)}")
    A(f"v_xor_b32 v7, v7, v8")
    A(f"v_lshl_add_u32 {v(vXe)}, v7, 4, v6")
    A(f"v_xor_b32 v7, 4, v7")
    A(f"v_lshl_add_u32 {v(vXo)}, v7, 4, v6")
    A.c("w pieces: 4 rows x 256 B, granule p of row k holds source granule p ^ ((k&3)<<2), 15 -> 14")
    A(f"v_and_b32 v7, 15, {v(vL)}")
    A(f"v_lshlrev_b32 v9, 2, v8")
    A(f"v_xor_b32 v7, v7, v9")
    A(f"v_min_u32 v7, 14, v7")
    A(f"v_mul_u32_u24 v8, 3840, v8")
    A(f"v_lshl_add_u32 {v(vWv)}, v7, 4, v8")
    A(f"s_lshl_b32 {s(sT0)}, {s(sRb)}, 7")
    A(f"s_lshl_b32 {s(sT1)}, {s(sLw)}, 5")
    A(f"s_add_u32 {s(sT0)}, {s(sT0)}, {s(sT1)}")
    A(f"s_mul_i32 {s(sXo)}, {s(sT0)}, 1280")
    A(f"s_mul_i32 {s(sWo)}, {s(sLw)}, {16*3840}")
    A(f"s_mul_i32 {s(sT1)}, {s(sCt)}, 240")
    A(f"s_add_u32 {s(sWo)}, {s(sWo)}, {s(sT1)}")
    A(f"s_lshl_b32 {s(sM)}, {s(sLw)}, 12")

    def issue(c):
        st = c & 3
        for ii in range(4):
            A(f"s_add_u32 m0, {s(sM)}, {LDS_X + st*16384 + ii*1024}")
            A(f"s_add_u32 {s(sT0)}, {s(sXo)}, {ii*10240 + c*128}")
            A(f"buffer_load_dwordx4 {v(vXo if ii & 1 else vXe)}, {s(sX,4)}, {s(sT0)} offen lds")
            A(f"s_add_u32 m0, {s(sM)}, {LDS_W + st*16384 + ii*1024}")
            A(f"s_add_u32 {s(sT0)}, {s(sWo)}, {ii*15360 + c*245760}")
            A(f"buffer_load_dwordx4 {v(vWv)}, {s(sW,4)}, {s(sT0)} offen lds")
    for c in range(3): issue(c)
    stamp(A, 1)
    RAW = lambda f: 16 + 4 * f
    vFr = 10
    extra = 0
    for c in range(10):
        later = (min(c + 2, 9) - c) * 8 + (extra if c >= 7 else 0)
        A(f"s_waitcnt vmcnt({later})")
        if c in (0, 1, 5, 9): stamp(A, {0: 2, 1: 3, 5: 4, 9: 5}[c])
        A("s_barrier")
        if c + 3 <= 9: issue(c + 3)
        if c == 6:
            A.c("raw x fragments for this wave's share of the normalised copy (steps ct, ct+16, ct+32)")
            A(f"v_and_b32 v6, 31, {v(vL)}")
            A(f"v_mul_u32_u24 v6, 1280, v6")
            A(f"v_lshrrev_b32 v7, 5, {v(vL)}")
            A(f"v_lshl_add_u32 {v(vFr)}, v7, 4, v6")
            A(f"s_lshl_b32 {s(sT1)}, {s(sCt)}, 5")
            A(f"s_add_u32 {s(sT1)}, {s(sT1)}, {s(sXo)}")
            for f in range(3):
                if f == 2:
                    A(f"s_cmp_lt_u32 {s(sCt)}, 8")
                    A(f"s_cselect_b32 {s(sT2)}, {2*512}, 0")
                    A(f"s_add_u32 {s(sT0)}, {s(sT1)}, {s(sT2)}")
                else:
                    A(f"s_add_u32 {s(sT0)}, {s(sT1)}, {f*512}")
                A(f"buffer_load_dwordx4 {v(RAW(f),4)}, {v(vFr)}, {s(sX,4)}, {s(sT0)} offen")
            extra = 3
    A("s_barrier")
    A.c("constant tail (1,0,0,0) of every 24-wide row")
    A(f"v_and_b32 v6, 31, {v(vL)}")
    A(f"v_mul_u32_u24 v7, 48, v6")
    A(f"v_lshrrev_b32 v8, 5, {v(vL)}")
    A(f"s_mov_b32 {s(sT2)}, {QKV_HEAD}")
    A(f"v_mad_u32_u24 v7, v8, {s(sT2)}, v7")
    A(f"v_mov_b32 v12, 0x3f80")
    A(f"v_mov_b32 v13, 0")
    A(f"s_lshl_b32 {s(sT0)}, {s(sRb)}, 2")
    A(f"s_add_u32 {s(sT0)}, {s(sT0)}, {s(sLw)}")
    A(f"s_mul_i32 {s(sT1)}, {s(sT0)}, {32*48}")
    A(f"s_mul_i32 {s(sT2)}, {s(sCt)}, {6*QKV_HEAD}")
    A(f"s_add_u32 {s(sT1)}, {s(sT1)}, {s(sT2)}")
    for e in range(3):
        A(f"s_add_u32 {s(sT2)}, {s(sT1)}, {2*e*QKV_HEAD + 40}")
        A(f"buffer_store_dwordx2 v[12:13], v7, {s(sWS,4)}, {s(sT2)} offen")
    A(f"s_mul_i32 {s(sT3)}, {s(sT0)}, {40*1024}")
    A(f"s_lshl_b32 {s(sT1)}, {s(sCt)}, 10")
    A(f"s_add_u32 {s(sT3)}, {s(sT3)}, {s(sT1)}")
    A(f"s_add_u32 {s(sT3)}, {s(sT3)}, {WS_XN}")
    A(f"s_lshl_b32 {s(sT0)}, {s(sLw)}, 8")
    A(f"s_add_u32 {s(sT0)}, {s(sT0)}, {LDS_STATS}")
    A(f"v_lshl_add_u32 v8, v6, 3, {s(sT0)}")
    A(f"v_lshlrev_b32 v9, 4, {v(vL)}")
    A("s_barrier")
    A(f"ds_read_b64 v[14:15], v8")
    A("s_waitcnt vmcnt(3) lgkmcnt(0)")
    A(f"v_mul_f32 v14, v14, v15")
    A(f"v_sub_f32 v14, 0, v14")
    for f in range(3):
        if f == 2:
            A(f"s_cmp_ge_u32 {s(sCt)}, 8")
            A("s_cbranch_scc1 L_k1_fin")
        for k in range(4):
            r = RAW(f) + k
            A(f"v_lshlrev_b32 v28, 16, {v(r)}")
            A(f"v_and_b32 v29, 0xffff0000, {v(r)}")
            A(f"v_fma_f32 v28, v28, v15, v14")
            A(f"v_fma_f32 v29, v29, v15, v14")
            A(f"v_cvt_pk_bf16_f32 {v(r)}, v28, v29")
        A(f"s_add_u32 {s(sT0)}, {s(sT3)}, {f*16*1024}")
        A(f"buffer_store_dwordx4 {v(RAW(f),4)}, v9, {s(sWS,4)}, {s(sT0)} offen")
    A.label("L_k1_fin")
    stamp(A, 6)
    stamp_flush(A, 7, 27, sWS, 22)
    A.label("L_k1_end")
    A("s_endpgm")
    return NAME, 512, LDS_BYTES, descriptor(NAME, NV)
```

```python
import sys
from build import *
import k1, attn, ffn, common
args = sys.argv[1:]
out = args[0] if args else "cur.s"
if "stamps" in args: common.STAMPS = True
if "debug" in args: common.DEBUG = True
variant = ",".join(args[1:])
pf1 = lambda A, sp, vt, vd, lane: code_prefetch(A, "k1", "L_k1_loop", 4, sp, vt, vd, lane)
specs = [("qkv_kernel", {}), ("qkv_kernel", {"L_k1_loader": True}), ("qkv_kernel", {"L_k1_skip0": True, "L_k1_skip1": True})]
go = lambda n: True
specs += [("attn_kernel", {"L_go_attn0": True, "L_go_attn": True, "L_go_attn2": True}),
          ("attn_kernel", {"L_go_attn0": True, "L_go_attn": True, "L_go_attn2": True, "L_attn_nodma": True})]
specs += [("ffn1_kernel", {"L_go_f10": True, "L_go_f1w": True}),
          ("out_kernel", {}), ("out_kernel", {"L_out_nores": True})]
ks = [lambda A: k1.gen(A, pf1, variant), lambda A: attn.gen(A, variant), ffn.gen_ffn1, ffn.gen_out]
build(ks, out, specs)
assemble_check(out)
```

```python
import re

def v(i, n=1):
    return f"v{i}" if n == 1 else f"v[{i}:{i+n-1}]"
def s(i, n=1):
    return f"s{i}" if n == 1 else f"s[{i}:{i+n-1}]"
def a(i, n=1):
    return f"a{i}" if n == 1 else f"a[{i}:{i+n-1}]"

class Asm:
    def __init__(self):
        self.lines = []
    def __call__(self, text):
        for ln in text.split("\n"):
            ln = ln.rstrip()
            if ln.strip():
                self.lines.append(ln if ln.endswith(":") or ln.startswith(".") or ln.startswith(";") else "    " + ln.strip())
    def label(self, name):
        self.lines.append(f"{name}:")
    def c(self, text):
        self.lines.append(f"    ; {text}")
    def text(self):
        return "\n".join(self.lines) + "\n"

class Regs:
    def __init__(self, start, limit, kind="v"):
        self.n = start; self.limit = limit; self.kind = kind; self.names = {}
    def alloc(self, name, n=1, align=1):
        if n >= 2 and align == 1:
            align = 2 if self.kind == "v" else (4 if n >= 4 else 2)
        self.n = (self.n + align - 1) // align * align
        r = self.n; self.n += n
        assert self.n <= self.limit, f"out of {self.kind} registers at {name}: {self.n} > {self.limit}"
        self.names[name] = (r, n)
        return r

REG_RE = re.compile(r"^(-|abs\()?\s*([vsa])(\d+)\)?$")
RANGE_RE = re.compile(r"^(-|abs\()?\s*([vsa])\[(\d+):(\d+)\]\)?$")

def regs_of(op):
    op = op.strip()
    m = REG_RE.match(op)
    if m: return [(m.group(2), int(m.group(3)))]
    m = RANGE_RE.match(op)
    if m: return [(m.group(2), i) for i in range(int(m.group(3)), int(m.group(4)) + 1)]
    if op == "vcc": return [("s", "vcc")]
    if op in ("exec", "exec_lo", "exec_hi"): return [("s", "exec")]
    if op == "m0": return [("s", "m0")]
    if op in ("vcc_lo", "vcc_hi"): return [("s", "vcc")]
    return []

def split_ops(rest):
    out, depth, cur = [], 0, ""
    for ch in rest:
        if ch in "[(": depth += 1
        if ch in "])": depth -= 1
        if ch == "," and depth == 0:
            out.append(cur.strip()); cur = ""
        else:
            cur += ch
    if cur.strip(): out.append(cur.strip())
    return out

TRANS = ("v_exp_", "v_log_", "v_rcp_", "v_rsq_", "v_sqrt_", "v_sin_", "v_cos_")

class Ins:
    __slots__ = ("text", "mn", "ops", "mods", "kind", "wr", "rd", "idx", "A", "B", "C", "passes", "note")
    def __init__(self, text, idx):
        self.text = text; self.idx = idx
        code, _, note = text.partition(";")
        self.note = note
        code = code.strip()
        mn, _, rest = code.partition(" ")
        self.mn = mn
        ops = split_ops(rest)
        mods = ""
        if ops:
            last = ops[-1].split()
            if len(last) > 1:
                ops[-1] = last[0]; mods = " ".join(last[1:])
        self.ops = ops; self.mods = mods
        self.A = self.B = self.C = []; self.passes = 0
        wr, rd = [], []
        R = regs_of
        if mn.startswith("v_mfma"):
            self.kind = "mfma"
            wr = R(ops[0]); self.A = R(ops[1]); self.B = R(ops[2]); self.C = R(ops[3])
            rd = self.A + self.B + self.C
            self.passes = 8 if "32x32" in mn else 4
        elif mn.startswith("v_"):
            self.kind = "valu"
            if mn.startswith("v_cmp"):
                wr = R(ops[0]); rd = sum((R(o) for o in ops[1:]), [])
            elif mn.startswith("v_permlane") and "swap" in mn:
                wr = R(ops[0]) + R(ops[1]); rd = list(wr)
            elif mn.startswith(("v_add_co", "v_sub_co", "v_addc_co", "v_subb_co")):
                wr = R(ops[0]) + R(ops[1]); rd = sum((R(o) for o in ops[2:]), [])
            else:
                wr = R(ops[0]); rd = sum((R(o) for o in ops[1:]), [])
                if mn.startswith(("v_fmac", "v_dot2c", "v_writelane", "v_mac")) or "UNUSED_PRESERVE" in mods:
                    rd += wr
                if mn.startswith("v_cndmask") and len(ops) == 3:
                    rd += [("s", "vcc")]
        elif mn.startswith("ds_"):
            self.kind = "ds"
            if mn.startswith(("ds_read", "ds_bpermute", "ds_swizzle")) or "_rtn" in mn:
                wr = R(ops[0]); rd = sum((R(o) for o in ops[1:]), [])
            else:
                rd = sum((R(o) for o in ops), [])
        elif mn.startswith(("buffer_", "global_")):
            self.kind = "vmem"
            lds = " lds" in (" " + mods) or "_lds_" in mn
            if mn in ("buffer_inv", "buffer_wbl2"):
                pass
            elif "load" in mn and not lds:
                wr = R(ops[0]); rd = sum((R(o) for o in ops[1:]), [])
            elif "atomic" in mn and "sc0" in mods:
                if mn.startswith("buffer_"):
                    wr = R(ops[0]); rd = sum((R(o) for o in ops), [])
                else:
                    wr = R(ops[0]); rd = sum((R(o) for o in ops[1:]), [])
            else:
                rd = sum((R(o) for o in ops), [])
                if lds: rd += [("s", "m0")]
        elif mn.startswith("s_load") or mn.startswith("s_memtime") or mn.startswith("s_memrealtime"):
            self.kind = "smem"
            wr = R(ops[0]); rd = sum((R(o) for o in ops[1:]), [])
        elif mn in ("s_waitcnt", "s_nop", "s_barrier", "s_endpgm", "s_sleep", "s_setprio", "s_branch", "s_call_b64", "s_setpc_b64") or mn.startswith("s_cbranch"):
            self.kind = "ctl"
        elif mn.startswith("s_"):
            self.kind = "salu"
            if mn.startswith("s_cmp") or mn.startswith("s_bitcmp"):
                rd = sum((R(o) for o in ops), [])
            else:
                wr = R(ops[0]); rd = sum((R(o) for o in ops[1:]), [])
                if "saveexec" in mn: wr += [("s", "exec")]; rd += [("s", "exec")]
                if mn.startswith(("s_addk", "s_mulk")): rd += wr
        else:
            raise ValueError("unknown instruction: " + text)
        self.wr = set(wr); self.rd = set(rd)
    def states(self):
        if self.mn == "s_nop": return int(self.ops[0], 0) + 1
        return 1

def parse(text):
    ins, labels = [], {}
    for ln in text.split("\n"):
        t = ln.split(";")[0].strip()
        if not t or t.startswith("."): continue
        if t.endswith(":"):
            labels[t[:-1]] = len(ins); continue
        ins.append(Ins(ln.strip(), len(ins)))
    return ins, labels

def trace(ins, labels, start, decisions=None, loops=2, maxlen=400000):
    decisions = decisions or {}
    pc = labels[start]; out = []; cnt = {}; stack = []
    while pc < len(ins) and len(out) < maxlen:
        i = ins[pc]; out.append(i)
        if i.mn == "s_endpgm": break
        if i.mn == "s_call_b64":
            stack.append(pc + 1); pc = labels[i.ops[1]]; continue
        if i.mn == "s_setpc_b64":
            pc = stack.pop(); continue
        if i.mn == "s_branch":
            pc = labels[i.ops[0]]; continue
        if i.mn.startswith("s_cbranch"):
            tgt = labels[i.ops[0]]
            if tgt <= pc and not isinstance(decisions.get(i.ops[0]), list):
                n = cnt.get(pc, 0) + 1
                lim = decisions.get(i.ops[0], loops)
                if n < lim:
                    cnt[pc] = n; pc = tgt; continue
                cnt[pc] = 0
            else:
                d = decisions.get(i.ops[0], False)
                if isinstance(d, list):
                    d = d.pop(0) if d else False
                if d:
                    pc = tgt; continue
        pc += 1
    return out

def vonly(rs):
    return {r for r in rs if r[0] in "va"}

def lint(tr, name=""):
    errs = []
    def err(i, j, msg):
        errs.append(f"[{name}] {msg}\n      producer: {tr[i].text}\n      consumer: {tr[j].text}")
    n = len(tr)
    for i in range(n):
        p = tr[i]
        if p.kind not in ("valu", "mfma", "salu", "vmem"): continue
        dist = 0
        for j in range(i + 1, min(n, i + 24)):
            c = tr[j]
            if p.kind == "valu":
                wv = vonly(p.wr); ws = {r for r in p.wr if r[0] == "s"}
                if c.kind == "mfma" and wv & c.rd and dist < 2: err(i, j, f"VALU->MFMA needs 2, has {dist}")
                if p.mn.startswith(TRANS) and c.kind == "valu" and not c.mn.startswith(TRANS) and wv & c.rd and dist < 1:
                    err(i, j, "trans->VALU needs 1")
                if p.mn.startswith(TRANS) and c.kind == "valu" and c.mn.startswith(TRANS) and wv & c.rd and dist < 1:
                    err(i, j, "trans->trans dependent (pad 1 to be safe)")
                if c.mn.startswith(("v_readfirstlane", "v_readlane")) and wv & c.rd and dist < 1: err(i, j, "VALU->readlane needs 1")
                if c.mn.startswith("v_permlane") and wv & c.rd and dist < 2: err(i, j, "VALU->permlane needs 2")
                if c.kind == "valu" and ("dpp" in c.mn or "quad_perm" in c.mods or "row_" in c.mods) and wv & c.rd and dist < 2:
                    err(i, j, "VALU->DPP needs 2")
                if ws:
                    if c.kind == "valu" and ws & c.rd and dist < 2: err(i, j, "VALU sgpr write->VALU read needs 2")
                    if c.kind == "vmem" and ws & c.rd and dist < 5: err(i, j, "VALU sgpr write->VMEM needs 5")
                    if c.kind == "salu" and ws & c.rd and dist < 1: err(i, j, "VALU sgpr write->SALU read (pad 1)")
                if ("sdwa" in p.mn or "op_sel" in p.mods) and c.kind == "valu" and wv & c.rd and dist < 1 and "pk_" not in p.mn:
                    err(i, j, "SDWA/opsel->VALU needs 1")
            elif p.kind == "mfma":
                D = p.wr; need = 12 if p.passes == 8 else 8
                if c.kind in ("valu", "vmem", "ds") and (D & (c.rd | c.wr)) and dist < need:
                    err(i, j, f"MFMA D->{c.kind} needs {need}, has {dist}")
                if c.kind == "mfma":
                    if D & (set(c.A) | set(c.B)) and dist < need: err(i, j, f"MFMA D->MFMA A/B needs {need}, has {dist}")
                    if D & set(c.C):
                        if set(c.C) != D or c.passes != p.passes:
                            nd = 10 if p.passes == 8 else 6
                            if dist < nd: err(i, j, f"MFMA D->overlapping C needs {nd}")
                    elif D & c.wr and dist < need and not (set(c.C) & D):
                        err(i, j, f"MFMA D->MFMA D WAW needs {need} (conservative), has {dist}")
                nd = 7 if p.passes == 8 else 3
                if c.kind == "valu" and set(p.C) & c.wr and dist < nd and not (set(p.C) & D):
                    err(i, j, f"MFMA C read->VALU write needs {nd}")
            elif p.kind == "salu":
                if ("s", "m0") in p.wr and c.kind == "vmem" and ("s", "m0") in c.rd and dist < 1:
                    err(i, j, "M0 write->LDS DMA needs 1")
            elif p.kind == "vmem":
                if "store" in p.mn and ("x4" in p.mn or "x3" in p.mn):
                    data = set(regs_of(p.ops[0])) if p.mn.startswith("buffer") else set(regs_of(p.ops[1]))
                    if c.kind == "valu" and data & c.wr and dist < 2: err(i, j, "wide store data overwritten needs 2")
                    if c.kind in ("vmem", "ds", "mfma") and data & c.wr and dist < 1: err(i, j, "wide store data overwritten needs 1")
            dist += c.states()
            if dist >= 20: break
    vq, lq = [], []
    smem_pending = set()
    for k, c in enumerate(tr):
        if c.mn == "s_waitcnt":
            t = c.text.split(";")[0]
            m = re.search(r"vmcnt\((\d+)\)", t)
            if m:
                N = int(m.group(1))
                while len(vq) > N: vq.pop(0)
            m = re.search(r"lgkmcnt\((\d+)\)", t)
            if m:
                N = int(m.group(1))
                if N == 0: lq.clear(); smem_pending.clear()
                else:
                    if smem_pending: errs.append(f"[{name}] counted lgkmcnt with SMEM outstanding: {c.text}")
                    while len(lq) > N: lq.pop(0)
            continue
        touched = c.rd | c.wr
        for q, nm in ((vq, "vmcnt"), (lq, "lgkmcnt")):
            for (idx, dst) in q:
                if dst & touched:
                    if tr[idx].kind == c.kind and not (dst & c.rd) and c.kind in ("vmem", "ds"):
                        continue
                    errs.append(f"[{name}] register used while {nm} pending\n      load: {tr[idx].text}\n      use:  {c.text}")
        if smem_pending & touched:
            errs.append(f"[{name}] sgpr used while SMEM pending: {c.text}")
        if c.kind == "vmem":
            vq.append((k, set(c.wr)))
            if len(vq) > 63: errs.append(f"[{name}] vmcnt overflow (>63 outstanding) at {c.text}")
        elif c.kind == "ds":
            lq.append((k, set(c.wr)))
        elif c.kind == "smem":
            smem_pending |= c.wr
    seen, out = set(), []
    for e in errs:
        if e not in seen:
            seen.add(e); out.append(e)
    return out
```

```python
from common import *
from attn import lds_arrive, lds_wait
import common

PS = 2080
SLOT = 20992
ONES = 3 * SLOT + 64
KV_BYTES = ONES + 2048
DSHIFT = 96.0

def role(A, sWS, sWv, sHead, sQb, lds_kv, lds_cnt, vL, sb=40, on_stored=None, variant=""):
    sT0, sT1, sT2, sKoff, sVoff, sM, sChunk, sTarget, sSlot, sSlotN, sTile, sKh, sG = [sb + i for i in range(13)]
    vT, vHf, vKa, vKb, vV, vKa0, vKb0, vV0, vCnt, vOne, vTmp, vDma, vVm = 3, 4, 5, 6, 7, 8, 9, 10, 11, 12, 13, 14, 15
    Q1 = [16, 24]; Q2 = [20, 28]
    KA = [32, 40]; KB = [36, 44]
    VA = [48, 56]; VB = [52, 60]
    P = [64, 72]
    SB = [80, 96]
    O = [112, 128]
    T = 144
    A(f"v_and_b32 {v(vT)}, 31, {v(vL)}")
    A(f"v_lshrrev_b32 {v(vHf)}, 5, {v(vL)}")
    A(f"v_lshlrev_b32 {v(vDma)}, 4, {v(vL)}")
    A(f"s_lshr_b32 {s(sKh)}, {s(sWv)}, 2")
    A(f"s_and_b32 {s(sG)}, {s(sWv)}, 3")
    A.c("a chunk is 20 pieces of 1 KiB (plane n>>1, half n&1); wave w copies pieces w, w+8 and, for w < 4, w+16")
    sP = [sb + 13, sb + 14, sb + 15]; sL = [sb + 16, sb + 17, sb + 18]
    for i in range(3):
        A(f"s_add_u32 {s(sT0)}, {s(sWv)}, {8*i}")
        A(f"s_lshr_b32 {s(sT1)}, {s(sT0)}, 1")
        A(f"s_and_b32 {s(sT0)}, {s(sT0)}, 1")
        A(f"s_mul_i32 {s(sL[i])}, {s(sT1)}, {PS}")
        A(f"s_lshl_b32 {s(sT2)}, {s(sT0)}, 10")
        A(f"s_add_u32 {s(sL[i])}, {s(sL[i])}, {s(sT2)}")
        A(f"s_add_u32 {s(sL[i])}, {s(sL[i])}, {lds_kv}")
        A.c("planes 0..4 -> key unit 160 + 5*head + p, planes 5..9 -> value unit 320 + 5*head + p - 5")
        A(f"s_cmp_ge_u32 {s(sT1)}, 5")
        A(f"s_cselect_b32 {s(sT0)}, 155, 0")
        A(f"s_add_u32 {s(sT1)}, {s(sT1)}, {s(sT0)}")
        A(f"s_mul_i32 {s(sT0)}, {s(sHead)}, 5")
        A(f"s_add_u32 {s(sT1)}, {s(sT1)}, {s(sT0)}")
        A(f"s_add_u32 {s(sT1)}, {s(sT1)}, 160")
        A(f"s_lshl_b32 {s(sP[i])}, {s(sT1)}, 14")
        A(f"s_add_u32 {s(sP[i])}, {s(sP[i])}, {s(sT2)}")
        A(f"s_add_u32 {s(sP[i])}, {s(sP[i])}, {WS_QKV}")
    ndma = [0]
    def dma(slot_off, in_reg=False):
        ndma[0] += 1
        for i in range(3):
            if i == 2:
                A(f"s_cmp_ge_u32 {s(sWv)}, 4")
                A(f"s_cbranch_scc1 L_attn_dma{ndma[0]}")
            if not in_reg:
                A(f"s_add_u32 m0, {s(sL[i])}, {slot_off}")
            else:
                A(f"s_add_u32 m0, {s(sL[i])}, {s(slot_off)}")
            A("s_nop 0")
            A(f"buffer_load_dwordx4 {v(vDma)}, {s(sWS,4)}, {s(sP[i])} offen lds")
        A.label(f"L_attn_dma{ndma[0]}")
        for i in range(3): A(f"s_add_u32 {s(sP[i])}, {s(sP[i])}, 2048")
    dma(0)
    A.c("query fragments of tiles 2g and 2g+1")
    A(f"s_lshl_b32 {s(sTile)}, {s(sQb)}, 3")
    A(f"s_lshl_b32 {s(sT0)}, {s(sG)}, 1")
    A(f"s_add_u32 {s(sTile)}, {s(sTile)}, {s(sT0)}")
    A(f"s_lshl_b32 {s(sT1)}, {s(sTile)}, 8")
    A(f"s_mul_i32 {s(sT2)}, {s(sHead)}, {5*PLANE}")
    A(f"s_add_u32 {s(sT1)}, {s(sT1)}, {s(sT2)}")
    A(f"s_add_u32 {s(sT1)}, {s(sT1)}, {WS_QKV}")
    A(f"v_lshlrev_b32 {v(vKb0)}, 3, {v(vT)}")
    A(f"v_lshl_add_u32 {v(vKa0)}, {v(vHf)}, 15, {v(vKb0)}")
    A(f"s_add_u32 {s(sT2)}, {s(sT1)}, {PLANE}")
    A(f"s_add_u32 {s(sT0)}, {s(sT1)}, {4*PLANE}")
    for q in range(2):
        A(f"buffer_load_dwordx2 {v(Q1[q],2)}, {v(vKa0)}, {s(sWS,4)}, {s(sT1)} offen offset:{q*256}")
        A(f"buffer_load_dwordx2 {v(Q1[q]+2,2)}, {v(vKa0)}, {s(sWS,4)}, {s(sT2)} offen offset:{q*256}")
        A(f"buffer_load_dwordx2 {v(Q2[q],2)}, {v(vKb0)}, {s(sWS,4)}, {s(sT0)} offen offset:{q*256}")
    dma(SLOT)
    A.c("LDS addresses: keys plane 2h / plane 4 at key*8; values plane c (c<4), plane 4 or the constant plane")
    A(f"v_mul_u32_u24 {v(vKa0)}, {2*PS}, {v(vHf)}")
    A(f"v_add_u32 {v(vKa0)}, {v(vKa0)}, {v(vKb0)}")
    A(f"v_add_u32 {v(vKa0)}, {lds_kv}, {v(vKa0)}")
    A(f"v_add_u32 {v(vKb0)}, {lds_kv + 4*PS}, {v(vKb0)}")
    A(f"v_bfe_u32 {v(T)}, {v(vL)}, 2, 2")
    A(f"v_lshl_add_u32 {v(T)}, {v(vHf)}, 2, {v(T)}")
    A(f"v_lshlrev_b32 {v(T)}, 3, {v(T)}")
    A(f"v_and_b32 {v(T+1)}, 3, {v(vL)}")
    A(f"v_bfe_u32 {v(T+2)}, {v(vL)}, 4, 1")
    A(f"v_lshl_add_u32 {v(T+2)}, {v(T+2)}, 2, {v(T+1)}")
    A(f"v_mul_u32_u24 {v(vV0)}, {PS}, {v(T+2)}")
    A(f"v_add_u32 {v(vV0)}, {lds_kv + 5*PS}, {v(vV0)}")
    A(f"v_cmp_gt_u32 vcc, 5, {v(T+2)}")
    A(f"v_mov_b32 {v(T+1)}, {lds_kv + ONES}")
    A(f"v_mov_b32 {v(vOne)}, 1")
    A(f"v_cndmask_b32 {v(vV0)}, {v(T+1)}, {v(vV0)}, vcc")
    A(f"v_cndmask_b32 {v(vVm)}, 0, {v(vOne)}, vcc")
    A(f"v_add_u32 {v(vV0)}, {v(vV0)}, {v(T)}")
    A(f"v_mov_b32 {v(vCnt)}, {lds_cnt}")
    A.c("constant plane: 256 x (1,0,0,0), written by wave 0")
    A(f"s_cmp_lg_u32 {s(sWv)}, 0")
    A("s_cbranch_scc1 L_attn_noones")
    A(f"v_mov_b32 {v(T)}, 0x3f80")
    A(f"v_mov_b32 {v(T+1)}, 0")
    A(f"v_mov_b32 {v(T+2)}, 0x3f80")
    A(f"v_mov_b32 {v(T+3)}, 0")
    A(f"v_add_u32 {v(T+4)}, {lds_kv + ONES}, {v(vDma)}")
    A(f"ds_write_b128 {v(T+4)}, {v(T,4)}")
    A(f"ds_write_b128 {v(T+4)}, {v(T,4)} offset:1024")
    A("s_waitcnt lgkmcnt(0)")
    A.label("L_attn_noones")
    for b in range(2):
        A(f"v_mov_b32 {v(KB[b]+2)}, 0x3f80")
        A(f"v_mov_b32 {v(KB[b]+3)}, 0")
    for q in range(2):
        for r in range(16): A(f"v_mov_b32 {v(O[q]+r)}, 0")
    for r in range(8):
        A(f"v_mov_b32 {v(P[1]+r)}, 0")
        A(f"v_mov_b32 {v(VA[1]+r)}, 0")
    A(f"v_cmp_eq_u32 vcc, 0, {v(vHf)}")
    A("s_waitcnt vmcnt(2)")
    A("s_nop 0")
    for q in range(2):
        A(f"v_cndmask_b32 {v(Q2[q])}, 0, {v(Q2[q])}, vcc")
        A(f"v_cndmask_b32 {v(Q2[q]+1)}, 0, {v(Q2[q]+1)}, vcc")
        A(f"v_mov_b32 {v(Q2[q]+2)}, 0")
        A(f"v_mov_b32 {v(Q2[q]+3)}, 0")
    A.c("chunk 0 of this wave has landed")
    lds_arrive(A, vCnt, vOne)
    A(f"s_mov_b32 {s(sTarget)}, 8")
    lds_wait(A, "attn0", vCnt, vTmp, sT0, sTarget)
    stamp(A, 1)

    def kreads(b, off):
        return [f"ds_read_b64 {v(KA[b],2)}, {v(vKa)} offset:{off}", f"ds_read_b64 {v(KA[b]+2,2)}, {v(vKa)} offset:{off + PS}",
                f"ds_read_b64 {v(KB[b],2)}, {v(vKb)} offset:{off}"]
    def vreads(b, off):
        return [f"ds_read_b64_tr_b16 {v((VA if m == 0 else VB)[b]+2*i,2)}, {v(vV)} offset:{off + (16*m+8*i)*8}" for m in range(2) for i in range(2)]
    s1 = lambda q, b: f"v_mfma_f32_32x32x16_bf16 {v(SB[q],16)}, {v(KA[b],4)}, {v(Q1[q],4)}, 0"
    s2 = lambda q, b: f"v_mfma_f32_32x32x16_bf16 {v(SB[q],16)}, {v(KB[b],4)}, {v(Q2[q],4)}, {v(SB[q],16)}"
    pv = lambda q, b, m: f"v_mfma_f32_32x32x16_bf16 {v(O[q],16)}, {v((VA if m == 0 else VB)[b],4)}, {v(P[q]+4*m,4)}, {v(O[q],16)}"

    A.c("reference value per query: maximum over key tile 0 plus a fixed offset, rounded to bf16")
    A(f"v_mov_b32 {v(vKa)}, {v(vKa0)}")
    A(f"v_mov_b32 {v(vKb)}, {v(vKb0)}")
    for ln in kreads(0, 0): A(ln)
    A(f"s_lshl_b32 {s(sT0)}, {s(sKh)}, 8")
    A(f"v_add_u32 {v(vKa0)}, {s(sT0)}, {v(vKa0)}")
    A(f"v_add_u32 {v(vKb0)}, {s(sT0)}, {v(vKb0)}")
    A(f"v_add_u32 {v(vV0)}, {s(sT0)}, {v(vV0)}")
    A("s_waitcnt lgkmcnt(0)")
    for q in range(2):
        A(s1(q, 0)); A(s2(q, 0))
    A(f"v_mov_b32 {v(vKa)}, {v(vKa0)}")
    A(f"v_mov_b32 {v(vKb)}, {v(vKb0)}")
    A(f"v_mov_b32 {v(vV)}, {v(vV0)}")
    for ln in kreads(0, 0): A(ln)
    A("s_nop 7")
    A(f"v_cmp_eq_u32 vcc, 0, {v(vHf)}")
    for q in range(2):
        b = SB[q]; t = T + 4 * q
        A(f"v_max3_f32 {v(t)}, {v(b)}, {v(b+1)}, {v(b+2)}")
        A(f"v_max3_f32 {v(t+1)}, {v(b+3)}, {v(b+4)}, {v(b+5)}")
        A(f"v_max3_f32 {v(t+2)}, {v(b+6)}, {v(b+7)}, {v(b+8)}")
        A(f"v_max3_f32 {v(t+3)}, {v(b+9)}, {v(b+10)}, {v(b+11)}")
        A(f"v_max3_f32 {v(t)}, {v(t)}, {v(b+12)}, {v(b+13)}")
        A(f"v_max3_f32 {v(t+1)}, {v(t+1)}, {v(b+14)}, {v(b+15)}")
        A(f"v_max3_f32 {v(t)}, {v(t)}, {v(t+1)}, {v(t+2)}")
        A(f"v_max_f32 {v(t)}, {v(t)}, {v(t+3)}")
        A(f"v_mov_b32 {v(t+1)}, {v(t)}")
    A("s_nop 0")
    for q in range(2):
        t = T + 4 * q
        A(f"v_permlane32_swap_b32 {v(t)}, {v(t+1)}")
    A("s_nop 0")
    for q in range(2):
        t = T + 4 * q
        A(f"v_max_f32 {v(t)}, {v(t)}, {v(t+1)}")
        A(f"v_add_f32 {v(t)}, {f32bits(DSHIFT):#x}, {v(t)}")
        A(f"v_sub_f32 {v(t)}, 0, {v(t)}")
        A(f"v_cvt_pk_bf16_f32 {v(t)}, {v(t)}, 0")
        A(f"v_cndmask_b32 {v(Q2[q]+2)}, 0, {v(t)}, vcc")
    A("s_waitcnt lgkmcnt(0)")
    A("s_nop 0")
    A.c("pipeline prologue: scores of tile A for the first key tile")
    A(s1(0, 0)); A(s2(0, 0))
    A(f"s_mov_b32 {s(sChunk)}, 0")
    A(f"s_mov_b32 {s(sSlot)}, 0")
    A(f"s_mov_b32 {s(sTarget)}, 8")
    A("s_nop 7")
    A(".p2align 3")
    A.label("L_attn_chunk")
    A.c("arrive: own copy of the next chunk has landed and the previous chunk is no longer read")
    A("s_waitcnt vmcnt(0)")
    lds_arrive(A, vCnt, vOne)
    A(f"s_add_u32 {s(sTarget)}, {s(sTarget)}, 8")
    A(f"s_add_u32 {s(sSlotN)}, {s(sSlot)}, {SLOT}")
    A(f"s_cmp_eq_u32 {s(sSlotN)}, {3*SLOT}")
    A(f"s_cselect_b32 {s(sSlotN)}, 0, {s(sSlotN)}")

    A0 = A
    class Filt:
        def __call__(self, ln):
            if "nolds" in variant and ((ln.startswith("ds_read") and "b32" not in ln) or "lgkmcnt(4)" in ln): return
            if "nomfma" in variant and ln.startswith("v_mfma"): return
            if "noexp" in variant and ln.startswith("v_exp"): return
            if "nocvt" in variant and ln.startswith("v_cvt"): return
            A0(ln)
        def c(self, t): A0.c(t)
        def label(self, t): A0.label(t)
    A = Filt()
    def phase(q, mf, extra):
        sb_ = SB[q]
        ex = lambda i: f"v_exp_f32 {v(sb_+i)}, {v(sb_+i)}"
        cv = lambda e: f"v_cvt_pk_bf16_f32 {v(P[q]+e)}, {v(sb_+2*e)}, {v(sb_+2*e+1)}"
        groups = [[ex(0), ex(1), ex(2), cv(0), ex(3), ex(4)],
                  [cv(1), ex(5), ex(6), cv(2), ex(7), ex(8)],
                  [cv(3), ex(9), ex(10), cv(4), ex(11), ex(12)],
                  [cv(5), ex(13), ex(14), ex(15), cv(6), cv(7)]]
        for k in range(4):
            for ln in extra.get(("pre", k), []): A(ln)
            A(mf[k])
            for ln in extra.get(k, []): A(ln)
            for ln in groups[k]: A(ln)

    for i in range(4):
        b = i & 1
        if i == 3:
            pre_k = [f"v_add_u32 {v(vKa)}, {s(sSlotN)}, {v(vKa0)}", f"v_add_u32 {v(vKb)}, {s(sSlotN)}, {v(vKb0)}"]
        else:
            pre_k = []
        if "cyc4" in variant: A(f"s_setprio {3 - (2*i) % 4}")
        if "cyct" in variant: A(f"s_setprio {3 - i}")
        if "cyc3" in variant: A(f"s_setprio {[2,0,1,2][i]}")
        A.c(f"key tile {i}: tile A exponentials")
        phase(0, [s1(1, b), s2(1, b), pv(1, 1 - b, 0), pv(1, 1 - b, 1)],
              {0: pre_k, 1: kreads(1 - b, ((i + 1) & 3) * 512), 3: vreads(b, i * 512)})
        if "cyc4" in variant: A(f"s_setprio {3 - (2*i+1) % 4}")
        if "cyc3" in variant: A(f"s_setprio {[1,2,0,1][i] if i < 3 else 0}")
        A.c(f"key tile {i}: tile B exponentials")
        phase(1, [s1(0, 1 - b), s2(0, 1 - b), pv(0, b, 0), pv(0, b, 1)],
              {("pre", 0): ["s_waitcnt lgkmcnt(4)"], ("pre", 2): ["s_waitcnt lgkmcnt(0)"]})
        if i == 1 and "nosync" not in variant:
            A.c("all waves left the previous chunk: refill its slot with chunk c+2")
            lds_wait(A, "attn", vCnt, vTmp, sT0, sTarget)
            A(f"s_cmp_ge_u32 {s(sChunk)}, 6")
            A("s_cbranch_scc1 L_attn_nodma")
            A(f"s_add_u32 {s(sT1)}, {s(sSlotN)}, {SLOT}")
            A(f"s_cmp_eq_u32 {s(sT1)}, {3*SLOT}")
            A(f"s_cselect_b32 {s(sT1)}, 0, {s(sT1)}")
            dma(sT1, True)
            A.label("L_attn_nodma")
        if i == 3:
            A(f"v_mad_u32_u24 {v(vV)}, {s(sSlotN)}, {v(vVm)}, {v(vV0)}")
    A = A0
    A(f"s_mov_b32 {s(sSlot)}, {s(sSlotN)}")
    A(f"s_add_u32 {s(sChunk)}, {s(sChunk)}, 1")
    A(f"s_cmp_lt_u32 {s(sChunk)}, 8")
    A("s_cbranch_scc1 L_attn_chunk")
    A.c("last value product of tile B")
    A(pv(1, 1, 0)); A(pv(1, 1, 1))
    stamp(A, 2)

    A.c("combine the two key parities: this wave keeps tile kh and hands the other one over through LDS")
    A.c("hand-over areas: waves 0..3 in slot 0 (chunk 6), waves 4..7 in slot 2 (chunk 5); both are dead by now")
    A(f"s_mul_i32 {s(sT0)}, {s(sKh)}, {2*SLOT}")
    A(f"s_mul_i32 {s(sT2)}, {s(sG)}, 3072")
    A(f"s_add_u32 {s(sT2)}, {s(sT2)}, {lds_kv}")
    A(f"s_add_u32 {s(sT0)}, {s(sT0)}, {s(sT2)}")
    A(f"v_add_u32 {v(T)}, {s(sT0)}, {v(vDma)}")
    A(f"s_xor_b32 {s(sT1)}, {s(sKh)}, 1")
    A(f"s_mul_i32 {s(sT1)}, {s(sT1)}, {2*SLOT}")
    A(f"s_add_u32 {s(sT1)}, {s(sT1)}, {s(sT2)}")
    A(f"v_add_u32 {v(T+1)}, {s(sT1)}, {v(vDma)}")
    A(f"s_cmp_eq_u32 {s(sKh)}, 0")
    A("s_nop 4")
    A("s_cbranch_scc1 L_attn_give_b")
    for k in range(3): A(f"ds_write_b128 {v(T)}, {v(O[0]+4*k,4)} offset:{1024*k}")
    for r in range(12): A(f"v_mov_b32 {v(O[0]+r)}, {v(O[1]+r)}")
    A(f"s_add_u32 {s(sTile)}, {s(sTile)}, 1")
    A("s_branch L_attn_given")
    A.label("L_attn_give_b")
    for k in range(3): A(f"ds_write_b128 {v(T)}, {v(O[1]+4*k,4)} offset:{1024*k}")
    A.label("L_attn_given")
    A("s_waitcnt lgkmcnt(0)")
    lds_arrive(A, vCnt, vOne)
    A(f"s_add_u32 {s(sTarget)}, {s(sTarget)}, 8")
    lds_wait(A, "attnx", vCnt, vTmp, sT0, sTarget)
    for k in range(3): A(f"ds_read_b128 {v(SB[0]+4*k,4)}, {v(T+1)} offset:{1024*k}")
    A("s_waitcnt lgkmcnt(0)")
    Of = O[0]
    for r in range(12): A(f"v_add_f32 {v(Of+r)}, {v(Of+r)}, {v(SB[0]+r)}")
    A.c("normalise by the row sum (row 20 of the accumulator, held by the upper half in register 8)")
    A(f"v_mov_b32 {v(T)}, {v(Of+8)}")
    A(f"v_mov_b32 {v(T+1)}, {v(Of+8)}")
    A("s_nop 1")
    A(f"v_permlane32_swap_b32 {v(T)}, {v(T+1)}")
    A("s_nop 0")
    A(f"v_rcp_f32 {v(T)}, {v(T+1)}")
    A("s_nop 0")
    for r in range(12): A(f"v_mul_f32 {v(Of+r)}, {v(Of+r)}, {v(T)}")
    PP = P[0]
    for e in range(6): A(f"v_cvt_pk_bf16_f32 {v(PP+e)}, {v(Of+2*e)}, {v(Of+2*e+1)}")
    A(f"s_mul_i32 {s(sT1)}, {s(sTile)}, 40")
    A(f"s_add_u32 {s(sT0)}, {s(sT1)}, {s(sHead)}")
    A(f"s_lshl_b32 {s(sT0)}, {s(sT0)}, 10")
    A(f"s_add_u32 {s(sT0)}, {s(sT0)}, {WS_O}")
    sc = " sc1" if on_stored else ""
    A(f"buffer_store_dwordx4 {v(PP,4)}, {v(vDma)}, {s(sWS,4)}, {s(sT0)} offen{sc}")
    A.c("leftover four dims: step 32 + head/4, unit head&3")
    A(f"s_lshr_b32 {s(sT0)}, {s(sHead)}, 2")
    A(f"s_add_u32 {s(sT0)}, {s(sT0)}, {s(sT1)}")
    A(f"s_add_u32 {s(sT0)}, {s(sT0)}, 32")
    A(f"s_lshl_b32 {s(sT0)}, {s(sT0)}, 10")
    A(f"s_bfe_u32 {s(sT1)}, {s(sHead)}, 0x10001")
    A(f"s_lshl_b32 {s(sT1)}, {s(sT1)}, 9")
    A(f"s_add_u32 {s(sT0)}, {s(sT0)}, {s(sT1)}")
    A(f"s_and_b32 {s(sT1)}, {s(sHead)}, 1")
    A(f"s_lshl_b32 {s(sT1)}, {s(sT1)}, 3")
    A(f"s_add_u32 {s(sT0)}, {s(sT0)}, {s(sT1)}")
    A(f"s_add_u32 {s(sT0)}, {s(sT0)}, {WS_O}")
    A(f"v_lshlrev_b32 {v(T)}, 4, {v(vT)}")
    A("s_mov_b32 exec_hi, 0")
    A(f"buffer_store_dwordx2 {v(PP+4,2)}, {v(T)}, {s(sWS,4)}, {s(sT0)} offen{sc}")
    A("s_mov_b64 exec, -1")
    if on_stored: on_stored(A)

NAME = "attn_kernel"
def gen(A, variant=""):
    sWS, sWave, sHead, sQb, sT0 = 16, 20, 21, 22, 23
    LDS_CNT = KV_BYTES
    kernel_header(A, NAME)
    A("s_cmp_ge_u32 s2, 256")
    A("s_cbranch_scc1 L_attn_end")
    A(f"s_load_dwordx2 s[28:29], s[0:1], {K_WS}")
    A("v_lshrrev_b32 v1, 6, v0")
    A("v_and_b32 v2, 63, v0")
    A(f"v_readfirstlane_b32 {s(sWave)}, v1")
    A(f"s_and_b32 {s(sT0)}, s2, 7")
    A(f"s_lshr_b32 {s(sQb)}, s2, 3")
    A(f"s_lshr_b32 {s(sHead)}, {s(sQb)}, 3")
    A(f"s_lshl_b32 {s(sT0)}, {s(sT0)}, 2")
    A(f"s_add_u32 {s(sHead)}, {s(sHead)}, {s(sT0)}")
    A(f"s_and_b32 {s(sQb)}, {s(sQb)}, 7")
    A(f"v_mov_b32 v3, {LDS_CNT}")
    A(f"v_mov_b32 v4, 0")
    A("ds_write_b32 v3, v4")
    A("s_waitcnt lgkmcnt(0)")
    srd(A, sWS, 28, WS_SIZE)
    stamp(A, 0)
    if common.STAMPS:
        A(f"s_lshl_b32 s27, s2, 3")
        A(f"s_add_u32 s27, s27, {s(sWave)}")
    A("s_barrier")
    if 'prio' in variant:
        A(f's_cmp_lt_u32 {s(sWave)}, 4')
        A('s_cbranch_scc1 L_attn_noprio')
        A('s_setprio 1')
        A.label('L_attn_noprio')
    role(A, sWS, sWave, sHead, sQb, 0, LDS_CNT, 2, variant=variant)
    stamp(A, 3)
    stamp_flush(A, 4, 27, sWS, 144)
    A.label("L_attn_end")
    A("s_endpgm")
    return NAME, 512, 90112, descriptor(NAME, 152)
```

```python
from asm import *

S, D, H, DH, F = 2048, 640, 32, 20, 1536
WS_QKV = 0
QKV_HEAD = S * 48
PLANE = S * 8
WS_XN = 0x00A00000
WS_H = 0x00D00000
WS_O = 0x01400000
WS_OR = 0x01600000
WS_FLAG = 0x01700000
WS_SIZE = 0x01900000
LOG2E = 1.4426950408889634
QSCALE = (DH ** -0.5) * LOG2E

K_X, K_WQKV, K_WO, K_BX, K_WG, K_WU, K_WD, K_OUT, K_DBG, K_WS = [8 * i for i in range(10)]

def f32bits(x):
    import struct
    return struct.unpack("<I", struct.pack("<f", x))[0]

def srd(A, d, base, nbytes):
    A(f"s_mov_b32 {s(d)}, {s(base)}")
    A(f"s_and_b32 {s(d+1)}, {s(base+1)}, 0xffff")
    A(f"s_mov_b32 {s(d+2)}, {nbytes}")
    A(f"s_mov_b32 {s(d+3)}, 0x00020000")

def code_prefetch(A, tag, start_label, nkb, sp, vt, vd, lane_reg):
    A(f"s_getpc_b64 {s(sp,2)}")
    A.label(f"L_pc_{tag}")
    A(f"s_add_u32 {s(sp)}, {s(sp)}, {start_label}-L_pc_{tag}")
    A(f"s_addc_u32 {s(sp+1)}, {s(sp+1)}, 0")
    A(f"v_lshlrev_b32 {v(vt)}, 4, {v(lane_reg)}")
    for i in range(nkb):
        A(f"global_load_dwordx4 {v(vd,4)}, {v(vt)}, {s(sp,2)}")
        if i + 1 < nkb:
            A(f"v_add_u32 {v(vt)}, 1024, {v(vt)}")

def kernel_header(A, name):
    A(f".globl {name}")
    A(".p2align 8")
    A(f".type {name},@function")
    A.label(name)

def descriptor(name, nvgpr, nsgpr=96, accum=None):
    accum = accum or ((nvgpr + 3) // 4 * 4)
    return f""".amdhsa_kernel {name}
  .amdhsa_next_free_vgpr {nvgpr}
  .amdhsa_next_free_sgpr {nsgpr}
  .amdhsa_accum_offset {accum}
  .amdhsa_group_segment_fixed_size 0
  .amdhsa_kernarg_size 80
  .amdhsa_user_sgpr_count 2
  .amdhsa_user_sgpr_kernarg_segment_ptr 1
  .amdhsa_system_sgpr_workgroup_id_x 1
.end_amdhsa_kernel
"""

STAMPS = False
DEBUG = False
WS_STAMP = 0x01780000
def stamp(A, idx):
    import common
    if common.STAMPS and idx == 0:
        A("s_memrealtime s[70:71]")
    if common.STAMPS:
        A(f"s_memtime {s(80+2*idx,2)}")
def rstamp(A, idx):
    import common
    if common.STAMPS:
        A(f"s_memrealtime {s(70+2*idx,2)}")
def stamp_flush(A, n, slot_sreg, sws, vtmp):
    import common
    if not common.STAMPS: return
    A("s_waitcnt lgkmcnt(0)")
    A(f"s_lshl_b32 s79, {s(slot_sreg)}, 6")
    A(f"s_add_u32 s79, s79, {WS_STAMP}")
    A(f"v_mov_b32 {v(vtmp+1)}, 0")
    for i in range(n):
        if i == 0:
            A(f"v_mov_b32 {v(vtmp)}, s80")
        else:
            A(f"s_sub_u32 s78, {s(80+2*i)}, s80")
            A(f"v_mov_b32 {v(vtmp)}, s78")
        A(f"buffer_store_dword {v(vtmp)}, {v(vtmp+1)}, {s(sws,4)}, s79 offen offset:{4*i}")
        A("s_nop 0")
    A("s_memrealtime s[72:73]")
    A("s_waitcnt lgkmcnt(0)")
    for i in range(2):
        A(f"v_mov_b32 {v(vtmp)}, {s(70+2*i)}")
        A(f"buffer_store_dword {v(vtmp)}, {v(vtmp+1)}, {s(sws,4)}, s79 offen offset:{4*(14+i)}")
        A("s_nop 0")

WS_DBG = 0x01880000
def dump_regs(A, regs, slot0, sWS, sWave, vtmp, tag):
    A(f"s_or_b32 s77, s2, {s(sWave)}")
    A(f"s_cmp_lg_u32 s77, 0")
    A(f"s_cbranch_scc1 L_dump_{tag}")
    A(f"v_and_b32 {v(vtmp)}, 63, v0")
    A(f"v_lshlrev_b32 {v(vtmp)}, 2, {v(vtmp)}")
    for i, r in enumerate(regs):
        A(f"s_mov_b32 s77, {WS_DBG + (slot0 + i) * 256}")
        A(f"buffer_store_dword {v(r)}, {v(vtmp)}, {s(sWS,4)}, s77 offen")
    A("s_waitcnt vmcnt(0)")
    A.label(f"L_dump_{tag}")
```

```python
from common import *
import common
import attn3
from attn import lds_arrive, lds_wait
from ffn import out_setup, OUT_SLOT

NAME = "main_kernel"
PITCH = 656
REG = 32 * PITCH
LDS_CNT = attn3.KV_BYTES
LDS_CNT_O = LDS_CNT + 4
LDS_CNT_G = LDS_CNT + 8
LDS_G = 65280
LDS_BYTES = LDS_G + 4 * REG
NV = 168

def global_wait(A, tag, sWS, sOff, target, vT, sTmp, sSpin):
    A(f"s_mov_b32 {s(sSpin)}, 0x8000")
    A(f"v_mov_b32 {v(vT+1)}, 0")
    A.label(f"L_gw_{tag}")
    A(f"buffer_load_dword {v(vT)}, {v(vT+1)}, {s(sWS,4)}, {s(sOff)} offen sc1")
    A("s_waitcnt vmcnt(0)")
    A(f"v_readfirstlane_b32 {s(sTmp)}, {v(vT)}")
    A(f"s_sub_u32 {s(sSpin)}, {s(sSpin)}, 1")
    A(f"s_cbranch_scc1 L_gg_{tag}")
    A(f"s_cmp_ge_u32 {s(sTmp)}, {target}")
    A(f"s_cbranch_scc1 L_gg_{tag}")
    A("s_sleep 2")
    A(f"s_branch L_gw_{tag}")
    A.label(f"L_gg_{tag}")

def gen(A, variant="", prefetch=None):
    sWS, sWD, sWO, sXd, sOut = 8, 12, 16, 32, 36
    sWave, sHead, sQb, sT0, sT1 = 20, 21, 22, 23, 24
    kernel_header(A, NAME)
    A("s_cmp_ge_u32 s2, 256")
    A("s_cbranch_scc1 L_main_end")
    A(f"s_load_dwordx2 s[28:29], s[0:1], {K_WS}")
    A(f"s_load_dwordx2 s[4:5], s[0:1], {K_WD}")
    A(f"s_load_dwordx2 s[6:7], s[0:1], {K_WO}")
    A(f"s_load_dwordx2 s[30:31], s[0:1], {K_X}")
    A(f"s_load_dwordx2 s[26:27], s[0:1], {K_OUT}")
    A("v_lshrrev_b32 v1, 6, v0")
    A("v_and_b32 v2, 63, v0")
    A(f"v_readfirstlane_b32 {s(sWave)}, v1")
    A(f"v_mov_b32 v3, {LDS_CNT}")
    A(f"v_mov_b32 v4, 0")
    A(f"v_mov_b32 v5, 0")
    A(f"v_mov_b32 v6, 0")
    A(f"v_mov_b32 v7, 0")
    A("ds_write_b128 v3, v[4:7]")
    A("s_waitcnt lgkmcnt(0)")
    srd(A, sWS, 28, WS_SIZE)
    stamp(A, 0)
    if common.STAMPS:
        A(f"s_mul_i32 s69, s2, 12")
        A(f"s_add_u32 s69, s69, {s(sWave)}")
    A("s_barrier")
    A(f"s_cmp_ge_u32 {s(sWave)}, 8")
    A("s_cbranch_scc1 L_main_gemm")

    A(f"s_and_b32 {s(sT0)}, s2, 7")
    A(f"s_lshr_b32 {s(sQb)}, s2, 3")
    A(f"s_lshr_b32 {s(sHead)}, {s(sQb)}, 3")
    A(f"s_lshl_b32 {s(sT0)}, {s(sT0)}, 2")
    A(f"s_add_u32 {s(sHead)}, {s(sHead)}, {s(sT0)}")
    A(f"s_and_b32 {s(sQb)}, {s(sQb)}, 7")
    def signal(A):
        A.c("every wave drains its stores and counts itself in LDS; the last one raises the device-scope counter of the query block")
        A("s_waitcnt vmcnt(0)")
        A(f"v_mov_b32 v3, {LDS_CNT_O}")
        A(f"v_mov_b32 v4, 1")
        A("s_mov_b64 exec, 1")
        A("ds_add_rtn_u32 v5, v3, v4")
        A("s_waitcnt lgkmcnt(0)")
        A(f"v_readfirstlane_b32 {s(sT0)}, v5")
        A(f"s_lshl_b32 {s(sT1)}, {s(sQb)}, 8")
        A(f"s_add_u32 {s(sT1)}, {s(sT1)}, {WS_FLAG}")
        A(f"s_cmp_lg_u32 {s(sT0)}, 7")
        A("s_cbranch_scc1 L_main_nosig")
        A("v_mov_b32 v3, 0")
        A(f"buffer_atomic_add v4, v3, {s(sWS,4)}, {s(sT1)} offen")
        A("s_waitcnt vmcnt(0)")
        A.label("L_main_nosig")
        A("s_mov_b64 exec, -1")
    attn3.role(A, sWS, sWave, sHead, sQb, 0, LDS_CNT, 2, on_stored=signal, variant=variant)
    stamp(A, 3)
    stamp_flush(A, 4, 69, sWS, 144)
    A("s_endpgm")

    A.label("L_main_gemm")
    if "gprio" in variant: A("s_setprio 3")
    sW, sTb, sCq, sM, sB1, sB2, sA1, sA2, sA3, sXo = 21, 22, 25, 40, 41, 42, 43, 44, 45, 46
    srd(A, sWD, 4, F * D * 2)
    srd(A, sWO, 6, D * D * 2)
    srd(A, sXd, 30, S * D * 2)
    srd(A, sOut, 26, S * D * 2)
    A(f"s_sub_u32 {s(sW)}, {s(sWave)}, 8")
    A(f"s_and_b32 {s(sT0)}, s2, 7")
    A(f"s_lshr_b32 {s(sCq)}, s2, 3")
    A(f"s_lshr_b32 {s(sTb)}, {s(sCq)}, 2")
    A(f"s_lshl_b32 {s(sT0)}, {s(sT0)}, 3")
    A(f"s_add_u32 {s(sTb)}, {s(sTb)}, {s(sT0)}")
    A(f"s_and_b32 {s(sCq)}, {s(sCq)}, 3")
    vL, vA, vLin = 2, 3, 4
    vD = [5, 6, 7, 8, 9]; vDr = [10, 11, 12, 13, 14]
    AF = lambda i: 16 + 4 * i
    OF = lambda k: (16 + 4 * k) if k < 4 else (132 + 4 * (k - 4))
    WF = lambda j: 32 + 4 * j
    ACC = lambda j: 52 + 16 * j
    T = 156
    A(f"v_lshlrev_b32 {v(vLin)}, 4, {v(vL)}")
    out_setup(A, vL, vA, vD, vDr, T)
    A(f"s_mul_i32 {s(sM)}, {s(sW)}, {REG}")
    A(f"s_add_u32 {s(sM)}, {s(sM)}, {LDS_G}")
    A(f"v_add_u32 {v(vA)}, {s(sM)}, {v(vA)}")
    A(f"s_mul_i32 {s(sXo)}, {s(sTb)}, {32*1280}")
    A(f"s_mul_i32 {s(sT1)}, {s(sCq)}, 320")
    A(f"s_add_u32 {s(sXo)}, {s(sXo)}, {s(sT1)}")
    A(f"s_mul_i32 {s(sB1)}, {s(sW)}, {24*16*1280}")
    A(f"s_add_u32 {s(sB1)}, {s(sB1)}, {s(sT1)}")
    A(f"s_mul_i32 {s(sA1)}, {s(sTb)}, 96")
    A(f"s_mul_i32 {s(sT0)}, {s(sW)}, 24")
    A(f"s_add_u32 {s(sA1)}, {s(sA1)}, {s(sT0)}")
    A(f"s_lshl_b32 {s(sA1)}, {s(sA1)}, 10")
    A(f"s_add_u32 {s(sA1)}, {s(sA1)}, {WS_H}")

    def wdma(vd, desc, sbase, off, slot):
        for e in range(5):
            A(f"s_add_u32 m0, {s(sM)}, {slot*OUT_SLOT + e*1024}")
            A(f"s_add_u32 {s(sT0)}, {s(sbase)}, {off}")
            A(f"buffer_load_dwordx4 {v(vd[e])}, {s(desc,4)}, {s(sT0)} offen lds")
    def wreads(slot, j):
        return [f"ds_read_b64_tr_b16 {v(WF(j)+2*i,2)}, {v(vA)} offset:{slot*OUT_SLOT + i*2560 + j*64}" for i in range(2)]
    mf = lambda j, b: f"v_mfma_f32_32x32x16_bf16 {v(ACC(j),16)}, {v(WF(j),4)}, {v(b,4)}, {v(ACC(j),16)}"

    sBh, sAh, sCnt = 47, 48, 49
    A(f"s_mov_b32 {s(sBh)}, {s(sB1)}")
    A(f"s_mov_b32 {s(sAh)}, {s(sA1)}")
    def issue_h(slot):
        wdma(vD, sWD, sBh, 0, slot)
        A(f"buffer_load_dwordx4 {v(AF(slot),4)}, {v(vLin)}, {s(sWS,4)}, {s(sAh)} offen")
        A(f"s_add_u32 {s(sBh)}, {s(sBh)}, {16*1280}")
        A(f"s_add_u32 {s(sAh)}, {s(sAh)}, 1024")
    for k in range(3): issue_h(k)
    A.c("accumulators start from the residual x: wave w adds register group w of every column tile")
    for r in range(ACC(0), ACC(4) + 16): A(f"v_mov_b32 {v(r)}, 0")
    A(f"v_and_b32 {v(T)}, 31, {v(vL)}")
    A(f"v_mul_u32_u24 {v(T)}, 1280, {v(T)}")
    A(f"v_lshrrev_b32 {v(T+1)}, 5, {v(vL)}")
    A(f"v_lshl_add_u32 {v(T)}, {v(T+1)}, 3, {v(T)}")
    A(f"s_lshl_b32 {s(sT1)}, {s(sW)}, 4")
    A(f"s_add_u32 {s(sT1)}, {s(sT1)}, {s(sXo)}")
    XR = 132
    for j in range(5):
        A(f"buffer_load_dwordx2 {v(XR+2*j,2)}, {v(T)}, {s(sXd,4)}, {s(sT1)} offen offset:{64*j}")
    A("s_waitcnt vmcnt(0)")
    for w in range(4):
        if w < 3:
            A(f"s_cmp_lg_u32 {s(sW)}, {w}")
            A(f"s_cbranch_scc1 L_main_res{w}")
        for j in range(5):
            for e in range(2):
                A(f"v_lshlrev_b32 {v(ACC(j)+4*w+2*e)}, 16, {v(XR+2*j+e)}")
                A(f"v_and_b32 {v(ACC(j)+4*w+2*e+1)}, 0xffff0000, {v(XR+2*j+e)}")
        if w < 3:
            A("s_branch L_main_resdone")
            A.label(f"L_main_res{w}")
    A.label("L_main_resdone")
    for j in range(5):
        for ln in wreads(0, j): A(ln)
    A(f"s_mov_b32 {s(sCnt)}, 6")
    A.label("L_main_hloop")
    for k in range(4):
        A.c("step k+1 must have landed before its fragments are read; two younger steps may be in flight")
        A("s_waitcnt vmcnt(6)")
        for j in range(5):
            A("s_waitcnt lgkmcnt(8)")
            A(mf(j, AF(k)))
            for ln in wreads((k + 1) & 3, j): A(ln)
        issue_h((k + 3) & 3)
    A(f"s_sub_u32 {s(sCnt)}, {s(sCnt)}, 1")
    A(f"s_cmp_lg_u32 {s(sCnt)}, 0")
    A("s_cbranch_scc1 L_main_hloop")
    stamp(A, 1)

    A("s_waitcnt vmcnt(0) lgkmcnt(0)")
    A(f"s_mul_i32 {s(sT1)}, {s(sCq)}, 320")
    A(f"s_mul_i32 {s(sB1)}, {s(sW)}, {8*20*1280}")
    A(f"s_add_u32 {s(sB1)}, {s(sB1)}, {s(sT1)}")
    A(f"s_add_u32 {s(sB2)}, {s(sB1)}, {16*1280}")
    A(f"s_mul_i32 {s(sA1)}, {s(sTb)}, 40")
    A(f"s_lshl_b32 {s(sT0)}, {s(sW)}, 3")
    A(f"s_add_u32 {s(sT0)}, {s(sT0)}, {s(sA1)}")
    A(f"s_lshl_b32 {s(sT0)}, {s(sT0)}, 10")
    A(f"s_add_u32 {s(sA2)}, {s(sT0)}, {WS_O}")
    A(f"s_lshl_b32 {s(sT0)}, {s(sW)}, 1")
    A(f"s_add_u32 {s(sT0)}, {s(sT0)}, {s(sA1)}")
    A(f"s_add_u32 {s(sT0)}, {s(sT0)}, 32")
    A(f"s_lshl_b32 {s(sT0)}, {s(sT0)}, 10")
    A(f"s_add_u32 {s(sA3)}, {s(sT0)}, {WS_O}")
    osteps = [(vD, sB1, k * 20 * 1280, sA2, k * 1024) for k in range(8)] + [(vDr, sB2, k * 80 * 1280, sA3, k * 1024) for k in range(2)]
    for k in range(4): wdma(osteps[k][0], sWO, osteps[k][1], osteps[k][2], k)
    A.c("touch the remaining Wo rows of this wave so that they are L2 hits later")
    for k in range(4, 10):
        for e in range(5):
            A(f"s_add_u32 {s(sT0)}, {s(osteps[k][1])}, {osteps[k][2]}")
            A(f"buffer_load_dwordx4 {v(132,4)}, {v(osteps[k][0][e])}, {s(sWO,4)}, {s(sT0)} offen")
    A("s_waitcnt vmcnt(0)")
    for j in range(5):
        for ln in wreads(0, j): A(ln)
    A(f"s_lshr_b32 {s(sT1)}, {s(sTb)}, 3")
    A(f"s_lshl_b32 {s(sT1)}, {s(sT1)}, 8")
    A(f"s_add_u32 {s(sT1)}, {s(sT1)}, {WS_FLAG}")
    global_wait(A, "o", sWS, sT1, 32, T, 50, 78)
    stamp(A, 2)
    for k in range(10):
        A(f"s_add_u32 {s(sT0)}, {s(osteps[k][3])}, {osteps[k][4]}")
        A(f"buffer_load_dwordx4 {v(OF(k),4)}, {v(vLin)}, {s(sWS,4)}, {s(sT0)} offen sc1")
    waits = [9, 13, 17, 10, 10, 10, 10, 5, 0, None]
    for k in range(10):
        if waits[k] is not None: A(f"s_waitcnt vmcnt({waits[k]})")
        for j in range(5):
            A(f"s_waitcnt lgkmcnt({8 if k < 9 else 2*(4-j)})")
            A(mf(j, OF(k)))
            if k < 9:
                for ln in wreads((k + 1) & 3, j): A(ln)
        if k + 4 < 10:
            wdma(osteps[k+4][0], sWO, osteps[k+4][1], osteps[k+4][2], k & 3)
    stamp(A, 3)
    A(f"v_and_b32 {v(T)}, 31, {v(vL)}")
    A(f"v_mul_u32_u24 {v(T)}, {PITCH}, {v(T)}")
    A(f"v_lshrrev_b32 {v(T+1)}, 5, {v(vL)}")
    A(f"v_lshl_add_u32 {v(T)}, {v(T+1)}, 4, {v(T)}")
    A(f"v_add_u32 {v(T)}, {s(sM)}, {v(T)}")
    A(f"v_mov_b32 {v(T+2)}, {LDS_CNT_G}")
    A(f"v_mov_b32 {v(T+3)}, 1")
    vTid = T + 4
    A(f"v_subrev_u32 {v(vTid)}, 512, v0")
    vXo = [T + 5, T + 6, T + 7]; vRo = [T + 8, T + 9, T + 10]
    for i in range(3):
        A(f"v_add_u32 v16, {256*i}, {v(vTid)}")
        A(f"v_mul_u32_u24 v17, 52429, v16")
        A(f"v_lshrrev_b32 v17, 20, v17")
        A(f"v_mul_u32_u24 v18, 20, v17")
        A(f"v_sub_u32 v18, v16, v18")
        A(f"v_mul_u32_u24 v19, 1280, v17")
        A(f"v_lshl_add_u32 {v(vXo[i])}, v18, 4, v19")
        A(f"v_mul_u32_u24 v19, {PITCH}, v17")
        A(f"v_lshl_add_u32 v19, v18, 5, v19")
        A(f"v_add_u32 {v(vRo[i])}, {LDS_G}, v19")
    for j in range(5):
        for g in range(4):
            A(f"ds_write_b128 {v(T)}, {v(ACC(j)+4*g,4)} offset:{j*128 + g*32}")
    A("s_waitcnt lgkmcnt(0)")
    lds_arrive(A, T + 2, T + 3)
    A(f"s_mov_b32 {s(sT1)}, 4")
    lds_wait(A, "gred", T + 2, T + 11, sT0, sT1)
    P0 = 16
    for i in range(3):
        if i == 2:
            A(f"v_cmp_gt_u32 vcc, 128, {v(vTid)}")
            A("s_nop 0")
            A("s_and_saveexec_b64 s[50:51], vcc")
            A("s_cbranch_execz L_main_gdone")
        for w in range(4):
            for hh in range(2):
                A(f"ds_read_b128 {v(P0+8*w+4*hh,4)}, {v(vRo[i])} offset:{w*REG + 16*hh}")
        A("s_waitcnt lgkmcnt(0)")
        for e in range(8):
            A(f"v_add_f32 {v(P0+e)}, {v(P0+e)}, {v(P0+8+e)}")
            A(f"v_add_f32 {v(P0+16+e)}, {v(P0+16+e)}, {v(P0+24+e)}")
        for e in range(8):
            A(f"v_add_f32 {v(P0+e)}, {v(P0+e)}, {v(P0+16+e)}")
        for e in range(4):
            A(f"v_cvt_pk_bf16_f32 {v(P0+32+e)}, {v(P0+2*e)}, {v(P0+2*e+1)}")
        A(f"buffer_store_dwordx4 {v(P0+32,4)}, {v(vXo[i])}, {s(sOut,4)}, {s(sXo)} offen")
        A("s_nop 1")
    A.label("L_main_gdone")
    A("s_mov_b64 exec, -1")
    stamp(A, 4)
    stamp_flush(A, 5, 69, sWS, 16)
    A.label("L_main_end")
    A("s_endpgm")
    return NAME, 768, LDS_BYTES, descriptor(NAME, NV)

def zero_flags(A, sWS, sLw, sRb, sCt, vL):
    A(f"s_or_b32 s31, s2, {s(sLw)}")
    A("s_cmp_lg_u32 s31, 0")
    A("s_cbranch_scc1 L_k1_noflag")
    A(f"v_lshlrev_b32 v10, 8, {v(vL)}")
    A("v_mov_b32 v11, 0")
    A(f"s_mov_b32 s31, {WS_FLAG}")
    A(f"buffer_store_dword v11, v10, {s(sWS,4)}, s31 offen")
    A.label("L_k1_noflag")
```

```python
from common import *
import common

NAME = "proj_kernel"
XS, WSZ = 16384, 20480
NXS, NWS = 3, 5
LDS_X = 0
LDS_W = NXS * XS
LDS_STATS = LDS_W + NWS * WSZ
LDS_CS = LDS_STATS + 1024
LDS_BYTES = LDS_CS + 1280
NV = 256
IMG = {0: dict(q=(0, 128, 1), g=(4096, 256, 2), u=(12288, 256, 2)),
       1: dict(q=(0, 384, 3), g=(12288, 128, 1), u=(16384, 128, 1))}
SLOTS = {0: [("q", 0, 1), ("g", 0, 2), ("u", 0, 2), ("g", 1, 2), ("u", 1, 2)],
         1: [("q", 0, 3), ("q", 1, 3), ("q", 2, 3), ("g", 0, 1), ("u", 0, 1)]}

def frag_addrs(A, typ, dst, vL, sCol, vT, extra_rows_s=None):
    vR, vRow, vIn, vB = vT, vT + 1, vT + 2, vT + 3
    A(f"v_bfe_u32 {v(vR)}, {v(vL)}, 2, 2")
    A(f"v_lshrrev_b32 {v(vRow)}, 5, {v(vL)}")
    A(f"v_lshl_add_u32 {v(vRow)}, {v(vRow)}, 3, {v(vR)}")
    if extra_rows_s is not None: A(f"v_add_u32 {v(vRow)}, {s(extra_rows_s)}, {v(vRow)}")
    A(f"v_bfe_u32 {v(vIn)}, {v(vL)}, 4, 1")
    A(f"v_lshlrev_b32 {v(vIn)}, 5, {v(vIn)}")
    A(f"v_and_b32 {v(vB)}, 3, {v(vL)}")
    A(f"v_lshl_add_u32 {v(vIn)}, {v(vB)}, 3, {v(vIn)}")
    for j, (kind, b0, step) in enumerate(SLOTS[typ]):
        off, pitch, n = IMG[typ][kind]
        A(f"s_mul_i32 s64, {s(sCol)}, {step}")
        A(f"s_add_u32 s64, s64, {b0}")
        if n == 2:
            A(f"v_xor_b32 {v(vB)}, s64, {v(vR)}")
        else:
            A(f"v_lshrrev_b32 {v(vB)}, 1, {v(vR)}")
            A(f"v_xor_b32 {v(vB)}, s64, {v(vB)}")
        A(f"v_lshl_add_u32 {v(vB)}, {v(vB)}, 6, {v(vIn)}")
        A(f"v_mul_u32_u24 {v(dst[j])}, {pitch}, {v(vRow)}")
        A(f"v_add_u32 {v(dst[j])}, {v(dst[j])}, {v(vB)}")
        A(f"v_add_u32 {v(dst[j])}, {LDS_W + off}, {v(dst[j])}")

def gen(A, prefetch=None, variant="", extra_tail=None):
    sX, sW, sG, sU, sWS = 8, 12, 16, 20, 24
    sWave, sRb, sCt, sT0, sT1, sT2, sT3, sI = 28, 29, 30, 31, 32, 33, 34, 35
    kernel_header(A, NAME)
    A("s_cmp_ge_u32 s2, 256")
    A("s_cbranch_scc1 L_k1_end")
    A(f"s_load_dwordx4 s[4:7], s[0:1], {K_X}")
    A(f"s_load_dwordx4 s[36:39], s[0:1], {K_WG}")
    A(f"s_load_dwordx2 s[40:41], s[0:1], {K_WS}")
    A("v_lshrrev_b32 v1, 6, v0")
    A("v_and_b32 v2, 63, v0")
    A(f"v_readfirstlane_b32 {s(sWave)}, v1")
    A.c("workgroup -> (row block, column tile): each XCD covers 8 row blocks x 4 column tiles")
    A(f"s_and_b32 {s(sT0)}, s2, 7")
    A(f"s_lshr_b32 {s(sT1)}, s2, 3")
    A(f"s_and_b32 {s(sRb)}, {s(sT0)}, 1")
    A(f"s_lshl_b32 {s(sRb)}, {s(sRb)}, 3")
    A(f"s_and_b32 {s(sT2)}, {s(sT1)}, 7")
    A(f"s_add_u32 {s(sRb)}, {s(sRb)}, {s(sT2)}")
    A(f"s_lshr_b32 {s(sCt)}, {s(sT0)}, 1")
    A(f"s_lshl_b32 {s(sCt)}, {s(sCt)}, 2")
    A(f"s_lshr_b32 {s(sT2)}, {s(sT1)}, 3")
    A(f"s_add_u32 {s(sCt)}, {s(sCt)}, {s(sT2)}")
    A(f"s_and_b32 {s(sI)}, {s(sCt)}, 7")
    A("s_waitcnt lgkmcnt(0)")
    srd(A, sX, 4, S * D * 2)
    srd(A, sW, 6, D * 3 * D * 2)
    srd(A, sG, 36, D * F * 2)
    srd(A, sU, 38, D * F * 2)
    srd(A, sWS, 40, WS_SIZE)
    vL = 2
    stamp(A, 0)
    if common.STAMPS:
        A(f"s_lshl_b32 s69, s2, 3")
        A(f"s_add_u32 s69, s69, {s(sWave)}")
    A(f"s_cmp_ge_u32 {s(sWave)}, 4")
    A("s_cbranch_scc1 L_k1_loader")

    vT, vHf = 3, 4
    vXa = [[5 + 4 * sg + k for k in range(4)] for sg in range(2)]
    vWa = [13, 14, 15, 16, 17]
    vSum, vSq = [18, 19], [20, 21]
    vU = [22, 23, 24, 25]
    vTmp = 26
    FX = lambda p, sg: 32 + 28 * p + 4 * sg
    FW = lambda p, j: 32 + 28 * p + 8 + 4 * j
    ACC = lambda j, sg: 96 + 32 * j + 16 * sg
    sWm, sWn, sTT0, sTT1 = 42, 43, 44, 45
    A(f"s_lshr_b32 {s(sWm)}, {s(sWave)}, 1")
    A(f"s_and_b32 {s(sWn)}, {s(sWave)}, 1")
    A(f"s_lshl_b32 {s(sT0)}, {s(sWm)}, 1")
    A(f"s_add_u32 {s(sTT0)}, {s(sT0)}, {s(sWn)}")
    A(f"s_xor_b32 {s(sTT1)}, {s(sTT0)}, 1")
    A(f"v_and_b32 {v(vT)}, 31, {v(vL)}")
    A(f"v_lshrrev_b32 {v(vHf)}, 5, {v(vL)}")
    A.c("x fragment addresses: t*128 + 16*((2s+h) ^ ((t>>1)&7)) + tile*4096")
    A(f"v_bfe_u32 {v(vTmp)}, {v(vT)}, 1, 3")
    A(f"v_xor_b32 {v(vTmp)}, {v(vTmp)}, {v(vHf)}")
    A(f"v_lshlrev_b32 {v(vTmp)}, 4, {v(vTmp)}")
    A(f"v_lshl_add_u32 {v(vTmp)}, {v(vT)}, 7, {v(vTmp)}")
    for sg, st in ((0, sTT0), (1, sTT1)):
        A(f"s_lshl_b32 {s(sT0)}, {s(st)}, 12")
        A(f"v_add_u32 {v(vXa[sg][0])}, {s(sT0)}, {v(vTmp)}")
        for k in range(1, 4):
            A(f"v_xor_b32 {v(vXa[sg][k])}, {32*k}, {v(vXa[sg][0])}")
    for r in vSum + vSq: A(f"v_mov_b32 {v(r)}, 0")
    if "sdot" in variant: A(f"v_mov_b32 {v(vU[0])}, 0x3f803f80")
    for r in range(96, 256): A(f"v_mov_b32 {v(r)}, 0")

    def mainloop(typ):
        pitch = [IMG[typ][k][1] for (k, _, _) in SLOTS[typ]]
        tag = f"L_k1_loop{typ}"
        sXs, sWsl, sCnt, sDw, sDx = 50, 51, 52, 53, 63
        frag_addrs(A, typ, vWa, vL, sWn, vTmp)
        if prefetch: prefetch(A, f"k1_{typ}", tag, typ)
        def reads(p, sub):
            out = [f"ds_read_b128 {v(FX(p,sg),4)}, {v(vXa[sg][sub])}" for sg in range(2)]
            for j in range(5):
                for i in range(2):
                    out.append(f"ds_read_b64_tr_b16 {v(FW(p,j)+2*i,2)}, {v(vWa[j])} offset:{(16*(sub&1)+4*i)*pitch[j]}")
            return out
        if "prio" in variant: A("s_setprio 2")
        A("s_barrier")
        stamp(A, 2)
        for ln in reads(0, 0): A(ln)
        A(f"s_mov_b32 {s(sXs)}, 0")
        A(f"s_mov_b32 {s(sWsl)}, 0")
        A(f"s_mov_b32 {s(sCnt)}, 10")
        A(".p2align 3")
        A.label(tag)
        if "trips" in variant:
            A("s_memtime s[66:67]")
            A("s_waitcnt lgkmcnt(0)")
            A("s_sub_u32 s66, s66, s80")
            A("v_mov_b32 v26, s66")
            A(f"s_lshl_b32 s67, s69, 6")
            A(f"s_sub_u32 s66, 10, {s(sCnt)}")
            A("s_lshl_b32 s66, s66, 2")
            A("s_add_u32 s67, s67, s66")
            A(f"s_add_u32 s67, s67, {WS_STAMP + 0x40000}")
            A("v_mov_b32 v27, 0")
            A(f"buffer_store_dword v26, v27, {s(sWS,4)}, s67 offen")
        for n in range(4):
            p = n & 1; nn = (n + 1) & 3
            if n & 1: A("s_barrier")
            mf = lambda j, sg: f"v_mfma_f32_32x32x16_bf16 {v(ACC(j,sg),16)}, {v(FW(p,j),4)}, {v(FX(p,sg),4)}, {v(ACC(j,sg),16)}"
            st = []
            for k in range(4):
                r = FX(p, 0) + k; lo, hi = vU[2 * (k & 1)], vU[2 * (k & 1) + 1]
                st += [f"v_lshlrev_b32 {v(lo)}, 16, {v(r)}", f"v_and_b32 {v(hi)}, 0xffff0000, {v(r)}",
                       f"v_add_f32 {v(vSum[0])}, {v(vSum[0])}, {v(lo)}", f"v_add_f32 {v(vSum[1])}, {v(vSum[1])}, {v(hi)}",
                       f"v_fmac_f32 {v(vSq[0])}, {v(lo)}, {v(lo)}", f"v_fmac_f32 {v(vSq[1])}, {v(hi)}, {v(hi)}"]
            if "sdot" in variant:
                st = []
                for k in range(4):
                    st += [f"v_dot2c_f32_bf16 {v(vSum[0])}, {v(FX(p,0)+k)}, {v(vU[0])}", f"v_dot2c_f32_bf16 {v(vSq[0])}, {v(FX(p,0)+k)}, {v(FX(p,0)+k)}"]
            rd = reads(1 - p, nn)
            gap = {m: [] for m in range(10)}
            updx = lambda k: [f"v_add_u32 {v(vXa[sg][k])}, {s(sDx)}, {v(vXa[sg][k])}" for sg in range(2)]
            updw = lambda j: [f"v_add_u32 {v(vWa[j])}, {s(sDw)}, {v(vWa[j])}"]
            if n == 3: gap[0] += updx(0)
            gap[0] += rd[0:2]
            for j in range(5):
                m = 1 + 2 * j
                if n & 1: gap[m] += updw(j)
                gap[m] += rd[2 + 2 * j: 4 + 2 * j]
            tail = []
            if n == 3:
                for k in range(1, 4): tail += updx(k)
            if n & 1 == 0:
                tail += [f"s_add_u32 {s(sT0)}, {s(sWsl)}, {WSZ}", f"s_cmp_eq_u32 {s(sT0)}, {NWS*WSZ}", f"s_cselect_b32 {s(sT0)}, 0, {s(sT0)}",
                         f"s_sub_u32 {s(sDw)}, {s(sT0)}, {s(sWsl)}", f"s_mov_b32 {s(sWsl)}, {s(sT0)}"]
                if n == 2:
                    tail += [f"s_add_u32 {s(sT0)}, {s(sXs)}, {XS}", f"s_cmp_eq_u32 {s(sT0)}, {NXS*XS}", f"s_cselect_b32 {s(sT0)}, 0, {s(sT0)}",
                             f"s_sub_u32 {s(sDx)}, {s(sT0)}, {s(sXs)}", f"s_mov_b32 {s(sXs)}, {s(sT0)}"]
            fill = st + tail
            quota = {m: 0 for m in range(10)}
            room = {m: max(0, 5 - len(gap[m])) for m in range(10)}
            left = len(fill)
            while left:
                progressed = False
                for m in range(10):
                    if left and quota[m] < room[m]:
                        quota[m] += 1; left -= 1; progressed = True
                if not progressed:
                    for m in range(10):
                        if left: quota[m] += 1; left -= 1
            fi = 0
            for m, (j, sg) in enumerate([(j, sg) for j in range(5) for sg in range(2)]):
                if sg == 0: A(f"s_waitcnt lgkmcnt({8 if j == 0 else 10})")
                A(mf(j, sg))
                for ln in gap[m]: A(ln)
                for ln in fill[fi:fi + quota[m]]: A(ln)
                fi += quota[m]
        A(f"s_sub_u32 {s(sCnt)}, {s(sCnt)}, 1")
        A(f"s_cmp_lg_u32 {s(sCnt)}, 0")
        A(f"s_cbranch_scc1 {tag}")

    A(f"s_cmp_ge_u32 {s(sCt)}, 8")
    A("s_cbranch_scc1 L_k1_main1")
    mainloop(0)
    A("s_branch L_k1_post")
    A.label("L_k1_main1")
    mainloop(1)
    A.label("L_k1_post")
    stamp(A, 3)

    t0, t1 = vTmp, vTmp + 1
    A("s_waitcnt vmcnt(0) lgkmcnt(0)")
    A("s_nop 2")
    A(f"v_add_f32 {v(vSum[0])}, {v(vSum[0])}, {v(vSum[1])}")
    A(f"v_add_f32 {v(vSq[0])}, {v(vSq[0])}, {v(vSq[1])}")
    A(f"s_lshl_b32 {s(sT0)}, {s(sTT0)}, 8")
    A(f"s_add_u32 {s(sT0)}, {s(sT0)}, {LDS_STATS}")
    A(f"v_mov_b32 v32, {v(vSum[0])}")
    A(f"v_mov_b32 v33, {v(vSq[0])}")
    A(f"v_lshl_add_u32 {v(t0)}, {v(vT)}, 3, {s(sT0)}")
    A("s_nop 0")
    A(f"v_permlane32_swap_b32 {v(vSum[0])}, v32")
    A(f"v_permlane32_swap_b32 {v(vSq[0])}, v33")
    A("s_nop 0")
    A(f"v_add_f32 {v(vSum[0])}, {v(vSum[0])}, v32")
    A(f"v_add_f32 {v(vSq[0])}, {v(vSq[0])}, v33")
    vMu, vRs = 40, 41
    A(f"v_mul_f32 {v(vMu)}, {f32bits(1.0/D):#x}, {v(vSum[0])}")
    A(f"v_mul_f32 {v(t1)}, {f32bits(1.0/D):#x}, {v(vSq[0])}")
    A(f"v_fma_f32 {v(t1)}, -{v(vMu)}, {v(vMu)}, {v(t1)}")
    A(f"v_max_f32 {v(t1)}, 0, {v(t1)}")
    A(f"v_add_f32 {v(t1)}, {f32bits(1e-5):#x}, {v(t1)}")
    A(f"v_rsq_f32 {v(vRs)}, {v(t1)}")
    A("s_nop 0")
    A(f"ds_write_b64 {v(t0)}, {v(vMu,2)}")
    A("s_waitcnt lgkmcnt(0)")
    A("s_barrier")
    stamp(A, 4)
    ST = [6, 8]
    for sg, st in ((0, sTT0), (1, sTT1)):
        A(f"s_lshl_b32 {s(sT0)}, {s(st)}, 8")
        A(f"s_add_u32 {s(sT0)}, {s(sT0)}, {LDS_STATS}")
        A(f"v_lshl_add_u32 {v(t0)}, {v(vT)}, 3, {s(sT0)}")
        A(f"ds_read_b64 {v(ST[sg],2)}, {v(t0)}")
    vCsA = 5
    A(f"s_mul_i32 {s(sT0)}, {s(sWn)}, 640")
    A(f"s_add_u32 {s(sT0)}, {s(sT0)}, {LDS_CS}")
    A(f"v_lshl_add_u32 {v(vCsA)}, {v(vHf)}, 4, {s(sT0)}")
    NMU = [10, 12]; RF = [14, 16]; TM = 18; PK = 26
    CS = lambda u, g: 32 + 16 * u + 4 * g
    def load_cs(j, u):
        for g in range(4): A(f"ds_read_b128 {v(CS(u,g),4)}, {v(vCsA)} offset:{128*j + 32*g}")
    vQo, vLin = 30, 31
    A(f"v_lshlrev_b32 {v(vQo)}, 3, {v(vT)}")
    A(f"v_lshl_add_u32 {v(vQo)}, {v(vHf)}, 14, {v(vQo)}")
    A(f"v_lshlrev_b32 {v(vLin)}, 4, {v(vL)}")
    sTok = [54, 55]; sHb = [56, 57]; sU0, sFac = 58, 59
    for sg, st in ((0, sTT0), (1, sTT1)):
        A(f"s_lshl_b32 {s(sT0)}, {s(sRb)}, 2")
        A(f"s_add_u32 {s(sT0)}, {s(sT0)}, {s(st)}")
        A(f"s_lshl_b32 {s(sTok[sg])}, {s(sT0)}, 8")
        A(f"s_add_u32 {s(sTok[sg])}, {s(sTok[sg])}, {WS_QKV}")
        A(f"s_mul_i32 {s(sHb[sg])}, {s(sT0)}, {96*1024}")
        A(f"s_add_u32 {s(sHb[sg])}, {s(sHb[sg])}, {WS_H}")
    A("s_waitcnt lgkmcnt(0)")
    for sg in range(2):
        A(f"v_sub_f32 {v(NMU[sg])}, 0, {v(ST[sg])}")
        A(f"v_mov_b32 {v(RF[sg])}, {v(ST[sg]+1)}")
        A(f"v_mul_f32 {v(RF[sg]+1)}, {f32bits(-LOG2E):#x}, {v(ST[sg]+1)}")

    def q_tile(j, u):
        A(f"s_cmp_lt_u32 {s(sU0)}, 160")
        A(f"s_cselect_b32 {s(sFac)}, {f32bits(QSCALE):#x}, 1.0")
        A(f"s_lshl_b32 {s(sT1)}, {s(sU0)}, 14")
        QF = [20, 22]
        for sg in range(2): A(f"v_mul_f32 {v(QF[sg])}, {s(sFac)}, {v(ST[sg]+1)}")
        for g in range(4):
            for sg in range(2):
                acc = ACC(j, sg) + 4 * g
                for e in range(2):
                    A(f"v_pk_fma_f32 {v(acc+2*e,2)}, {v(CS(u,g)+2*e,2)}, {v(NMU[sg],2)}, {v(acc+2*e,2)} op_sel_hi:[1,0,1]")
            for sg in range(2):
                acc = ACC(j, sg) + 4 * g
                for e in range(2):
                    A(f"v_pk_mul_f32 {v(acc+2*e,2)}, {v(acc+2*e,2)}, {v(QF[sg],2)} op_sel_hi:[1,0]")
            for sg in range(2):
                acc = ACC(j, sg) + 4 * g
                for e in range(2):
                    A(f"v_cvt_pk_bf16_f32 {v(acc+e)}, {v(acc+2*e)}, {v(acc+2*e+1)}")
            for sg in range(2):
                A(f"s_add_u32 {s(sT0)}, {s(sT1)}, {s(sTok[sg])}")
                A(f"s_add_u32 {s(sT0)}, {s(sT0)}, {2*g*PLANE}")
                A(f"buffer_store_dwordx2 {v(ACC(j,sg)+4*g,2)}, {v(vQo)}, {s(sWS,4)}, {s(sT0)} offen")

    def gu_pair(jg, ju, step_s):
        for sg in range(2):
            g0, u0 = ACC(jg, sg), ACC(ju, sg)
            for g in range(4):
                for e in range(2):
                    A(f"v_pk_fma_f32 {v(g0+4*g+2*e,2)}, {v(CS(0,g)+2*e,2)}, {v(NMU[sg],2)}, {v(g0+4*g+2*e,2)} op_sel_hi:[1,0,1]")
                    A(f"v_pk_fma_f32 {v(u0+4*g+2*e,2)}, {v(CS(1,g)+2*e,2)}, {v(NMU[sg],2)}, {v(u0+4*g+2*e,2)} op_sel_hi:[1,0,1]")
            for half in range(2):
                o = 8 * half
                for e in range(4):
                    A(f"v_pk_mul_f32 {v(TM+2*e,2)}, {v(g0+o+2*e,2)}, {v(RF[sg],2)} op_sel:[0,1] op_sel_hi:[1,1]")
                for e in range(4):
                    A(f"v_pk_mul_f32 {v(g0+o+2*e,2)}, {v(g0+o+2*e,2)}, {v(RF[sg],2)} op_sel_hi:[1,0]")
                for e in range(8): A(f"v_exp_f32 {v(TM+e)}, {v(TM+e)}")
                for e in range(4):
                    A(f"v_pk_mul_f32 {v(u0+o+2*e,2)}, {v(u0+o+2*e,2)}, {v(RF[sg],2)} op_sel_hi:[1,0]")
                for e in range(4):
                    A(f"v_pk_add_f32 {v(TM+2*e,2)}, {v(TM+2*e,2)}, 1.0 op_sel_hi:[1,0]")
                for e in range(4):
                    A(f"v_pk_mul_f32 {v(u0+o+2*e,2)}, {v(u0+o+2*e,2)}, {v(g0+o+2*e,2)}")
                for e in range(8): A(f"v_rcp_f32 {v(TM+e)}, {v(TM+e)}")
                A(f"s_add_u32 {s(sT0)}, {s(step_s)}, {half}")
                A(f"s_lshl_b32 {s(sT0)}, {s(sT0)}, 10")
                A(f"s_add_u32 {s(sT0)}, {s(sT0)}, {s(sHb[sg])}")
                for e in range(4):
                    A(f"v_pk_mul_f32 {v(u0+o+2*e,2)}, {v(u0+o+2*e,2)}, {v(TM+2*e,2)}")
                for e in range(4):
                    A(f"v_cvt_pk_bf16_f32 {v(g0+o+e)}, {v(u0+o+2*e)}, {v(u0+o+2*e+1)}")
                A(f"buffer_store_dwordx4 {v(g0+o,4)}, {v(vLin)}, {s(sWS,4)}, {s(sT0)} offen")

    sStep = 60
    A(f"s_cmp_ge_u32 {s(sCt)}, 8")
    A("s_cbranch_scc1 L_k1_epi1")
    A.c("type A: unit 16i + 8wn, gate tiles at step 8i + 4wn + 2e")
    load_cs(0, 2)
    load_cs(1, 0); load_cs(2, 1)
    A(f"s_lshl_b32 {s(sU0)}, {s(sI)}, 4")
    A(f"s_lshl_b32 {s(sT0)}, {s(sWn)}, 3")
    A(f"s_add_u32 {s(sU0)}, {s(sU0)}, {s(sT0)}")
    A(f"s_lshr_b32 {s(sStep)}, {s(sU0)}, 1")
    A("s_waitcnt lgkmcnt(8)")
    q_tile(0, 2)
    A("s_waitcnt lgkmcnt(0)")
    gu_pair(1, 2, sStep)
    load_cs(3, 0); load_cs(4, 1)
    A(f"s_add_u32 {s(sStep)}, {s(sStep)}, 2")
    A("s_waitcnt lgkmcnt(0)")
    gu_pair(3, 4, sStep)
    A("s_branch L_k1_done")
    A.label("L_k1_epi1")
    A.c("type B: units 128 + 48i + 24wn + 8q (only below 480), gate tile at step 64 + 4i + 2wn")
    load_cs(0, 2)
    load_cs(3, 0); load_cs(4, 1)
    A(f"s_mul_i32 {s(sU0)}, {s(sI)}, 48")
    A(f"s_mul_i32 {s(sT0)}, {s(sWn)}, 24")
    A(f"s_add_u32 {s(sU0)}, {s(sU0)}, {s(sT0)}")
    A(f"s_add_u32 {s(sU0)}, {s(sU0)}, 128")
    A(f"s_lshl_b32 {s(sStep)}, {s(sI)}, 2")
    A(f"s_lshl_b32 {s(sT0)}, {s(sWn)}, 1")
    A(f"s_add_u32 {s(sStep)}, {s(sStep)}, {s(sT0)}")
    A(f"s_add_u32 {s(sStep)}, {s(sStep)}, 64")
    A("s_waitcnt lgkmcnt(0)")
    gu_pair(3, 4, sStep)
    for q in range(3):
        A(f"s_cmp_ge_u32 {s(sU0)}, 480")
        A("s_cbranch_scc1 L_k1_done")
        if q:
            load_cs(q, 2)
            A("s_waitcnt lgkmcnt(0)")
        q_tile(q, 2)
        A(f"s_add_u32 {s(sU0)}, {s(sU0)}, 8")
    A.label("L_k1_done")
    stamp(A, 5)
    if common.STAMPS: A("s_waitcnt vmcnt(0)")
    stamp(A, 6)
    stamp_flush(A, 7, 69, sWS, 22)
    A("s_endpgm")

    A.label("L_k1_loader")
    sLw, sXo, sWo, sGo, sMx, sXsl, sWsl2, sCsl, sPair, sXk, sWk, sSp, sHalf = 42, 43, 44, 45, 46, 47, 48, 49, 50, 51, 52, 53, 54
    vXe, vXo = 3, 4
    vQ = [5, 6, 7]; vG = 8
    A(f"s_sub_u32 {s(sLw)}, {s(sWave)}, 4")
    A.c("x pieces: 8 rows x 128 B, granule p of row t holds source granule p ^ ((t>>1)&7)")
    A(f"v_lshrrev_b32 v10, 3, {v(vL)}")
    A(f"v_mul_u32_u24 v10, 1280, v10")
    A(f"v_and_b32 v11, 7, {v(vL)}")
    A(f"v_lshrrev_b32 v12, 4, {v(vL)}")
    A(f"v_xor_b32 v11, v11, v12")
    A(f"v_lshl_add_u32 {v(vXe)}, v11, 4, v10")
    A(f"v_xor_b32 v11, 4, v11")
    A(f"v_lshl_add_u32 {v(vXo)}, v11, 4, v10")
    A(f"s_lshl_b32 {s(sT0)}, {s(sRb)}, 7")
    A(f"s_lshl_b32 {s(sT1)}, {s(sLw)}, 5")
    A(f"s_add_u32 {s(sT0)}, {s(sT0)}, {s(sT1)}")
    A(f"s_mul_i32 {s(sXo)}, {s(sT0)}, 1280")
    A(f"s_lshl_b32 {s(sMx)}, {s(sLw)}, 12")
    A(f"s_add_u32 {s(sMx)}, {s(sMx)}, {LDS_X}")
    for r in (sXsl, sWsl2, sCsl): A(f"s_mov_b32 {s(r)}, 0")
    A.c("rotated k order: workgroups that share rows or columns start at different chunks")
    if "norot" not in variant:
        A(f"s_and_b32 {s(sT0)}, {s(sCt)}, 3")
        A(f"s_mul_i32 {s(sT1)}, {s(sT0)}, 5")
        A(f"s_lshr_b32 {s(sT1)}, {s(sT1)}, 1")
        A(f"s_lshr_b32 {s(sT0)}, {s(sCt)}, 2")
        A(f"s_add_u32 {s(sT1)}, {s(sT1)}, {s(sT0)}")
        A(f"s_add_u32 {s(sT1)}, {s(sT1)}, {s(sRb)}")
        A(f"s_mul_i32 {s(sT0)}, {s(sT1)}, 205")
        A(f"s_lshr_b32 {s(sT0)}, {s(sT0)}, 11")
        A(f"s_mul_i32 {s(sT0)}, {s(sT0)}, 10")
        A(f"s_sub_u32 {s(sXk)}, {s(sT1)}, {s(sT0)}")
    else:
        A(f"s_mov_b32 {s(sXk)}, 0")
    A(f"s_lshl_b32 {s(sWk)}, {s(sXk)}, 1")
    A(f"s_lshl_b32 {s(sT0)}, {s(sXk)}, 7")
    A(f"s_add_u32 {s(sXo)}, {s(sXo)}, {s(sT0)}")
    A(f"s_and_b32 {s(sSp)}, {s(sLw)}, 1")
    A(f"s_lshr_b32 {s(sHalf)}, {s(sLw)}, 1")

    def lane_offsets(n, pitchg, dst):
        if n == 1:
            A(f"v_lshrrev_b32 v10, 3, {v(vL)}")
            A(f"v_bfe_u32 v11, v10, 1, 1")
            A(f"v_lshlrev_b32 v11, 2, v11")
            A(f"v_and_b32 v12, 7, {v(vL)}")
            A(f"v_xor_b32 v12, v12, v11")
            A(f"v_mul_u32_u24 v10, {pitchg}, v10")
            A(f"v_lshl_add_u32 {v(dst[0])}, v12, 4, v10")
        elif n == 2:
            A(f"v_lshrrev_b32 v10, 4, {v(vL)}")
            A(f"v_lshlrev_b32 v11, 2, v10")
            A(f"v_and_b32 v12, 15, {v(vL)}")
            A(f"v_xor_b32 v12, v12, v11")
            A(f"v_mul_u32_u24 v10, {pitchg}, v10")
            A(f"v_lshl_add_u32 {v(dst[0])}, v12, 4, v10")
        else:
            for e in range(3):
                A(f"v_add_u32 v10, {64*e}, {v(vL)}")
                A(f"v_mul_u32_u24 v11, 43691, v10")
                A(f"v_lshrrev_b32 v11, 20, v11")
                A(f"v_mul_u32_u24 v12, 24, v11")
                A(f"v_sub_u32 v12, v10, v12")
                A(f"v_bfe_u32 v13, v11, 1, 1")
                A(f"v_lshlrev_b32 v13, 2, v13")
                A(f"v_xor_b32 v12, v12, v13")
                A(f"v_mul_u32_u24 v11, {pitchg}, v11")
                A(f"v_lshl_add_u32 {v(dst[e])}, v12, 4, v11")

    def wrap(r, step, n):
        return [f"s_add_u32 {s(r)}, {s(r)}, {step}", f"s_cmp_eq_u32 {s(r)}, {step*n}", f"s_cselect_b32 {s(r)}, 0, {s(r)}"]

    ACS = [16, 17, 18, 19, 20]; ACH = [21, 22, 23, 14, 15]
    FB = lambda j: 24 + 4 * j
    vCa = [44, 45, 46, 47, 48]
    UP = [50, 51, 52, 53]; vOn = 54

    def loader(typ):
        T = f"t{typ}"
        qoff, qp, qn = IMG[typ]["q"]; goff, gp, gn = IMG[typ]["g"]; uoff = IMG[typ]["u"][0]
        lane_offsets(qn, 3840, vQ)
        lane_offsets(gn, 3072, [vG])
        A.c("global offsets of this loader's 8 rows")
        A(f"s_mul_i32 {s(sWo)}, {s(sLw)}, {8*3840}")
        A(f"s_mul_i32 {s(sGo)}, {s(sLw)}, {8*3072}")
        if typ == 0:
            A(f"s_lshl_b32 {s(sT0)}, {s(sI)}, 7"); A(f"s_lshl_b32 {s(sT1)}, {s(sI)}, 8")
        else:
            A(f"s_mul_i32 {s(sT0)}, {s(sI)}, 384"); A(f"s_add_u32 {s(sT0)}, {s(sT0)}, 1024")
            A(f"s_lshl_b32 {s(sT1)}, {s(sI)}, 7"); A(f"s_add_u32 {s(sT1)}, {s(sT1)}, 2048")
        A(f"s_add_u32 {s(sWo)}, {s(sWo)}, {s(sT0)}")
        A(f"s_add_u32 {s(sGo)}, {s(sGo)}, {s(sT1)}")
        A(f"s_mul_i32 {s(sT0)}, {s(sWk)}, {32*3840}")
        A(f"s_add_u32 {s(sWo)}, {s(sWo)}, {s(sT0)}")
        A(f"s_mul_i32 {s(sT0)}, {s(sWk)}, {32*3072}")
        A(f"s_add_u32 {s(sGo)}, {s(sGo)}, {s(sT0)}")
        sMq, sMg, sB1, sB2 = 55, 56, 57, 58
        A(f"s_mul_i32 {s(sMq)}, {s(sLw)}, {8*qp}")
        A(f"s_add_u32 {s(sMq)}, {s(sMq)}, {LDS_W + qoff}")
        A(f"s_mul_i32 {s(sMg)}, {s(sLw)}, {8*gp}")
        A(f"s_add_u32 {s(sMg)}, {s(sMg)}, {LDS_W + goff}")
        def x_groups():
            g = []
            for ii in range(4):
                pre = [f"s_add_u32 {s(sB1)}, {s(sMx)}, {s(sXsl)}"] if ii == 0 else []
                g.append(pre + [f"s_add_u32 m0, {s(sB1)}, {ii*1024}", f"s_add_u32 {s(sT0)}, {s(sXo)}, {ii*10240}",
                                f"buffer_load_dwordx4 {v(vXo if ii & 1 else vXe)}, {s(sX,4)}, {s(sT0)} offen lds"])
            g[-1] += [f"s_add_u32 {s(sXo)}, {s(sXo)}, 128", f"s_add_u32 {s(sXk)}, {s(sXk)}, 1", f"s_cmp_eq_u32 {s(sXk)}, 10",
                      f"s_cselect_b32 {s(sT0)}, 1280, 0", f"s_cselect_b32 {s(sXk)}, 0, {s(sXk)}",
                      f"s_sub_u32 {s(sXo)}, {s(sXo)}, {s(sT0)}"] + wrap(sXsl, XS, NXS)
            return g
        def w_groups():
            g = []
            for e in range(qn):
                pre = [f"s_add_u32 {s(sB1)}, {s(sMq)}, {s(sWsl2)}", f"s_add_u32 {s(sB2)}, {s(sMg)}, {s(sWsl2)}"] if e == 0 else []
                g.append(pre + [f"s_add_u32 m0, {s(sB1)}, {e*1024}", "s_nop 0",
                                f"buffer_load_dwordx4 {v(vQ[e] if qn == 3 else vQ[0])}, {s(sW,4)}, {s(sWo)} offen lds"])
            for desc, off in ((sG, 0), (sU, uoff - goff)):
                for e in range(gn):
                    g.append([f"s_add_u32 m0, {s(sB2)}, {off + e*1024}", f"s_add_u32 {s(sT0)}, {s(sGo)}, {e*4*3072}",
                              f"buffer_load_dwordx4 {v(vG)}, {s(desc,4)}, {s(sT0)} offen lds"])
            g[-1] += [f"s_add_u32 {s(sWo)}, {s(sWo)}, {32*3840}", f"s_add_u32 {s(sGo)}, {s(sGo)}, {32*3072}",
                      f"s_add_u32 {s(sWk)}, {s(sWk)}, 1", f"s_cmp_eq_u32 {s(sWk)}, 20",
                      f"s_cselect_b32 {s(sT0)}, {640*3840}, 0", f"s_cselect_b32 {s(sT1)}, {640*3072}, 0", f"s_cselect_b32 {s(sWk)}, 0, {s(sWk)}",
                      f"s_sub_u32 {s(sWo)}, {s(sWo)}, {s(sT0)}", f"s_sub_u32 {s(sGo)}, {s(sGo)}, {s(sT1)}"] + wrap(sWsl2, WSZ, NWS)
            return g
        def emit(groups):
            for g in groups:
                for ln in g: A(ln)
        emit(x_groups() + w_groups() + w_groups())
        A.c("column sums: loader (step parity lw&1, wave column lw>>1) adds the fragments of five column tiles along k")
        A(f"s_lshl_b32 {s(sT2)}, {s(sSp)}, 4")
        frag_addrs(A, typ, vCa, vL, sHalf, 56, extra_rows_s=sT2)
        pitch = [IMG[typ][k][1] for (k, _, _) in SLOTS[typ]]
        for r in ACS + ACH: A(f"v_mov_b32 {v(r)}, 0")
        A(f"v_mov_b32 {v(vOn)}, 0x3f803f80")
        def interval(groups):
            if "nocs" in variant:
                emit(groups); return
            for j in range(5):
                A(f"v_add_u32 v10, {s(sCsl)}, {v(vCa[j])}")
                A(f"ds_read_b64_tr_b16 {v(FB(j),2)}, v10")
                A(f"ds_read_b64_tr_b16 {v(FB(j)+2,2)}, v10 offset:{4*pitch[j]}")
            for ln in wrap(sCsl, WSZ, NWS): A(ln)
            work = []
            for j in range(5):
                w = [f"s_waitcnt lgkmcnt({8-2*j})"]
                for k in range(4):
                    lo, hi = UP[2 * (k & 1)], UP[2 * (k & 1) + 1]
                    if "csvalu" in variant:
                        w += [f"v_lshlrev_b32 {v(lo)}, 16, {v(FB(j)+k)}", f"v_and_b32 {v(hi)}, 0xffff0000, {v(FB(j)+k)}",
                              f"v_add_f32 {v(ACS[j])}, {v(ACS[j])}, {v(lo)}", f"v_add_f32 {v(ACH[j])}, {v(ACH[j])}, {v(hi)}"]
                    else:
                        w += [f"v_dot2c_f32_bf16 {v(ACS[j] if k & 1 else ACH[j])}, {v(FB(j)+k)}, {v(vOn)}"]
                work.append(w)
            groups = list(groups)
            if "interleave" not in variant:
                emit(groups)
                A("s_waitcnt lgkmcnt(0)")
                for k in range(4):
                    for j in range(5): A(work[j][1 + k]) if "csvalu" not in variant else None
                if "csvalu" not in variant: return
                groups = []
            if groups: emit([groups.pop(0)])
            while work or groups:
                if work:
                    for ln in work.pop(0): A(ln)
                take = 1 if len(groups) <= len(work) + 1 else 2
                for _ in range(take):
                    if groups: emit([groups.pop(0)])
        def bar(cnt, st=None):
            A(f"s_waitcnt vmcnt({cnt})")
            if st is not None: stamp(A, st)
            A("s_barrier")
        stamp(A, 1)
        bar(5, 2)
        interval(x_groups() + w_groups())
        bar(9, 3)
        interval(w_groups() + x_groups() + w_groups())
        A(f"s_mov_b32 {s(sPair)}, 7")
        A.label(f"L_k1_lpair{T}")
        bar(14)
        interval(w_groups())
        bar(14)
        interval(x_groups() + w_groups())
        A(f"s_sub_u32 {s(sPair)}, {s(sPair)}, 1")
        A(f"s_cmp_lg_u32 {s(sPair)}, 0")
        A(f"s_cbranch_scc1 L_k1_lpair{T}")
        bar(14)
        interval(w_groups())
        bar(14)
        interval([])
        bar(5)
        interval([])
        bar(0, 5)
        interval([])

    A(f"s_cmp_ge_u32 {s(sCt)}, 8")
    A("s_cbranch_scc1 L_k1_loader1")
    loader(0)
    A("s_branch L_k1_lsum")
    A.label("L_k1_loader1")
    loader(1)
    A.label("L_k1_lsum")
    A.c("combine the k halves and the two step parities; array order [wave column][slot][32]")
    A("s_nop 2")
    for j in range(5): A(f"v_add_f32 {v(ACS[j])}, {v(ACS[j])}, {v(ACH[j])}")
    for j in range(5): A(f"v_mov_b32 {v(FB(0)+j)}, {v(ACS[j])}")
    A("s_nop 1")
    for j in range(5): A(f"v_permlane32_swap_b32 {v(ACS[j])}, {v(FB(0)+j)}")
    A("s_nop 0")
    for j in range(5): A(f"v_add_f32 {v(ACS[j])}, {v(ACS[j])}, {v(FB(0)+j)}")
    A(f"v_and_b32 v10, 31, {v(vL)}")
    A(f"v_lshlrev_b32 v10, 2, v10")
    A(f"s_mul_i32 {s(sT0)}, {s(sHalf)}, 640")
    A(f"s_add_u32 {s(sT0)}, {s(sT0)}, {LDS_CS}")
    A(f"v_add_u32 v10, {s(sT0)}, v10")
    A(f"s_cmp_eq_u32 {s(sSp)}, 0")
    A("s_cbranch_scc0 L_k1_cs3")
    for j in range(5): A(f"ds_write_b32 v10, {v(ACS[j])} offset:{128*j}")
    A("s_waitcnt lgkmcnt(0)")
    A("s_barrier")
    A("s_branch L_k1_cs4")
    A.label("L_k1_cs3")
    A("s_barrier")
    for j in range(5): A(f"ds_read_b32 {v(FB(0)+j)}, v10 offset:{128*j}")
    A("s_waitcnt lgkmcnt(0)")
    for j in range(5): A(f"v_add_f32 {v(ACS[j])}, {v(ACS[j])}, {v(FB(0)+j)}")
    for j in range(5): A(f"ds_write_b32 v10, {v(ACS[j])} offset:{128*j}")
    A("s_waitcnt lgkmcnt(0)")
    A.label("L_k1_cs4")
    A("s_barrier")
    if extra_tail: extra_tail(A, sWS, sLw, sRb, sCt, vL)
    stamp(A, 6)
    stamp_flush(A, 7, 69, sWS, 60)
    A.label("L_k1_end")
    A("s_endpgm")
    return NAME, 512, LDS_BYTES, descriptor(NAME, NV)
```

```python
import sys
from build import *
import k1c, attn3, ffn, fused, common
args = sys.argv[1:]
out = args[0] if args else "cur.s"
if "stamps" in args: common.STAMPS = True
if "debug" in args: common.DEBUG = True
variant = ",".join(args[1:])
def pf1(A, tag, label, typ):
    code_prefetch(A, tag, label, 4, 46, 26, 28, 2)
    code_prefetch(A, tag + "e", "L_k1_post", 8, 46, 26, 28, 2)
specs = [("proj_kernel", {}), ("proj_kernel", {"L_k1_main1": True, "L_k1_epi1": True}),
         ("proj_kernel", {"L_k1_loader": True}), ("proj_kernel", {"L_k1_loader": True, "L_k1_loader1": True, "L_k1_cs3": True})]
g = {"L_go_attn0": True, "L_go_attn": True, "L_go_attnx": True}
specs += [("main_kernel", dict(g)), ("main_kernel", dict(g, L_attn_nodma=True, L_attn_noones=True, L_attn_dma1=True, L_attn_dma2=True, L_attn_dma3=True, L_main_nosig=True)),
          ("main_kernel", dict(g, L_attn_give_b=True)), ("main_kernel", dict(g, L_attn_exact=[True, False], L_attn_norm=[False, True]))]
g2 = {"L_main_gemm": True, "L_gg_o": True, "L_go_gred": True}
specs += [("main_kernel", dict(g2)), ("main_kernel", dict(g2, L_main_res0=True, L_main_res1=True, L_main_res2=True))]
av = variant + ("" if "cyc" in variant else ",cyc3")
ks = [lambda A: k1c.gen(A, pf1, variant, extra_tail=fused.zero_flags), lambda A: fused.gen(A, av)]
sel = [a for a in args if a.startswith('only=')]
if sel: ks = [ks[int(i)] for i in sel[0][5:].split('+')]; specs = []
build(ks, out, specs)
assemble_check(out)
```

```python
from common import *
from attn import lds_arrive, lds_wait
import common

PS = 2080
SLOT = 20992
ONES = 3 * SLOT + 64
KV_BYTES = ONES + 2048
DSHIFT = 104.0

def role(A, sWS, sWv, sHead, sQb, lds_kv, lds_cnt, vL, sb=40, on_stored=None, variant="", done=None):
    sT0, sT1, sT2, sKoff, sVoff, sM, sChunk, sTarget, sSlot, sSlotN, sTile, sKh, sG = [sb + i for i in range(13)]
    sExact, sCk = sb + 19, sb + 20
    vT, vHf, vKa, vKb, vV, vKa0, vKb0, vV0, vCnt, vOne, vTmp, vDma, vVm = 3, 4, 5, 6, 7, 8, 9, 10, 11, 12, 13, 14, 15
    Q1 = [16, 24]; Q2 = [20, 28]
    KA = [32, 40]; KB = [36, 44]
    VA = [48, 56]; VB = [52, 60]
    P = [64, 72]
    SB = [80, 96]
    O = [112, 128]
    T = 144
    A(f"v_and_b32 {v(vT)}, 31, {v(vL)}")
    A(f"v_lshrrev_b32 {v(vHf)}, 5, {v(vL)}")
    A(f"v_lshlrev_b32 {v(vDma)}, 4, {v(vL)}")
    A(f"s_mov_b32 {s(sExact)}, 0")
    A(f"s_lshr_b32 {s(sKh)}, {s(sWv)}, 2")
    A(f"s_and_b32 {s(sG)}, {s(sWv)}, 3")
    A.c("a chunk is 20 pieces of 1 KiB (plane n>>1, half n&1); wave w copies pieces w, w+8 and, for w < 4, w+16")
    sP = [sb + 13, sb + 14, sb + 15]; sL = [sb + 16, sb + 17, sb + 18]
    for i in range(3):
        A(f"s_add_u32 {s(sT0)}, {s(sWv)}, {8*i}")
        A(f"s_lshr_b32 {s(sT1)}, {s(sT0)}, 1")
        A(f"s_and_b32 {s(sT0)}, {s(sT0)}, 1")
        A(f"s_mul_i32 {s(sL[i])}, {s(sT1)}, {PS}")
        A(f"s_lshl_b32 {s(sT2)}, {s(sT0)}, 10")
        A(f"s_add_u32 {s(sL[i])}, {s(sL[i])}, {s(sT2)}")
        A(f"s_add_u32 {s(sL[i])}, {s(sL[i])}, {lds_kv}")
        A.c("planes 0..4 -> key unit 160 + 5*head + p, planes 5..9 -> value unit 320 + 5*head + p - 5")
        A(f"s_cmp_ge_u32 {s(sT1)}, 5")
        A(f"s_cselect_b32 {s(sT0)}, 155, 0")
        A(f"s_add_u32 {s(sT1)}, {s(sT1)}, {s(sT0)}")
        A(f"s_mul_i32 {s(sT0)}, {s(sHead)}, 5")
        A(f"s_add_u32 {s(sT1)}, {s(sT1)}, {s(sT0)}")
        A(f"s_add_u32 {s(sT1)}, {s(sT1)}, 160")
        A(f"s_lshl_b32 {s(sP[i])}, {s(sT1)}, 14")
        A(f"s_add_u32 {s(sP[i])}, {s(sP[i])}, {s(sT2)}")
        A(f"s_add_u32 {s(sP[i])}, {s(sP[i])}, {WS_QKV}")
    ndma = [0]
    def dma(slot_off, in_reg=False):
        ndma[0] += 1
        for i in range(3):
            if i == 2:
                A(f"s_cmp_ge_u32 {s(sWv)}, 4")
                A(f"s_cbranch_scc1 L_attn_dma{ndma[0]}")
            if not in_reg:
                A(f"s_add_u32 m0, {s(sL[i])}, {slot_off}")
            else:
                A(f"s_add_u32 m0, {s(sL[i])}, {s(slot_off)}")
            A("s_nop 0")
            A(f"buffer_load_dwordx4 {v(vDma)}, {s(sWS,4)}, {s(sP[i])} offen lds")
        A.label(f"L_attn_dma{ndma[0]}")
        for i in range(3): A(f"s_add_u32 {s(sP[i])}, {s(sP[i])}, 2048")
    dma(0)
    A.c("query fragments of tiles 2g and 2g+1")
    A(f"s_lshl_b32 {s(sTile)}, {s(sQb)}, 3")
    A(f"s_lshl_b32 {s(sT0)}, {s(sG)}, 1")
    A(f"s_add_u32 {s(sTile)}, {s(sTile)}, {s(sT0)}")
    A(f"s_lshl_b32 {s(sT1)}, {s(sTile)}, 8")
    A(f"s_mul_i32 {s(sT2)}, {s(sHead)}, {5*PLANE}")
    A(f"s_add_u32 {s(sT1)}, {s(sT1)}, {s(sT2)}")
    A(f"s_add_u32 {s(sT1)}, {s(sT1)}, {WS_QKV}")
    A(f"v_lshlrev_b32 {v(vKb0)}, 3, {v(vT)}")
    A(f"v_lshl_add_u32 {v(vKa0)}, {v(vHf)}, 15, {v(vKb0)}")
    A(f"s_add_u32 {s(sT2)}, {s(sT1)}, {PLANE}")
    A(f"s_add_u32 {s(sT0)}, {s(sT1)}, {4*PLANE}")
    for q in range(2):
        A(f"buffer_load_dwordx2 {v(Q1[q],2)}, {v(vKa0)}, {s(sWS,4)}, {s(sT1)} offen offset:{q*256}")
        A(f"buffer_load_dwordx2 {v(Q1[q]+2,2)}, {v(vKa0)}, {s(sWS,4)}, {s(sT2)} offen offset:{q*256}")
        A(f"buffer_load_dwordx2 {v(Q2[q],2)}, {v(vKb0)}, {s(sWS,4)}, {s(sT0)} offen offset:{q*256}")
    dma(SLOT)
    A.c("LDS addresses: keys plane 2h / plane 4 at key*8; values plane c (c<4), plane 4 or the constant plane")
    A(f"v_mul_u32_u24 {v(vKa0)}, {2*PS}, {v(vHf)}")
    A(f"v_add_u32 {v(vKa0)}, {v(vKa0)}, {v(vKb0)}")
    A(f"v_add_u32 {v(vKa0)}, {lds_kv}, {v(vKa0)}")
    A(f"v_add_u32 {v(vKb0)}, {lds_kv + 4*PS}, {v(vKb0)}")
    A(f"v_bfe_u32 {v(T)}, {v(vL)}, 2, 2")
    A(f"v_lshl_add_u32 {v(T)}, {v(vHf)}, 2, {v(T)}")
    A(f"v_lshlrev_b32 {v(T)}, 3, {v(T)}")
    A(f"v_and_b32 {v(T+1)}, 3, {v(vL)}")
    A(f"v_bfe_u32 {v(T+2)}, {v(vL)}, 4, 1")
    A(f"v_lshl_add_u32 {v(T+2)}, {v(T+2)}, 2, {v(T+1)}")
    A(f"v_mul_u32_u24 {v(vV0)}, {PS}, {v(T+2)}")
    A(f"v_add_u32 {v(vV0)}, {lds_kv + 5*PS}, {v(vV0)}")
    A(f"v_cmp_gt_u32 vcc, 5, {v(T+2)}")
    A(f"v_mov_b32 {v(T+1)}, {lds_kv + ONES}")
    A(f"v_mov_b32 {v(vOne)}, 1")
    A(f"v_cndmask_b32 {v(vV0)}, {v(T+1)}, {v(vV0)}, vcc")
    A(f"v_cndmask_b32 {v(vVm)}, 0, {v(vOne)}, vcc")
    A(f"v_add_u32 {v(vV0)}, {v(vV0)}, {v(T)}")
    A(f"v_mov_b32 {v(vCnt)}, {lds_cnt}")
    A.c("constant plane: 256 x (1,0,0,0), written by wave 0")
    A(f"s_cmp_lg_u32 {s(sWv)}, 0")
    A("s_cbranch_scc1 L_attn_noones")
    A(f"v_mov_b32 {v(T)}, 0x3f80")
    A(f"v_mov_b32 {v(T+1)}, 0")
    A(f"v_mov_b32 {v(T+2)}, 0x3f80")
    A(f"v_mov_b32 {v(T+3)}, 0")
    A(f"v_add_u32 {v(T+4)}, {lds_kv + ONES}, {v(vDma)}")
    A(f"ds_write_b128 {v(T+4)}, {v(T,4)}")
    A(f"ds_write_b128 {v(T+4)}, {v(T,4)} offset:1024")
    A("s_waitcnt lgkmcnt(0)")
    A.label("L_attn_noones")
    for b in range(2):
        A(f"v_mov_b32 {v(KB[b]+2)}, 0x3f80")
        A(f"v_mov_b32 {v(KB[b]+3)}, 0")
    for q in range(2):
        for r in range(16): A(f"v_mov_b32 {v(O[q]+r)}, 0")
    for r in range(8):
        A(f"v_mov_b32 {v(P[1]+r)}, 0")
        A(f"v_mov_b32 {v(VA[1]+r)}, 0")
    A(f"v_cmp_eq_u32 vcc, 0, {v(vHf)}")
    A("s_waitcnt vmcnt(2)")
    A("s_nop 0")
    for q in range(2):
        A(f"v_cndmask_b32 {v(Q2[q])}, 0, {v(Q2[q])}, vcc")
        A(f"v_cndmask_b32 {v(Q2[q]+1)}, 0, {v(Q2[q]+1)}, vcc")
        A(f"v_mov_b32 {v(Q2[q]+2)}, 0")
        A(f"v_mov_b32 {v(Q2[q]+3)}, 0")
    A.c("chunk 0 of this wave has landed")
    lds_arrive(A, vCnt, vOne)
    A(f"s_mov_b32 {s(sTarget)}, 8")
    lds_wait(A, "attn0", vCnt, vTmp, sT0, sTarget)
    stamp(A, 1)

    def kreads(b, off):
        return [f"ds_read_b64 {v(KA[b],2)}, {v(vKa)} offset:{off}", f"ds_read_b64 {v(KA[b]+2,2)}, {v(vKa)} offset:{off + PS}",
                f"ds_read_b64 {v(KB[b],2)}, {v(vKb)} offset:{off}"]
    def vreads(b, off):
        return [f"ds_read_b64_tr_b16 {v((VA if m == 0 else VB)[b]+2*i,2)}, {v(vV)} offset:{off + (16*m+8*i)*8}" for m in range(2) for i in range(2)]
    s1 = lambda q, b: f"v_mfma_f32_32x32x16_bf16 {v(SB[q],16)}, {v(KA[b],4)}, {v(Q1[q],4)}, 0"
    s2 = lambda q, b: f"v_mfma_f32_32x32x16_bf16 {v(SB[q],16)}, {v(KB[b],4)}, {v(Q2[q],4)}, {v(SB[q],16)}"
    pv = lambda q, b, m: f"v_mfma_f32_32x32x16_bf16 {v(O[q],16)}, {v((VA if m == 0 else VB)[b],4)}, {v(P[q]+4*m,4)}, {v(O[q],16)}"

    A.c("reference value per query: maximum over the first 64 keys plus a fixed offset, rounded to bf16")
    A(f"v_mov_b32 {v(vKa)}, {v(vKa0)}")
    A(f"v_mov_b32 {v(vKb)}, {v(vKb0)}")
    for ln in kreads(0, 0) + kreads(1, 256): A(ln)
    A(f"s_lshl_b32 {s(sT0)}, {s(sKh)}, 8")
    A(f"v_add_u32 {v(vKa0)}, {s(sT0)}, {v(vKa0)}")
    A(f"v_add_u32 {v(vKb0)}, {s(sT0)}, {v(vKb0)}")
    A(f"v_add_u32 {v(vV0)}, {s(sT0)}, {v(vV0)}")
    A("s_waitcnt lgkmcnt(0)")
    def maxes(first):
        for q in range(2):
            b = SB[q]; t = T + 4 * q
            if first:
                A(f"v_max3_f32 {v(t)}, {v(b)}, {v(b+1)}, {v(b+2)}")
                A(f"v_max3_f32 {v(t+1)}, {v(b+3)}, {v(b+4)}, {v(b+5)}")
                for r in range(3):
                    A(f"v_max3_f32 {v(t + (r & 1))}, {v(t + (r & 1))}, {v(b+6+3*r)}, {v(b+7+3*r)}")
                    A(f"v_max_f32 {v(t + 1 - (r & 1))}, {v(t + 1 - (r & 1))}, {v(b+8+3*r)}")
                A(f"v_max_f32 {v(t)}, {v(t)}, {v(b+15)}")
            else:
                for r in range(0, 16, 4):
                    A(f"v_max3_f32 {v(t)}, {v(t)}, {v(b+r)}, {v(b+r+1)}")
                    A(f"v_max3_f32 {v(t+1)}, {v(t+1)}, {v(b+r+2)}, {v(b+r+3)}")
    for q in range(2):
        A(s1(q, 0)); A(s2(q, 0))
    A("s_nop 7"); A("s_nop 3")
    maxes(True)
    for q in range(2):
        A(s1(q, 1)); A(s2(q, 1))
    A(f"v_mov_b32 {v(vKa)}, {v(vKa0)}")
    A(f"v_mov_b32 {v(vKb)}, {v(vKb0)}")
    A(f"v_mov_b32 {v(vV)}, {v(vV0)}")
    for ln in kreads(0, 0): A(ln)
    A("s_nop 7")
    A(f"v_cmp_eq_u32 vcc, 0, {v(vHf)}")
    maxes(False)
    for q in range(2):
        t = T + 4 * q
        A(f"v_max_f32 {v(t)}, {v(t)}, {v(t+1)}")
        A(f"v_mov_b32 {v(t+1)}, {v(t)}")
    A("s_nop 0")
    for q in range(2):
        t = T + 4 * q
        A(f"v_permlane32_swap_b32 {v(t)}, {v(t+1)}")
    A("s_nop 0")
    for q in range(2):
        t = T + 4 * q
        A(f"v_max_f32 {v(t)}, {v(t)}, {v(t+1)}")
        A(f"v_add_f32 {v(t)}, {f32bits(DSHIFT):#x}, {v(t)}")
        A(f"v_sub_f32 {v(t)}, 0, {v(t)}")
        A(f"v_cvt_pk_bf16_f32 {v(t)}, {v(t)}, 0")
        A(f"v_cndmask_b32 {v(Q2[q]+2)}, 0, {v(t)}, vcc")
    A("s_waitcnt lgkmcnt(0)")
    A("s_nop 0")
    A.c("pipeline prologue: scores of tile A for the first key tile")
    A(s1(0, 0)); A(s2(0, 0))
    A(f"s_mov_b32 {s(sChunk)}, 0")
    A(f"s_mov_b32 {s(sSlot)}, 0")
    A(f"s_mov_b32 {s(sTarget)}, 8")
    A("s_nop 7")
    A(".p2align 3")
    A.label("L_attn_chunk")
    A.c("arrive: own copy of the next chunk has landed and the previous chunk is no longer read")
    A("s_waitcnt vmcnt(0)")
    lds_arrive(A, vCnt, vOne)
    A(f"s_add_u32 {s(sTarget)}, {s(sTarget)}, 8")
    A(f"s_add_u32 {s(sSlotN)}, {s(sSlot)}, {SLOT}")
    A(f"s_cmp_eq_u32 {s(sSlotN)}, {3*SLOT}")
    A(f"s_cselect_b32 {s(sSlotN)}, 0, {s(sSlotN)}")

    A0 = A
    class Filt:
        def __call__(self, ln):
            if "nolds" in variant and ((ln.startswith("ds_read") and "b32" not in ln) or "lgkmcnt(4)" in ln): return
            if "nomfma" in variant and ln.startswith("v_mfma"): return
            if "noexp" in variant and ln.startswith("v_exp"): return
            if "nocvt" in variant and ln.startswith("v_cvt"): return
            A0(ln)
        def c(self, t): A0.c(t)
        def label(self, t): A0.label(t)
    A = Filt()
    def phase(q, mf, extra):
        sb_ = SB[q]
        ex = lambda i: f"v_exp_f32 {v(sb_+i)}, {v(sb_+i)}"
        cv = lambda e: f"v_cvt_pk_bf16_f32 {v(P[q]+e)}, {v(sb_+2*e)}, {v(sb_+2*e+1)}"
        groups = [[ex(0), ex(1), ex(2), cv(0), ex(3), ex(4)],
                  [cv(1), ex(5), ex(6), cv(2), ex(7), ex(8)],
                  [cv(3), ex(9), ex(10), cv(4), ex(11), ex(12)],
                  [cv(5), ex(13), ex(14), ex(15), cv(6), cv(7)]]
        for k in range(4):
            for ln in extra.get(("pre", k), []): A(ln)
            A(mf[k])
            for ln in extra.get(k, []): A(ln)
            for ln in groups[k]: A(ln)

    for i in range(4):
        b = i & 1
        if i == 3:
            pre_k = [f"v_add_u32 {v(vKa)}, {s(sSlotN)}, {v(vKa0)}", f"v_add_u32 {v(vKb)}, {s(sSlotN)}, {v(vKb0)}"]
        else:
            pre_k = []
        if "cyc4" in variant: A(f"s_setprio {3 - (2*i) % 4}")
        if "cyct" in variant: A(f"s_setprio {3 - i}")
        if "cyc3" in variant: A(f"s_setprio {[2,0,1,2][i]}")
        A.c(f"key tile {i}: tile A exponentials")
        phase(0, [s1(1, b), s2(1, b), pv(1, 1 - b, 0), pv(1, 1 - b, 1)],
              {0: pre_k, 1: kreads(1 - b, ((i + 1) & 3) * 512), 3: vreads(b, i * 512)})
        if "cyc4" in variant: A(f"s_setprio {3 - (2*i+1) % 4}")
        if "cyc3" in variant: A(f"s_setprio {[1,2,0,1][i] if i < 3 else 0}")
        A.c(f"key tile {i}: tile B exponentials")
        phase(1, [s1(0, 1 - b), s2(0, 1 - b), pv(0, b, 0), pv(0, b, 1)],
              {("pre", 0): ["s_waitcnt lgkmcnt(4)"], ("pre", 2): ["s_waitcnt lgkmcnt(0)"]})
        if i == 1 and "nosync" not in variant:
            A.c("all waves left the previous chunk: refill its slot with chunk c+2")
            lds_wait(A, "attn", vCnt, vTmp, sT0, sTarget)
            A(f"s_cmp_ge_u32 {s(sChunk)}, 6")
            A("s_cbranch_scc1 L_attn_nodma")
            A(f"s_add_u32 {s(sT1)}, {s(sSlotN)}, {SLOT}")
            A(f"s_cmp_eq_u32 {s(sT1)}, {3*SLOT}")
            A(f"s_cselect_b32 {s(sT1)}, 0, {s(sT1)}")
            dma(sT1, True)
            A.label("L_attn_nodma")
        if i == 3:
            A(f"v_mad_u32_u24 {v(vV)}, {s(sSlotN)}, {v(vVm)}, {v(vV0)}")
    A = A0
    A(f"s_mov_b32 {s(sSlot)}, {s(sSlotN)}")
    A(f"s_add_u32 {s(sChunk)}, {s(sChunk)}, 1")
    A(f"s_cmp_lt_u32 {s(sChunk)}, 8")
    A("s_cbranch_scc1 L_attn_chunk")
    A.c("last value product of tile B")
    A(pv(1, 1, 0)); A(pv(1, 1, 1))
    stamp(A, 2)

    A.c("combine the two key parities: this wave keeps tile kh and hands the other one over through LDS")
    A.c("hand-over areas: waves 0..3 in slot 0 (chunk 6), waves 4..7 in slot 2 (chunk 5); both are dead by now")
    A(f"s_mul_i32 {s(sT0)}, {s(sKh)}, {2*SLOT}")
    A(f"s_mul_i32 {s(sT2)}, {s(sG)}, 3072")
    A(f"s_add_u32 {s(sT2)}, {s(sT2)}, {lds_kv}")
    A(f"s_add_u32 {s(sT0)}, {s(sT0)}, {s(sT2)}")
    A(f"v_add_u32 {v(T)}, {s(sT0)}, {v(vDma)}")
    A(f"s_xor_b32 {s(sT1)}, {s(sKh)}, 1")
    A(f"s_mul_i32 {s(sT1)}, {s(sT1)}, {2*SLOT}")
    A(f"s_add_u32 {s(sT1)}, {s(sT1)}, {s(sT2)}")
    A(f"v_add_u32 {v(T+1)}, {s(sT1)}, {v(vDma)}")
    A(f"s_cmp_eq_u32 {s(sKh)}, 0")
    A("s_nop 4")
    A("s_cbranch_scc1 L_attn_give_b")
    for k in range(3): A(f"ds_write_b128 {v(T)}, {v(O[0]+4*k,4)} offset:{1024*k}")
    for r in range(12): A(f"v_mov_b32 {v(O[0]+r)}, {v(O[1]+r)}")
    for r in range(4):
        A(f"v_mov_b32 {v(Q1[0]+r)}, {v(Q1[1]+r)}")
    for r in range(2):
        A(f"v_mov_b32 {v(Q2[0]+r)}, {v(Q2[1]+r)}")
    A(f"s_add_u32 {s(sTile)}, {s(sTile)}, 1")
    A("s_branch L_attn_given")
    A.label("L_attn_give_b")
    for k in range(3): A(f"ds_write_b128 {v(T)}, {v(O[1]+4*k,4)} offset:{1024*k}")
    A.label("L_attn_given")
    A("s_waitcnt lgkmcnt(0)")
    lds_arrive(A, vCnt, vOne)
    A(f"s_add_u32 {s(sTarget)}, {s(sTarget)}, 8")
    lds_wait(A, "attnx", vCnt, vTmp, sT0, sTarget)
    stamp(A, 4)
    for k in range(3): A(f"ds_read_b128 {v(SB[0]+4*k,4)}, {v(T+1)} offset:{1024*k}")
    A("s_waitcnt lgkmcnt(0)")
    Of = O[0]
    for r in range(12): A(f"v_add_f32 {v(Of+r)}, {v(Of+r)}, {v(SB[0]+r)}")
    A.c("the reference value is only a stand-in for the row maximum: check that nothing overflowed or vanished")
    A.label("L_attn_check")
    A(f"v_mov_b32 {v(T)}, {v(Of+8)}")
    A(f"v_mov_b32 {v(T+1)}, {v(Of+8)}")
    A(f"v_mul_f32 {v(T+2)}, 0, {v(Of)}")
    A("s_nop 0")
    A(f"v_permlane32_swap_b32 {v(T)}, {v(T+1)}")
    for r in range(1, 12): A(f"v_fma_f32 {v(T+2)}, {v(Of+r)}, 0, {v(T+2)}")
    A(f"s_cmp_eq_u32 {s(sExact)}, 1")
    A("s_cbranch_scc1 L_attn_norm")
    A(f"v_mov_b32 {v(T+3)}, {f32bits(2.0**-107):#x}")
    A(f"v_mov_b32 {v(T+4)}, {f32bits(2.0**124):#x}")
    A(f"v_cmp_ge_f32 vcc, {v(T+1)}, {v(T+3)}")
    A(f"v_cmp_le_f32 {s(sCk,2)}, {v(T+1)}, {v(T+4)}")
    A(f"v_cmp_o_f32 {s(sCk+2,2)}, {v(T+2)}, {v(T+2)}")
    A("s_nop 0")
    A(f"s_and_b64 vcc, vcc, {s(sCk,2)}")
    A(f"s_and_b64 vcc, vcc, {s(sCk+2,2)}")
    A("s_cmp_eq_u64 vcc, exec")
    A("s_cbranch_scc0 L_attn_exact")
    A.label("L_attn_norm")
    A.c("normalise by the row sum (row 20 of the accumulator, held by the upper half in register 8)")
    A(f"v_rcp_f32 {v(T)}, {v(T+1)}")
    A("s_nop 0")
    for r in range(12): A(f"v_mul_f32 {v(Of+r)}, {v(Of+r)}, {v(T)}")
    PP = P[0]
    for e in range(6): A(f"v_cvt_pk_bf16_f32 {v(PP+e)}, {v(Of+2*e)}, {v(Of+2*e+1)}")
    A(f"s_lshl_b32 {s(sT1)}, {s(sTile)}, 5")
    A(f"s_add_u32 {s(sT1)}, {s(sT1)}, {s(sHead)}")
    A(f"s_lshl_b32 {s(sT0)}, {s(sT1)}, 10")
    A(f"s_add_u32 {s(sT0)}, {s(sT0)}, {WS_O}")
    sc = " sc1" if on_stored else ""
    A(f"buffer_store_dwordx4 {v(PP,4)}, {v(vDma)}, {s(sWS,4)}, {s(sT0)} offen{sc}")
    A.c("leftover four dims: 256 contiguous bytes per (tile, head), held by the lower half")
    A(f"s_lshl_b32 {s(sT0)}, {s(sT1)}, 8")
    A(f"s_add_u32 {s(sT0)}, {s(sT0)}, {WS_OR}")
    A(f"v_lshlrev_b32 {v(T)}, 3, {v(vT)}")
    A("s_mov_b32 exec_hi, 0")
    A(f"buffer_store_dwordx2 {v(PP+4,2)}, {v(T)}, {s(sWS,4)}, {s(sT0)} offen{sc}")
    A("s_mov_b64 exec, -1")
    stamp(A, 5)
    if on_stored: on_stored(A)
    done(A)

    A.label("L_attn_exact")
    if "countexact" in variant:
        A(f"s_load_dwordx2 s[64:65], s[0:1], {K_DBG}")
        A("s_waitcnt lgkmcnt(0)")
        A("v_mov_b32 v5, 0"); A("v_mov_b32 v6, 1")
        A("s_mov_b64 exec, 1")
        A("global_atomic_add v5, v6, s[64:65]")
        A("s_waitcnt vmcnt(0)")
        A("s_mov_b64 exec, -1")
    A(f"s_mov_b32 {s(sExact)}, 1")
    q1, q2 = Q1[0], Q2[0]
    ka, kb = KA[0], KB[0]
    sb0 = SB[0]
    vKo, vK4, vVo, vW, vR, vMx = 5, 6, 7, 8, 9, 10
    PRIV, PP2 = SLOT, 288
    A(f"s_mul_i32 {s(sKoff)}, {s(sHead)}, {5*PLANE}")
    A(f"s_add_u32 {s(sKoff)}, {s(sKoff)}, {160*PLANE + WS_QKV}")
    A(f"s_add_u32 {s(sVoff)}, {s(sKoff)}, {160*PLANE}")
    A(f"v_lshlrev_b32 {v(vK4)}, 3, {v(vT)}")
    A(f"v_lshl_add_u32 {v(vKo)}, {v(vHf)}, 15, {v(vK4)}")
    A(f"v_mov_b32 {v(q2+2)}, 0")
    A(f"v_mov_b32 {v(q2+3)}, 0")
    A(f"v_mov_b32 {v(kb+2)}, 0x3f803f80")
    A(f"v_mov_b32 {v(kb+3)}, 0x3f80")
    A(f"v_mov_b32 {v(vMx)}, 0xff800000")
    def kload(off):
        A(f"s_add_u32 {s(sT0)}, {s(off)}, {PLANE}")
        A(f"s_add_u32 {s(sT1)}, {s(off)}, {4*PLANE}")
        A(f"buffer_load_dwordx2 {v(ka,2)}, {v(vKo)}, {s(sWS,4)}, {s(off)} offen")
        A(f"buffer_load_dwordx2 {v(ka+2,2)}, {v(vKo)}, {s(sWS,4)}, {s(sT0)} offen")
        A(f"buffer_load_dwordx2 {v(kb,2)}, {v(vK4)}, {s(sWS,4)}, {s(sT1)} offen")
    A(f"s_mov_b32 {s(sM)}, {s(sKoff)}")
    A(f"s_mov_b32 {s(sChunk)}, 64")
    A.label("L_attn_max")
    kload(sM)
    A("s_waitcnt vmcnt(0)")
    A(s1(0, 0)); A(s2(0, 0))
    A("s_nop 7"); A("s_nop 3")
    for r in range(0, 16, 2): A(f"v_max3_f32 {v(vMx)}, {v(vMx)}, {v(sb0+r)}, {v(sb0+r+1)}")
    A(f"s_add_u32 {s(sM)}, {s(sM)}, 256")
    A(f"s_sub_u32 {s(sChunk)}, {s(sChunk)}, 1")
    A(f"s_cmp_lg_u32 {s(sChunk)}, 0")
    A("s_cbranch_scc1 L_attn_max")
    A(f"v_mov_b32 {v(T)}, {v(vMx)}")
    A("s_nop 1")
    A(f"v_permlane32_swap_b32 {v(vMx)}, {v(T)}")
    A("s_nop 0")
    A(f"v_max_f32 {v(vMx)}, {v(vMx)}, {v(T)}")
    A.c("-max as three bf16 terms in slots 20, 21, 22")
    A(f"v_sub_f32 {v(vMx)}, 0, {v(vMx)}")
    A(f"v_and_b32 {v(T)}, 0xffff0000, {v(vMx)}")
    A(f"v_sub_f32 {v(T+1)}, {v(vMx)}, {v(T)}")
    A(f"v_and_b32 {v(T+2)}, 0xffff0000, {v(T+1)}")
    A(f"v_sub_f32 {v(T+3)}, {v(T+1)}, {v(T+2)}")
    A(f"v_lshrrev_b32 {v(T)}, 16, {v(T)}")
    A(f"v_or_b32 {v(T)}, {v(T)}, {v(T+2)}")
    A(f"v_lshrrev_b32 {v(T+3)}, 16, {v(T+3)}")
    A(f"v_cmp_eq_u32 vcc, 0, {v(vHf)}")
    A.c("addresses of the private value staging area")
    A(f"s_mul_i32 {s(sT0)}, {s(sWv)}, 2624")
    A(f"s_add_u32 {s(sT2)}, {s(sT0)}, {lds_kv + PRIV}")
    A(f"v_cndmask_b32 {v(q2+2)}, 0, {v(T)}, vcc")
    A(f"v_cndmask_b32 {v(q2+3)}, 0, {v(T+3)}, vcc")
    A(f"v_mul_u32_u24 {v(vVo)}, {3*PLANE}, {v(vHf)}")
    A(f"v_add_u32 {v(vVo)}, {v(vVo)}, {v(vK4)}")
    A(f"v_mul_u32_u24 {v(vW)}, {3*PP2}, {v(vHf)}")
    A(f"v_add_u32 {v(vW)}, {v(vW)}, {v(vK4)}")
    A(f"v_add_u32 {v(vW)}, {s(sT2)}, {v(vW)}")
    A(f"v_bfe_u32 {v(T)}, {v(vL)}, 2, 2")
    A(f"v_lshl_add_u32 {v(T)}, {v(vHf)}, 2, {v(T)}")
    A(f"v_lshlrev_b32 {v(T)}, 3, {v(T)}")
    A(f"v_and_b32 {v(T+1)}, 3, {v(vL)}")
    A(f"v_bfe_u32 {v(T+2)}, {v(vL)}, 4, 1")
    A(f"v_lshl_add_u32 {v(T+2)}, {v(T+2)}, 2, {v(T+1)}")
    A(f"v_mul_u32_u24 {v(vR)}, {PP2}, {v(T+2)}")
    A(f"v_add_u32 {v(vR)}, {s(sT2)}, {v(vR)}")
    A(f"v_cmp_gt_u32 vcc, 5, {v(T+2)}")
    A(f"v_mov_b32 {v(T+1)}, {lds_kv + ONES}")
    A("s_nop 0")
    A(f"v_cndmask_b32 {v(vR)}, {v(T+1)}, {v(vR)}, vcc")
    A(f"v_add_u32 {v(vR)}, {v(vR)}, {v(T)}")
    for r in range(16): A(f"v_mov_b32 {v(Of+r)}, 0")
    A(f"s_mov_b32 {s(sM)}, {s(sKoff)}")
    A(f"s_mov_b32 {s(sSlot)}, {s(sVoff)}")
    A(f"s_mov_b32 {s(sChunk)}, 64")
    A.label("L_attn_again")
    kload(sM)
    for e in range(3):
        A(f"s_add_u32 {s(sT0)}, {s(sSlot)}, {e*PLANE}")
        A(f"buffer_load_dwordx2 {v(P[1]+2*e,2)}, {v(vVo)}, {s(sWS,4)}, {s(sT0)} offen")
    A("s_waitcnt vmcnt(0)")
    A(s1(0, 0)); A(s2(0, 0))
    A(f"ds_write_b64 {v(vW)}, {v(P[1],2)}")
    A(f"ds_write_b64 {v(vW)}, {v(P[1]+2,2)} offset:{PP2}")
    A("s_mov_b32 exec_hi, 0")
    A(f"ds_write_b64 {v(vW)}, {v(P[1]+4,2)} offset:{2*PP2}")
    A("s_mov_b64 exec, -1")
    A("s_waitcnt lgkmcnt(0)")
    for m in range(2):
        for i in range(2):
            A(f"ds_read_b64_tr_b16 {v((VA if m == 0 else VB)[0]+2*i,2)}, {v(vR)} offset:{(16*m+8*i)*8}")
    A("s_nop 7")
    for r in range(16): A(f"v_exp_f32 {v(sb0+r)}, {v(sb0+r)}")
    A("s_nop 0")
    for e in range(8): A(f"v_cvt_pk_bf16_f32 {v(P[0]+e)}, {v(sb0+2*e)}, {v(sb0+2*e+1)}")
    A("s_waitcnt lgkmcnt(0)")
    A("s_nop 0")
    A(pv(0, 0, 0)); A(pv(0, 0, 1))
    A(f"s_add_u32 {s(sM)}, {s(sM)}, 256")
    A(f"s_add_u32 {s(sSlot)}, {s(sSlot)}, 256")
    A(f"s_sub_u32 {s(sChunk)}, {s(sChunk)}, 1")
    A(f"s_cmp_lg_u32 {s(sChunk)}, 0")
    A("s_cbranch_scc1 L_attn_again")
    A("s_nop 7"); A("s_nop 7")
    A("s_branch L_attn_check")


NAME = "attn_kernel"
def gen(A, variant=""):
    sWS, sWave, sHead, sQb, sT0 = 16, 20, 21, 22, 23
    LDS_CNT = KV_BYTES
    kernel_header(A, NAME)
    A("s_cmp_ge_u32 s2, 256")
    A("s_cbranch_scc1 L_attn_end")
    A(f"s_load_dwordx2 s[28:29], s[0:1], {K_WS}")
    A("v_lshrrev_b32 v1, 6, v0")
    A("v_and_b32 v2, 63, v0")
    A(f"v_readfirstlane_b32 {s(sWave)}, v1")
    A(f"s_and_b32 {s(sT0)}, s2, 7")
    A(f"s_lshr_b32 {s(sQb)}, s2, 3")
    A(f"s_lshr_b32 {s(sHead)}, {s(sQb)}, 3")
    A(f"s_lshl_b32 {s(sT0)}, {s(sT0)}, 2")
    A(f"s_add_u32 {s(sHead)}, {s(sHead)}, {s(sT0)}")
    A(f"s_and_b32 {s(sQb)}, {s(sQb)}, 7")
    A(f"v_mov_b32 v3, {LDS_CNT}")
    A(f"v_mov_b32 v4, 0")
    A("ds_write_b32 v3, v4")
    A("s_waitcnt lgkmcnt(0)")
    srd(A, sWS, 28, WS_SIZE)
    stamp(A, 0)
    if common.STAMPS:
        A(f"s_lshl_b32 s27, s2, 3")
        A(f"s_add_u32 s27, s27, {s(sWave)}")
    A("s_barrier")
    if 'prio' in variant:
        A(f's_cmp_lt_u32 {s(sWave)}, 4')
        A('s_cbranch_scc1 L_attn_noprio')
        A('s_setprio 1')
        A.label('L_attn_noprio')
    role(A, sWS, sWave, sHead, sQb, 0, LDS_CNT, 2, variant=variant)
    stamp(A, 3)
    stamp_flush(A, 4, 27, sWS, 144)
    A.label("L_attn_end")
    A("s_endpgm")
    return NAME, 512, 90112, descriptor(NAME, 152)
```

```python
from common import *
import common
import attn3
from attn import lds_arrive, lds_wait
from ffn import out_setup, OUT_SLOT

NAME = "main_kernel"
PITCH = 656
REG = 32 * PITCH
LDS_CNT = attn3.KV_BYTES
LDS_CNT_O = LDS_CNT + 4
LDS_CNT_G = LDS_CNT + 8
LDS_G = 65280
LDS_BYTES = LDS_G + 4 * REG
NV = 168

def global_wait(A, tag, sWS, sOff, target, vT, sTmp, sSpin):
    A(f"s_mov_b32 {s(sSpin)}, 0x8000")
    A(f"v_mov_b32 {v(vT+1)}, 0")
    A.label(f"L_gw_{tag}")
    A(f"buffer_load_dword {v(vT)}, {v(vT+1)}, {s(sWS,4)}, {s(sOff)} offen sc1")
    A("s_waitcnt vmcnt(0)")
    A(f"v_readfirstlane_b32 {s(sTmp)}, {v(vT)}")
    A(f"s_sub_u32 {s(sSpin)}, {s(sSpin)}, 1")
    A(f"s_cbranch_scc1 L_gg_{tag}")
    A(f"s_cmp_ge_u32 {s(sTmp)}, {target}")
    A(f"s_cbranch_scc1 L_gg_{tag}")
    A("s_sleep 2")
    A(f"s_branch L_gw_{tag}")
    A.label(f"L_gg_{tag}")

def gen(A, variant="", prefetch=None):
    sWS, sWD, sWO, sXd, sOut = 8, 12, 16, 32, 36
    sWave, sHead, sQb, sT0, sT1 = 20, 21, 22, 23, 24
    kernel_header(A, NAME)
    A("s_cmp_ge_u32 s2, 256")
    A("s_cbranch_scc1 L_main_end")
    A(f"s_load_dwordx2 s[28:29], s[0:1], {K_WS}")
    A(f"s_load_dwordx2 s[4:5], s[0:1], {K_WD}")
    A(f"s_load_dwordx2 s[6:7], s[0:1], {K_WO}")
    A(f"s_load_dwordx2 s[30:31], s[0:1], {K_X}")
    A(f"s_load_dwordx2 s[26:27], s[0:1], {K_OUT}")
    A("v_lshrrev_b32 v1, 6, v0")
    A("v_and_b32 v2, 63, v0")
    A(f"v_readfirstlane_b32 {s(sWave)}, v1")
    A(f"v_mov_b32 v3, {LDS_CNT}")
    A(f"v_mov_b32 v4, 0")
    A(f"v_mov_b32 v5, 0")
    A(f"v_mov_b32 v6, 0")
    A(f"v_mov_b32 v7, 0")
    A("ds_write_b128 v3, v[4:7]")
    A("s_waitcnt lgkmcnt(0)")
    srd(A, sWS, 28, WS_SIZE)
    stamp(A, 0)
    if common.STAMPS:
        A(f"s_mul_i32 s69, s2, 12")
        A(f"s_add_u32 s69, s69, {s(sWave)}")
    A("s_barrier")
    A(f"s_cmp_ge_u32 {s(sWave)}, 8")
    A("s_cbranch_scc1 L_main_gemm")

    A(f"s_and_b32 {s(sT0)}, s2, 7")
    A(f"s_lshr_b32 {s(sQb)}, s2, 3")
    A(f"s_lshr_b32 {s(sHead)}, {s(sQb)}, 3")
    A(f"s_lshl_b32 {s(sT0)}, {s(sT0)}, 2")
    A(f"s_add_u32 {s(sHead)}, {s(sHead)}, {s(sT0)}")
    A(f"s_and_b32 {s(sQb)}, {s(sQb)}, 7")
    def signal(A):
        A.c("every wave drains its stores and counts itself in LDS; the last one raises the device-scope counter of the query block")
        A("s_waitcnt vmcnt(0)")
        stamp(A, 6)
        A(f"v_mov_b32 v3, {LDS_CNT_O}")
        A(f"v_mov_b32 v4, 1")
        A("s_mov_b64 exec, 1")
        A("ds_add_rtn_u32 v5, v3, v4")
        A("s_waitcnt lgkmcnt(0)")
        A(f"v_readfirstlane_b32 {s(sT0)}, v5")
        A(f"s_lshl_b32 {s(sT1)}, {s(sQb)}, 8")
        A(f"s_add_u32 {s(sT1)}, {s(sT1)}, {WS_FLAG}")
        A(f"s_cmp_lg_u32 {s(sT0)}, 7")
        A("s_cbranch_scc1 L_main_nosig")
        A("v_mov_b32 v3, 0")
        A(f"buffer_atomic_add v4, v3, {s(sWS,4)}, {s(sT1)} offen")
        A.label("L_main_nosig")
        A("s_mov_b64 exec, -1")
    def finish(A):
        stamp(A, 3)
        stamp_flush(A, 7, 69, sWS, 144)
        A("s_endpgm")
    attn3.role(A, sWS, sWave, sHead, sQb, 0, LDS_CNT, 2, on_stored=signal, variant=variant, done=finish)

    A.label("L_main_gemm")
    if "gprio" in variant: A("s_setprio 3")
    sW, sTb, sCq, sM, sB1, sB2, sA1, sA2, sA3, sXo = 21, 22, 25, 40, 41, 42, 43, 44, 45, 46
    srd(A, sWD, 4, F * D * 2)
    srd(A, sWO, 6, D * D * 2)
    srd(A, sXd, 30, S * D * 2)
    srd(A, sOut, 26, S * D * 2)
    A(f"s_sub_u32 {s(sW)}, {s(sWave)}, 8")
    A(f"s_and_b32 {s(sT0)}, s2, 7")
    A(f"s_lshr_b32 {s(sCq)}, s2, 3")
    A(f"s_lshr_b32 {s(sTb)}, {s(sCq)}, 2")
    A(f"s_lshl_b32 {s(sT0)}, {s(sT0)}, 3")
    A(f"s_add_u32 {s(sTb)}, {s(sTb)}, {s(sT0)}")
    A(f"s_and_b32 {s(sCq)}, {s(sCq)}, 3")
    vL, vA, vLin = 2, 3, 4
    vD = [5, 6, 7, 8, 9]; vDr = [10, 11, 12, 13, 14]
    AF = lambda i: 16 + 4 * i
    OF = lambda k: (16 + 4 * k) if k < 4 else (132 + 4 * (k - 4))
    WF = lambda j: 32 + 4 * j
    ACC = lambda j: 52 + 16 * j
    T = 156
    A(f"v_lshlrev_b32 {v(vLin)}, 4, {v(vL)}")
    out_setup(A, vL, vA, vD, vDr, T)
    A(f"s_mul_i32 {s(sM)}, {s(sW)}, {REG}")
    A(f"s_add_u32 {s(sM)}, {s(sM)}, {LDS_G}")
    A(f"v_add_u32 {v(vA)}, {s(sM)}, {v(vA)}")
    A(f"s_mul_i32 {s(sXo)}, {s(sTb)}, {32*1280}")
    A(f"s_mul_i32 {s(sT1)}, {s(sCq)}, 320")
    A(f"s_add_u32 {s(sXo)}, {s(sXo)}, {s(sT1)}")
    A(f"s_mul_i32 {s(sB1)}, {s(sW)}, {24*16*1280}")
    A(f"s_add_u32 {s(sB1)}, {s(sB1)}, {s(sT1)}")
    A(f"s_mul_i32 {s(sA1)}, {s(sTb)}, 96")
    A(f"s_mul_i32 {s(sT0)}, {s(sW)}, 24")
    A(f"s_add_u32 {s(sA1)}, {s(sA1)}, {s(sT0)}")
    A(f"s_lshl_b32 {s(sA1)}, {s(sA1)}, 10")
    A(f"s_add_u32 {s(sA1)}, {s(sA1)}, {WS_H}")

    def wdma(vd, desc, sbase, off, slot):
        for e in range(5):
            A(f"s_add_u32 m0, {s(sM)}, {slot*OUT_SLOT + e*1024}")
            A(f"s_add_u32 {s(sT0)}, {s(sbase)}, {off}")
            A(f"buffer_load_dwordx4 {v(vd[e])}, {s(desc,4)}, {s(sT0)} offen lds")
    def wreads(slot, j):
        return [f"ds_read_b64_tr_b16 {v(WF(j)+2*i,2)}, {v(vA)} offset:{slot*OUT_SLOT + i*2560 + j*64}" for i in range(2)]
    mf = lambda j, b: f"v_mfma_f32_32x32x16_bf16 {v(ACC(j),16)}, {v(WF(j),4)}, {v(b,4)}, {v(ACC(j),16)}"

    sBh, sAh, sCnt = 47, 48, 49
    A(f"s_mov_b32 {s(sBh)}, {s(sB1)}")
    A(f"s_mov_b32 {s(sAh)}, {s(sA1)}")
    def issue_h(slot):
        wdma(vD, sWD, sBh, 0, slot)
        A(f"buffer_load_dwordx4 {v(AF(slot),4)}, {v(vLin)}, {s(sWS,4)}, {s(sAh)} offen")
        A(f"s_add_u32 {s(sBh)}, {s(sBh)}, {16*1280}")
        A(f"s_add_u32 {s(sAh)}, {s(sAh)}, 1024")
    for k in range(3): issue_h(k)
    A.c("accumulators start from the residual x: wave w adds register group w of every column tile")
    for r in range(ACC(0), ACC(4) + 16): A(f"v_mov_b32 {v(r)}, 0")
    A(f"v_and_b32 {v(T)}, 31, {v(vL)}")
    A(f"v_mul_u32_u24 {v(T)}, 1280, {v(T)}")
    A(f"v_lshrrev_b32 {v(T+1)}, 5, {v(vL)}")
    A(f"v_lshl_add_u32 {v(T)}, {v(T+1)}, 3, {v(T)}")
    A(f"s_lshl_b32 {s(sT1)}, {s(sW)}, 4")
    A(f"s_add_u32 {s(sT1)}, {s(sT1)}, {s(sXo)}")
    XR = 132
    for j in range(5):
        A(f"buffer_load_dwordx2 {v(XR+2*j,2)}, {v(T)}, {s(sXd,4)}, {s(sT1)} offen offset:{64*j}")
    A("s_waitcnt vmcnt(0)")
    for w in range(4):
        if w < 3:
            A(f"s_cmp_lg_u32 {s(sW)}, {w}")
            A(f"s_cbranch_scc1 L_main_res{w}")
        for j in range(5):
            for e in range(2):
                A(f"v_lshlrev_b32 {v(ACC(j)+4*w+2*e)}, 16, {v(XR+2*j+e)}")
                A(f"v_and_b32 {v(ACC(j)+4*w+2*e+1)}, 0xffff0000, {v(XR+2*j+e)}")
        if w < 3:
            A("s_branch L_main_resdone")
            A.label(f"L_main_res{w}")
    A.label("L_main_resdone")
    for j in range(5):
        for ln in wreads(0, j): A(ln)
    A(f"s_mov_b32 {s(sCnt)}, 6")
    A.label("L_main_hloop")
    for k in range(4):
        A.c("step k+1 must have landed before its fragments are read; two younger steps may be in flight")
        A("s_waitcnt vmcnt(6)")
        for j in range(5):
            A("s_waitcnt lgkmcnt(8)")
            A(mf(j, AF(k)))
            for ln in wreads((k + 1) & 3, j): A(ln)
        issue_h((k + 3) & 3)
    A(f"s_sub_u32 {s(sCnt)}, {s(sCnt)}, 1")
    A(f"s_cmp_lg_u32 {s(sCnt)}, 0")
    A("s_cbranch_scc1 L_main_hloop")
    stamp(A, 1)

    A("s_waitcnt vmcnt(0) lgkmcnt(0)")
    A(f"s_mul_i32 {s(sT1)}, {s(sCq)}, 320")
    A(f"s_mul_i32 {s(sB1)}, {s(sW)}, {8*20*1280}")
    A(f"s_add_u32 {s(sB1)}, {s(sB1)}, {s(sT1)}")
    A(f"s_add_u32 {s(sB2)}, {s(sB1)}, {16*1280}")
    A(f"s_lshl_b32 {s(sA1)}, {s(sTb)}, 5")
    A(f"s_lshl_b32 {s(sT0)}, {s(sW)}, 3")
    A(f"s_add_u32 {s(sT0)}, {s(sT0)}, {s(sA1)}")
    A(f"s_lshl_b32 {s(sA2)}, {s(sT0)}, 10")
    A(f"s_add_u32 {s(sA2)}, {s(sA2)}, {WS_O}")
    A(f"s_lshl_b32 {s(sA3)}, {s(sT0)}, 8")
    A(f"s_add_u32 {s(sA3)}, {s(sA3)}, {WS_OR}")
    A.c("leftover steps: lane (t, h) takes units 2h and 2h+1 of four heads")
    vRem = T + 2
    A(f"v_and_b32 {v(vRem)}, 31, {v(vL)}")
    A(f"v_lshlrev_b32 {v(vRem)}, 3, {v(vRem)}")
    A(f"v_lshrrev_b32 {v(T+3)}, 5, {v(vL)}")
    A(f"v_lshl_add_u32 {v(vRem)}, {v(T+3)}, 9, {v(vRem)}")
    osteps = [(vD, sB1, k * 20 * 1280, sA2, k * 1024) for k in range(8)] + [(vDr, sB2, k * 80 * 1280, sA3, k * 1024) for k in range(2)]
    for k in range(4): wdma(osteps[k][0], sWO, osteps[k][1], osteps[k][2], k)
    A.c("touch the remaining Wo rows of this wave so that they are L2 hits later")
    for k in range(4, 10):
        for e in range(5):
            A(f"s_add_u32 {s(sT0)}, {s(osteps[k][1])}, {osteps[k][2]}")
            A(f"buffer_load_dwordx4 {v(132,4)}, {v(osteps[k][0][e])}, {s(sWO,4)}, {s(sT0)} offen")
    A("s_waitcnt vmcnt(0)")
    for j in range(5):
        for ln in wreads(0, j): A(ln)
    A(f"s_lshr_b32 {s(sT1)}, {s(sTb)}, 3")
    A(f"s_lshl_b32 {s(sT1)}, {s(sT1)}, 8")
    A(f"s_add_u32 {s(sT1)}, {s(sT1)}, {WS_FLAG}")
    global_wait(A, "o", sWS, sT1, 32, T, 50, 78)
    stamp(A, 2)
    for k in range(8):
        A(f"s_add_u32 {s(sT0)}, {s(sA2)}, {k*1024}")
        A(f"buffer_load_dwordx4 {v(OF(k),4)}, {v(vLin)}, {s(sWS,4)}, {s(sT0)} offen sc1")
    for k in range(2):
        for i in range(2):
            A(f"buffer_load_dwordx2 {v(OF(8+k)+2*i,2)}, {v(vRem)}, {s(sWS,4)}, {s(sA3)} offen offset:{k*1024 + i*256} sc1")
    waits = [11, 15, 19, 10, 10, 10, 10, 5, 0, None]
    for k in range(10):
        if waits[k] is not None: A(f"s_waitcnt vmcnt({waits[k]})")
        for j in range(5):
            A(f"s_waitcnt lgkmcnt({8 if k < 9 else 2*(4-j)})")
            A(mf(j, OF(k)))
            if k < 9:
                for ln in wreads((k + 1) & 3, j): A(ln)
        if k + 4 < 10:
            wdma(osteps[k+4][0], sWO, osteps[k+4][1], osteps[k+4][2], k & 3)
    stamp(A, 3)
    A(f"v_and_b32 {v(T)}, 31, {v(vL)}")
    A(f"v_mul_u32_u24 {v(T)}, {PITCH}, {v(T)}")
    A(f"v_lshrrev_b32 {v(T+1)}, 5, {v(vL)}")
    A(f"v_lshl_add_u32 {v(T)}, {v(T+1)}, 4, {v(T)}")
    A(f"v_add_u32 {v(T)}, {s(sM)}, {v(T)}")
    A(f"v_mov_b32 {v(T+2)}, {LDS_CNT_G}")
    A(f"v_mov_b32 {v(T+3)}, 1")
    vTid = T + 4
    A(f"v_subrev_u32 {v(vTid)}, 512, v0")
    vXo = [T + 5, T + 6, T + 7]; vRo = [T + 8, T + 9, T + 10]
    for i in range(3):
        A(f"v_add_u32 v16, {256*i}, {v(vTid)}")
        A(f"v_mul_u32_u24 v17, 52429, v16")
        A(f"v_lshrrev_b32 v17, 20, v17")
        A(f"v_mul_u32_u24 v18, 20, v17")
        A(f"v_sub_u32 v18, v16, v18")
        A(f"v_mul_u32_u24 v19, 1280, v17")
        A(f"v_lshl_add_u32 {v(vXo[i])}, v18, 4, v19")
        A(f"v_mul_u32_u24 v19, {PITCH}, v17")
        A(f"v_lshl_add_u32 v19, v18, 5, v19")
        A(f"v_add_u32 {v(vRo[i])}, {LDS_G}, v19")
    for j in range(5):
        for g in range(4):
            A(f"ds_write_b128 {v(T)}, {v(ACC(j)+4*g,4)} offset:{j*128 + g*32}")
    A("s_waitcnt lgkmcnt(0)")
    lds_arrive(A, T + 2, T + 3)
    A(f"s_mov_b32 {s(sT1)}, 4")
    lds_wait(A, "gred", T + 2, T + 11, sT0, sT1)
    P0 = 16
    for i in range(3):
        if i == 2:
            A(f"v_cmp_gt_u32 vcc, 128, {v(vTid)}")
            A("s_nop 0")
            A("s_and_saveexec_b64 s[50:51], vcc")
            A("s_cbranch_execz L_main_gdone")
        for w in range(4):
            for hh in range(2):
                A(f"ds_read_b128 {v(P0+8*w+4*hh,4)}, {v(vRo[i])} offset:{w*REG + 16*hh}")
        A("s_waitcnt lgkmcnt(0)")
        for e in range(8):
            A(f"v_add_f32 {v(P0+e)}, {v(P0+e)}, {v(P0+8+e)}")
            A(f"v_add_f32 {v(P0+16+e)}, {v(P0+16+e)}, {v(P0+24+e)}")
        for e in range(8):
            A(f"v_add_f32 {v(P0+e)}, {v(P0+e)}, {v(P0+16+e)}")
        for e in range(4):
            A(f"v_cvt_pk_bf16_f32 {v(P0+32+e)}, {v(P0+2*e)}, {v(P0+2*e+1)}")
        A(f"buffer_store_dwordx4 {v(P0+32,4)}, {v(vXo[i])}, {s(sOut,4)}, {s(sXo)} offen")
        A("s_nop 1")
    A.label("L_main_gdone")
    A("s_mov_b64 exec, -1")
    stamp(A, 4)
    stamp_flush(A, 5, 69, sWS, 16)
    A.label("L_main_end")
    A("s_endpgm")
    return NAME, 768, LDS_BYTES, descriptor(NAME, NV)

def zero_flags(A, sWS, sLw, sRb, sCt, vL):
    A(f"s_load_dwordx2 s[4:5], s[0:1], {K_WD}")
    A(f"s_load_dwordx2 s[6:7], s[0:1], {K_WO}")
    A(f"s_or_b32 s31, s2, {s(sLw)}")
    A("s_cmp_lg_u32 s31, 0")
    A("s_cbranch_scc1 L_k1_noflag")
    A(f"v_lshlrev_b32 v10, 8, {v(vL)}")
    A("v_mov_b32 v11, 0")
    A(f"s_mov_b32 s31, {WS_FLAG}")
    A(f"buffer_store_dword v11, v10, {s(sWS,4)}, s31 offen")
    A.label("L_k1_noflag")
    if PREFETCH_W:
        A("s_waitcnt lgkmcnt(0)")
        srd(A, 8, 4, F * D * 2)
        srd(A, 12, 6, D * D * 2)
        A.c("1024 helper waves: two KiB of Wd each (1920 KiB), one KiB of Wo for the first 800")
        A(f"s_lshl_b32 s31, s2, 2")
        A(f"s_add_u32 s31, s31, {s(sLw)}")
        A(f"v_lshlrev_b32 v10, 4, {v(vL)}")
        A(f"s_lshl_b32 s32, s31, 11")
        A(f"buffer_load_dwordx4 v[16:19], v10, s[8:11], s32 offen")
        A(f"buffer_load_dwordx4 v[20:23], v10, s[8:11], s32 offen offset:1024")
        A(f"s_lshl_b32 s32, s31, 10")
        A(f"buffer_load_dwordx4 v[24:27], v10, s[12:15], s32 offen")
    if PREFETCH_CODE:
        A(f"s_cmp_ge_u32 s2, 8")
        A("s_cbranch_scc1 L_k1_nocode")
        code_prefetch(A, "k2code", NAME, 4, 46, 12, 28, vL)
        A.label("L_k1_nocode")
PREFETCH_W = True
PREFETCH_CODE = False
```

```python
from common import *
import common

NAME = "proj_kernel"
XS, WSZ = 16384, 20480
NXS, NWS = 3, 5
LDS_X = 0
LDS_W = NXS * XS
LDS_STATS = LDS_W + NWS * WSZ
LDS_CS = LDS_STATS + 1024
LDS_BYTES = LDS_CS + 1280
NV = 256
IMG = {0: dict(q=(0, 128, 1), g=(4096, 256, 2), u=(12288, 256, 2)),
       1: dict(q=(0, 384, 3), g=(12288, 128, 1), u=(16384, 128, 1))}
SLOTS = {0: [("q", 0, 1), ("g", 0, 2), ("u", 0, 2), ("g", 1, 2), ("u", 1, 2)],
         1: [("q", 0, 3), ("q", 1, 3), ("q", 2, 3), ("g", 0, 1), ("u", 0, 1)]}

def frag_addrs(A, typ, dst, vL, sCol, vT, extra_rows_s=None):
    vR, vRow, vIn, vB = vT, vT + 1, vT + 2, vT + 3
    A(f"v_bfe_u32 {v(vR)}, {v(vL)}, 2, 2")
    A(f"v_lshrrev_b32 {v(vRow)}, 5, {v(vL)}")
    A(f"v_lshl_add_u32 {v(vRow)}, {v(vRow)}, 3, {v(vR)}")
    if extra_rows_s is not None: A(f"v_add_u32 {v(vRow)}, {s(extra_rows_s)}, {v(vRow)}")
    A(f"v_bfe_u32 {v(vIn)}, {v(vL)}, 4, 1")
    A(f"v_lshlrev_b32 {v(vIn)}, 5, {v(vIn)}")
    A(f"v_and_b32 {v(vB)}, 3, {v(vL)}")
    A(f"v_lshl_add_u32 {v(vIn)}, {v(vB)}, 3, {v(vIn)}")
    for j, (kind, b0, step) in enumerate(SLOTS[typ]):
        off, pitch, n = IMG[typ][kind]
        A(f"s_mul_i32 s64, {s(sCol)}, {step}")
        A(f"s_add_u32 s64, s64, {b0}")
        if n == 2:
            A(f"v_xor_b32 {v(vB)}, s64, {v(vR)}")
        else:
            A(f"v_lshrrev_b32 {v(vB)}, 1, {v(vR)}")
            A(f"v_xor_b32 {v(vB)}, s64, {v(vB)}")
        A(f"v_lshl_add_u32 {v(vB)}, {v(vB)}, 6, {v(vIn)}")
        A(f"v_mul_u32_u24 {v(dst[j])}, {pitch}, {v(vRow)}")
        A(f"v_add_u32 {v(dst[j])}, {v(dst[j])}, {v(vB)}")
        A(f"v_add_u32 {v(dst[j])}, {LDS_W + off}, {v(dst[j])}")

def gen(A, prefetch=None, variant="", extra_tail=None):
    sX, sW, sG, sU, sWS = 8, 12, 16, 20, 24
    sWave, sRb, sCt, sT0, sT1, sT2, sT3, sI = 28, 29, 30, 31, 32, 33, 34, 35
    kernel_header(A, NAME)
    A("s_cmp_ge_u32 s2, 256")
    A("s_cbranch_scc1 L_k1_end")
    A(f"s_load_dwordx4 s[4:7], s[0:1], {K_X}")
    A(f"s_load_dwordx4 s[36:39], s[0:1], {K_WG}")
    A(f"s_load_dwordx2 s[40:41], s[0:1], {K_WS}")
    A("v_lshrrev_b32 v1, 6, v0")
    A("v_and_b32 v2, 63, v0")
    A(f"v_readfirstlane_b32 {s(sWave)}, v1")
    A.c("workgroup -> (row block, column tile): each XCD covers 8 row blocks x 4 column tiles")
    A(f"s_and_b32 {s(sT0)}, s2, 7")
    A(f"s_lshr_b32 {s(sT1)}, s2, 3")
    A(f"s_and_b32 {s(sRb)}, {s(sT0)}, 1")
    A(f"s_lshl_b32 {s(sRb)}, {s(sRb)}, 3")
    A(f"s_and_b32 {s(sT2)}, {s(sT1)}, 7")
    A(f"s_add_u32 {s(sRb)}, {s(sRb)}, {s(sT2)}")
    A(f"s_lshr_b32 {s(sCt)}, {s(sT0)}, 1")
    A(f"s_lshl_b32 {s(sCt)}, {s(sCt)}, 2")
    A(f"s_lshr_b32 {s(sT2)}, {s(sT1)}, 3")
    A(f"s_add_u32 {s(sCt)}, {s(sCt)}, {s(sT2)}")
    A(f"s_and_b32 {s(sI)}, {s(sCt)}, 7")
    A("s_waitcnt lgkmcnt(0)")
    srd(A, sX, 4, S * D * 2)
    srd(A, sW, 6, D * 3 * D * 2)
    srd(A, sG, 36, D * F * 2)
    srd(A, sU, 38, D * F * 2)
    srd(A, sWS, 40, WS_SIZE)
    vL = 2
    stamp(A, 0)
    if "tlb" in variant:
        A.c("touch every page of the buffers early so that address translation misses overlap")
        A(f"v_lshlrev_b32 v3, 19, {v(vL)}")
        for k, d in enumerate((sX, sW, sG, sU, sWS)):
            A(f"s_cmp_lg_u32 {s(sWave)}, {k}")
            A(f"s_cbranch_scc1 L_k1_tlb{k}")
            A(f"buffer_load_dword v31, v3, {s(d,4)}, 0 offen")
            A.label(f"L_k1_tlb{k}")
    if common.STAMPS:
        A(f"s_lshl_b32 s69, s2, 3")
        A(f"s_add_u32 s69, s69, {s(sWave)}")
    A(f"s_cmp_ge_u32 {s(sWave)}, 4")
    A("s_cbranch_scc1 L_k1_loader")

    vT, vHf = 3, 4
    vXa = [[5 + 4 * sg + k for k in range(4)] for sg in range(2)]
    vWa = [13, 14, 15, 16, 17]
    vSum, vSq = [18, 19], [20, 21]
    vU = [22, 23, 24, 25]
    vTmp = 26
    FX = lambda p, sg: 32 + 28 * p + 4 * sg
    FW = lambda p, j: 32 + 28 * p + 8 + 4 * j
    ACC = lambda j, sg: 96 + 32 * j + 16 * sg
    sWm, sWn, sTT0, sTT1 = 42, 43, 44, 45
    A(f"s_lshr_b32 {s(sWm)}, {s(sWave)}, 1")
    A(f"s_and_b32 {s(sWn)}, {s(sWave)}, 1")
    A(f"s_lshl_b32 {s(sT0)}, {s(sWm)}, 1")
    A(f"s_add_u32 {s(sTT0)}, {s(sT0)}, {s(sWn)}")
    A(f"s_xor_b32 {s(sTT1)}, {s(sTT0)}, 1")
    A(f"v_and_b32 {v(vT)}, 31, {v(vL)}")
    A(f"v_lshrrev_b32 {v(vHf)}, 5, {v(vL)}")
    A.c("x fragment addresses: t*128 + 16*((2s+h) ^ ((t>>1)&7)) + tile*4096")
    A(f"v_bfe_u32 {v(vTmp)}, {v(vT)}, 1, 3")
    A(f"v_xor_b32 {v(vTmp)}, {v(vTmp)}, {v(vHf)}")
    A(f"v_lshlrev_b32 {v(vTmp)}, 4, {v(vTmp)}")
    A(f"v_lshl_add_u32 {v(vTmp)}, {v(vT)}, 7, {v(vTmp)}")
    for sg, st in ((0, sTT0), (1, sTT1)):
        A(f"s_lshl_b32 {s(sT0)}, {s(st)}, 12")
        A(f"v_add_u32 {v(vXa[sg][0])}, {s(sT0)}, {v(vTmp)}")
        for k in range(1, 4):
            A(f"v_xor_b32 {v(vXa[sg][k])}, {32*k}, {v(vXa[sg][0])}")
    for r in vSum + vSq: A(f"v_mov_b32 {v(r)}, 0")
    if "sdot" in variant: A(f"v_mov_b32 {v(vU[0])}, 0x3f803f80")
    for r in range(96, 256): A(f"v_mov_b32 {v(r)}, 0")

    def mainloop(typ):
        pitch = [IMG[typ][k][1] for (k, _, _) in SLOTS[typ]]
        tag = f"L_k1_loop{typ}"
        sXs, sWsl, sCnt, sDw, sDx = 50, 51, 52, 53, 63
        frag_addrs(A, typ, vWa, vL, sWn, vTmp)
        if prefetch: prefetch(A, f"k1_{typ}", tag, typ)
        def reads(p, sub):
            out = [f"ds_read_b128 {v(FX(p,sg),4)}, {v(vXa[sg][sub])}" for sg in range(2)]
            for j in range(5):
                for i in range(2):
                    out.append(f"ds_read_b64_tr_b16 {v(FW(p,j)+2*i,2)}, {v(vWa[j])} offset:{(16*(sub&1)+4*i)*pitch[j]}")
            return out
        if "prio" in variant: A("s_setprio 2")
        A("s_barrier")
        stamp(A, 2)
        for ln in reads(0, 0): A(ln)
        A(f"s_mov_b32 {s(sXs)}, 0")
        A(f"s_mov_b32 {s(sWsl)}, 0")
        A(f"s_mov_b32 {s(sCnt)}, 10")
        A(".p2align 3")
        A.label(tag)
        if "trips" in variant:
            A("s_memtime s[66:67]")
            A("s_waitcnt lgkmcnt(0)")
            A("s_sub_u32 s66, s66, s80")
            A("v_mov_b32 v26, s66")
            A(f"s_lshl_b32 s67, s69, 6")
            A(f"s_sub_u32 s66, 10, {s(sCnt)}")
            A("s_lshl_b32 s66, s66, 2")
            A("s_add_u32 s67, s67, s66")
            A(f"s_add_u32 s67, s67, {WS_STAMP + 0x40000}")
            A("v_mov_b32 v27, 0")
            A(f"buffer_store_dword v26, v27, {s(sWS,4)}, s67 offen")
        for n in range(4):
            p = n & 1; nn = (n + 1) & 3
            if n & 1: A("s_barrier")
            mf = lambda j, sg: f"v_mfma_f32_32x32x16_bf16 {v(ACC(j,sg),16)}, {v(FW(p,j),4)}, {v(FX(p,sg),4)}, {v(ACC(j,sg),16)}"
            st = []
            for k in range(4):
                r = FX(p, 0) + k; lo, hi = vU[2 * (k & 1)], vU[2 * (k & 1) + 1]
                st += [f"v_lshlrev_b32 {v(lo)}, 16, {v(r)}", f"v_and_b32 {v(hi)}, 0xffff0000, {v(r)}",
                       f"v_add_f32 {v(vSum[0])}, {v(vSum[0])}, {v(lo)}", f"v_add_f32 {v(vSum[1])}, {v(vSum[1])}, {v(hi)}",
                       f"v_fmac_f32 {v(vSq[0])}, {v(lo)}, {v(lo)}", f"v_fmac_f32 {v(vSq[1])}, {v(hi)}, {v(hi)}"]
            if "sdot" in variant:
                st = []
                for k in range(4):
                    st += [f"v_dot2c_f32_bf16 {v(vSum[0])}, {v(FX(p,0)+k)}, {v(vU[0])}", f"v_dot2c_f32_bf16 {v(vSq[0])}, {v(FX(p,0)+k)}, {v(FX(p,0)+k)}"]
            rd = reads(1 - p, nn)
            gap = {m: [] for m in range(10)}
            updx = lambda k: [f"v_add_u32 {v(vXa[sg][k])}, {s(sDx)}, {v(vXa[sg][k])}" for sg in range(2)]
            updw = lambda j: [f"v_add_u32 {v(vWa[j])}, {s(sDw)}, {v(vWa[j])}"]
            if n == 3: gap[0] += updx(0)
            gap[0] += rd[0:2]
            for j in range(5):
                m = 1 + 2 * j
                if n & 1: gap[m] += updw(j)
                gap[m] += rd[2 + 2 * j: 4 + 2 * j]
            tail = []
            if n == 3:
                for k in range(1, 4): tail += updx(k)
            if n & 1 == 0:
                tail += [f"s_add_u32 {s(sT0)}, {s(sWsl)}, {WSZ}", f"s_cmp_eq_u32 {s(sT0)}, {NWS*WSZ}", f"s_cselect_b32 {s(sT0)}, 0, {s(sT0)}",
                         f"s_sub_u32 {s(sDw)}, {s(sT0)}, {s(sWsl)}", f"s_mov_b32 {s(sWsl)}, {s(sT0)}"]
                if n == 2:
                    tail += [f"s_add_u32 {s(sT0)}, {s(sXs)}, {XS}", f"s_cmp_eq_u32 {s(sT0)}, {NXS*XS}", f"s_cselect_b32 {s(sT0)}, 0, {s(sT0)}",
                             f"s_sub_u32 {s(sDx)}, {s(sT0)}, {s(sXs)}", f"s_mov_b32 {s(sXs)}, {s(sT0)}"]
            fill = st + tail
            quota = {m: 0 for m in range(10)}
            room = {m: max(0, 5 - len(gap[m])) for m in range(10)}
            left = len(fill)
            while left:
                progressed = False
                for m in range(10):
                    if left and quota[m] < room[m]:
                        quota[m] += 1; left -= 1; progressed = True
                if not progressed:
                    for m in range(10):
                        if left: quota[m] += 1; left -= 1
            fi = 0
            for m, (j, sg) in enumerate([(j, sg) for j in range(5) for sg in range(2)]):
                if sg == 0: A(f"s_waitcnt lgkmcnt({8 if j == 0 else 10})")
                A(mf(j, sg))
                for ln in gap[m]: A(ln)
                for ln in fill[fi:fi + quota[m]]: A(ln)
                fi += quota[m]
        A(f"s_sub_u32 {s(sCnt)}, {s(sCnt)}, 1")
        A(f"s_cmp_lg_u32 {s(sCnt)}, 0")
        A(f"s_cbranch_scc1 {tag}")

    A(f"s_cmp_ge_u32 {s(sCt)}, 8")
    A("s_cbranch_scc1 L_k1_main1")
    mainloop(0)
    A("s_branch L_k1_post")
    A.label("L_k1_main1")
    mainloop(1)
    A.label("L_k1_post")
    stamp(A, 3)

    t0, t1 = vTmp, vTmp + 1
    A("s_waitcnt vmcnt(0) lgkmcnt(0)")
    A("s_nop 2")
    A(f"v_add_f32 {v(vSum[0])}, {v(vSum[0])}, {v(vSum[1])}")
    A(f"v_add_f32 {v(vSq[0])}, {v(vSq[0])}, {v(vSq[1])}")
    A(f"s_lshl_b32 {s(sT0)}, {s(sTT0)}, 8")
    A(f"s_add_u32 {s(sT0)}, {s(sT0)}, {LDS_STATS}")
    A(f"v_mov_b32 v32, {v(vSum[0])}")
    A(f"v_mov_b32 v33, {v(vSq[0])}")
    A(f"v_lshl_add_u32 {v(t0)}, {v(vT)}, 3, {s(sT0)}")
    A("s_nop 0")
    A(f"v_permlane32_swap_b32 {v(vSum[0])}, v32")
    A(f"v_permlane32_swap_b32 {v(vSq[0])}, v33")
    A("s_nop 0")
    A(f"v_add_f32 {v(vSum[0])}, {v(vSum[0])}, v32")
    A(f"v_add_f32 {v(vSq[0])}, {v(vSq[0])}, v33")
    vMu, vRs = 40, 41
    A(f"v_mul_f32 {v(vMu)}, {f32bits(1.0/D):#x}, {v(vSum[0])}")
    A(f"v_mul_f32 {v(t1)}, {f32bits(1.0/D):#x}, {v(vSq[0])}")
    A(f"v_fma_f32 {v(t1)}, -{v(vMu)}, {v(vMu)}, {v(t1)}")
    A(f"v_max_f32 {v(t1)}, 0, {v(t1)}")
    A(f"v_add_f32 {v(t1)}, {f32bits(1e-5):#x}, {v(t1)}")
    A(f"v_rsq_f32 {v(vRs)}, {v(t1)}")
    A("s_nop 0")
    A(f"ds_write_b64 {v(t0)}, {v(vMu,2)}")
    A("s_waitcnt lgkmcnt(0)")
    A("s_barrier")
    stamp(A, 4)
    ST = [6, 8]
    for sg, st in ((0, sTT0), (1, sTT1)):
        A(f"s_lshl_b32 {s(sT0)}, {s(st)}, 8")
        A(f"s_add_u32 {s(sT0)}, {s(sT0)}, {LDS_STATS}")
        A(f"v_lshl_add_u32 {v(t0)}, {v(vT)}, 3, {s(sT0)}")
        A(f"ds_read_b64 {v(ST[sg],2)}, {v(t0)}")
    vCsA = 5
    A(f"s_mul_i32 {s(sT0)}, {s(sWn)}, 640")
    A(f"s_add_u32 {s(sT0)}, {s(sT0)}, {LDS_CS}")
    A(f"v_lshl_add_u32 {v(vCsA)}, {v(vHf)}, 4, {s(sT0)}")
    NMU = [10, 12]; RF = [14, 16]; TM = 18; PK = 26
    CS = lambda u, g: 32 + 16 * u + 4 * g
    def load_cs(j, u):
        for g in range(4): A(f"ds_read_b128 {v(CS(u,g),4)}, {v(vCsA)} offset:{128*j + 32*g}")
    vQo, vLin = 30, 31
    A(f"v_lshlrev_b32 {v(vQo)}, 3, {v(vT)}")
    A(f"v_lshl_add_u32 {v(vQo)}, {v(vHf)}, 14, {v(vQo)}")
    A(f"v_lshlrev_b32 {v(vLin)}, 4, {v(vL)}")
    sTok = [54, 55]; sHb = [56, 57]; sU0, sFac = 58, 59
    for sg, st in ((0, sTT0), (1, sTT1)):
        A(f"s_lshl_b32 {s(sT0)}, {s(sRb)}, 2")
        A(f"s_add_u32 {s(sT0)}, {s(sT0)}, {s(st)}")
        A(f"s_lshl_b32 {s(sTok[sg])}, {s(sT0)}, 8")
        A(f"s_add_u32 {s(sTok[sg])}, {s(sTok[sg])}, {WS_QKV}")
        A(f"s_mul_i32 {s(sHb[sg])}, {s(sT0)}, {96*1024}")
        A(f"s_add_u32 {s(sHb[sg])}, {s(sHb[sg])}, {WS_H}")
    A("s_waitcnt lgkmcnt(0)")
    for sg in range(2):
        A(f"v_sub_f32 {v(NMU[sg])}, 0, {v(ST[sg])}")
        A(f"v_mov_b32 {v(RF[sg])}, {v(ST[sg]+1)}")
        A(f"v_mul_f32 {v(RF[sg]+1)}, {f32bits(-LOG2E):#x}, {v(ST[sg]+1)}")

    def q_tile(j, u):
        A(f"s_cmp_lt_u32 {s(sU0)}, 160")
        A(f"s_cselect_b32 {s(sFac)}, {f32bits(QSCALE):#x}, 1.0")
        A(f"s_lshl_b32 {s(sT1)}, {s(sU0)}, 14")
        QF = [20, 22]
        for sg in range(2): A(f"v_mul_f32 {v(QF[sg])}, {s(sFac)}, {v(ST[sg]+1)}")
        for g in range(4):
            for sg in range(2):
                acc = ACC(j, sg) + 4 * g
                for e in range(2):
                    A(f"v_pk_fma_f32 {v(acc+2*e,2)}, {v(CS(u,g)+2*e,2)}, {v(NMU[sg],2)}, {v(acc+2*e,2)} op_sel_hi:[1,0,1]")
            for sg in range(2):
                acc = ACC(j, sg) + 4 * g
                for e in range(2):
                    A(f"v_pk_mul_f32 {v(acc+2*e,2)}, {v(acc+2*e,2)}, {v(QF[sg],2)} op_sel_hi:[1,0]")
            for sg in range(2):
                acc = ACC(j, sg) + 4 * g
                for e in range(2):
                    A(f"v_cvt_pk_bf16_f32 {v(acc+e)}, {v(acc+2*e)}, {v(acc+2*e+1)}")
            for sg in range(2):
                A(f"s_add_u32 {s(sT0)}, {s(sT1)}, {s(sTok[sg])}")
                A(f"s_add_u32 {s(sT0)}, {s(sT0)}, {2*g*PLANE}")
                A(f"buffer_store_dwordx2 {v(ACC(j,sg)+4*g,2)}, {v(vQo)}, {s(sWS,4)}, {s(sT0)} offen")

    def gu_pair(jg, ju, step_s):
        for sg in range(2):
            g0, u0 = ACC(jg, sg), ACC(ju, sg)
            for g in range(4):
                for e in range(2):
                    A(f"v_pk_fma_f32 {v(g0+4*g+2*e,2)}, {v(CS(0,g)+2*e,2)}, {v(NMU[sg],2)}, {v(g0+4*g+2*e,2)} op_sel_hi:[1,0,1]")
                    A(f"v_pk_fma_f32 {v(u0+4*g+2*e,2)}, {v(CS(1,g)+2*e,2)}, {v(NMU[sg],2)}, {v(u0+4*g+2*e,2)} op_sel_hi:[1,0,1]")
            for half in range(2):
                o = 8 * half
                for e in range(4):
                    A(f"v_pk_mul_f32 {v(TM+2*e,2)}, {v(g0+o+2*e,2)}, {v(RF[sg],2)} op_sel:[0,1] op_sel_hi:[1,1]")
                for e in range(4):
                    A(f"v_pk_mul_f32 {v(g0+o+2*e,2)}, {v(g0+o+2*e,2)}, {v(RF[sg],2)} op_sel_hi:[1,0]")
                for e in range(8): A(f"v_exp_f32 {v(TM+e)}, {v(TM+e)}")
                for e in range(4):
                    A(f"v_pk_mul_f32 {v(u0+o+2*e,2)}, {v(u0+o+2*e,2)}, {v(RF[sg],2)} op_sel_hi:[1,0]")
                for e in range(4):
                    A(f"v_pk_add_f32 {v(TM+2*e,2)}, {v(TM+2*e,2)}, 1.0 op_sel_hi:[1,0]")
                for e in range(4):
                    A(f"v_pk_mul_f32 {v(u0+o+2*e,2)}, {v(u0+o+2*e,2)}, {v(g0+o+2*e,2)}")
                for e in range(8): A(f"v_rcp_f32 {v(TM+e)}, {v(TM+e)}")
                A(f"s_add_u32 {s(sT0)}, {s(step_s)}, {half}")
                A(f"s_lshl_b32 {s(sT0)}, {s(sT0)}, 10")
                A(f"s_add_u32 {s(sT0)}, {s(sT0)}, {s(sHb[sg])}")
                for e in range(4):
                    A(f"v_pk_mul_f32 {v(u0+o+2*e,2)}, {v(u0+o+2*e,2)}, {v(TM+2*e,2)}")
                for e in range(4):
                    A(f"v_cvt_pk_bf16_f32 {v(g0+o+e)}, {v(u0+o+2*e)}, {v(u0+o+2*e+1)}")
                A(f"buffer_store_dwordx4 {v(g0+o,4)}, {v(vLin)}, {s(sWS,4)}, {s(sT0)} offen")

    sStep = 60
    A(f"s_cmp_ge_u32 {s(sCt)}, 8")
    A("s_cbranch_scc1 L_k1_epi1")
    A.c("type A: unit 16i + 8wn, gate tiles at step 8i + 4wn + 2e")
    load_cs(0, 2)
    load_cs(1, 0); load_cs(2, 1)
    A(f"s_lshl_b32 {s(sU0)}, {s(sI)}, 4")
    A(f"s_lshl_b32 {s(sT0)}, {s(sWn)}, 3")
    A(f"s_add_u32 {s(sU0)}, {s(sU0)}, {s(sT0)}")
    A(f"s_lshr_b32 {s(sStep)}, {s(sU0)}, 1")
    A("s_waitcnt lgkmcnt(8)")
    q_tile(0, 2)
    A("s_waitcnt lgkmcnt(0)")
    gu_pair(1, 2, sStep)
    load_cs(3, 0); load_cs(4, 1)
    A(f"s_add_u32 {s(sStep)}, {s(sStep)}, 2")
    A("s_waitcnt lgkmcnt(0)")
    gu_pair(3, 4, sStep)
    A("s_branch L_k1_done")
    A.label("L_k1_epi1")
    A.c("type B: units 128 + 48i + 24wn + 8q (only below 480), gate tile at step 64 + 4i + 2wn")
    load_cs(0, 2)
    load_cs(3, 0); load_cs(4, 1)
    A(f"s_mul_i32 {s(sU0)}, {s(sI)}, 48")
    A(f"s_mul_i32 {s(sT0)}, {s(sWn)}, 24")
    A(f"s_add_u32 {s(sU0)}, {s(sU0)}, {s(sT0)}")
    A(f"s_add_u32 {s(sU0)}, {s(sU0)}, 128")
    A(f"s_lshl_b32 {s(sStep)}, {s(sI)}, 2")
    A(f"s_lshl_b32 {s(sT0)}, {s(sWn)}, 1")
    A(f"s_add_u32 {s(sStep)}, {s(sStep)}, {s(sT0)}")
    A(f"s_add_u32 {s(sStep)}, {s(sStep)}, 64")
    A("s_waitcnt lgkmcnt(0)")
    gu_pair(3, 4, sStep)
    for q in range(3):
        A(f"s_cmp_ge_u32 {s(sU0)}, 480")
        A("s_cbranch_scc1 L_k1_done")
        if q:
            load_cs(q, 2)
            A("s_waitcnt lgkmcnt(0)")
        q_tile(q, 2)
        A(f"s_add_u32 {s(sU0)}, {s(sU0)}, 8")
    A.label("L_k1_done")
    stamp(A, 5)
    if common.STAMPS: A("s_waitcnt vmcnt(0)")
    stamp(A, 6)
    stamp_flush(A, 7, 69, sWS, 22)
    A("s_endpgm")

    A.label("L_k1_loader")
    sLw, sXo, sWo, sGo, sMx, sXsl, sWsl2, sCsl, sPair, sXk, sWk, sSp, sHalf = 42, 43, 44, 45, 46, 47, 48, 49, 50, 51, 52, 53, 54
    vXe, vXo = 3, 4
    vQ = [5, 6, 7]; vG = 8
    A(f"s_sub_u32 {s(sLw)}, {s(sWave)}, 4")
    A.c("x pieces: 8 rows x 128 B, granule p of row t holds source granule p ^ ((t>>1)&7)")
    A(f"v_lshrrev_b32 v10, 3, {v(vL)}")
    A(f"v_mul_u32_u24 v10, 1280, v10")
    A(f"v_and_b32 v11, 7, {v(vL)}")
    A(f"v_lshrrev_b32 v12, 4, {v(vL)}")
    A(f"v_xor_b32 v11, v11, v12")
    A(f"v_lshl_add_u32 {v(vXe)}, v11, 4, v10")
    A(f"v_xor_b32 v11, 4, v11")
    A(f"v_lshl_add_u32 {v(vXo)}, v11, 4, v10")
    A(f"s_lshl_b32 {s(sT0)}, {s(sRb)}, 7")
    A(f"s_lshl_b32 {s(sT1)}, {s(sLw)}, 5")
    A(f"s_add_u32 {s(sT0)}, {s(sT0)}, {s(sT1)}")
    A(f"s_mul_i32 {s(sXo)}, {s(sT0)}, 1280")
    A(f"s_lshl_b32 {s(sMx)}, {s(sLw)}, 12")
    A(f"s_add_u32 {s(sMx)}, {s(sMx)}, {LDS_X}")
    for r in (sXsl, sWsl2, sCsl): A(f"s_mov_b32 {s(r)}, 0")
    A.c("rotated k order: workgroups that share rows or columns start at different chunks")
    if "norot" not in variant:
        A(f"s_and_b32 {s(sT0)}, {s(sCt)}, 3")
        A(f"s_mul_i32 {s(sT1)}, {s(sT0)}, 5")
        A(f"s_lshr_b32 {s(sT1)}, {s(sT1)}, 1")
        A(f"s_lshr_b32 {s(sT0)}, {s(sCt)}, 2")
        A(f"s_add_u32 {s(sT1)}, {s(sT1)}, {s(sT0)}")
        A(f"s_add_u32 {s(sT1)}, {s(sT1)}, {s(sRb)}")
        A(f"s_mul_i32 {s(sT0)}, {s(sT1)}, 205")
        A(f"s_lshr_b32 {s(sT0)}, {s(sT0)}, 11")
        A(f"s_mul_i32 {s(sT0)}, {s(sT0)}, 10")
        A(f"s_sub_u32 {s(sXk)}, {s(sT1)}, {s(sT0)}")
    else:
        A(f"s_mov_b32 {s(sXk)}, 0")
    A(f"s_lshl_b32 {s(sWk)}, {s(sXk)}, 1")
    A(f"s_lshl_b32 {s(sT0)}, {s(sXk)}, 7")
    A(f"s_add_u32 {s(sXo)}, {s(sXo)}, {s(sT0)}")
    A(f"s_and_b32 {s(sSp)}, {s(sLw)}, 1")
    A(f"s_lshr_b32 {s(sHalf)}, {s(sLw)}, 1")

    def lane_offsets(n, pitchg, dst):
        if n == 1:
            A(f"v_lshrrev_b32 v10, 3, {v(vL)}")
            A(f"v_bfe_u32 v11, v10, 1, 1")
            A(f"v_lshlrev_b32 v11, 2, v11")
            A(f"v_and_b32 v12, 7, {v(vL)}")
            A(f"v_xor_b32 v12, v12, v11")
            A(f"v_mul_u32_u24 v10, {pitchg}, v10")
            A(f"v_lshl_add_u32 {v(dst[0])}, v12, 4, v10")
        elif n == 2:
            A(f"v_lshrrev_b32 v10, 4, {v(vL)}")
            A(f"v_lshlrev_b32 v11, 2, v10")
            A(f"v_and_b32 v12, 15, {v(vL)}")
            A(f"v_xor_b32 v12, v12, v11")
            A(f"v_mul_u32_u24 v10, {pitchg}, v10")
            A(f"v_lshl_add_u32 {v(dst[0])}, v12, 4, v10")
        else:
            for e in range(3):
                A(f"v_add_u32 v10, {64*e}, {v(vL)}")
                A(f"v_mul_u32_u24 v11, 43691, v10")
                A(f"v_lshrrev_b32 v11, 20, v11")
                A(f"v_mul_u32_u24 v12, 24, v11")
                A(f"v_sub_u32 v12, v10, v12")
                A(f"v_bfe_u32 v13, v11, 1, 1")
                A(f"v_lshlrev_b32 v13, 2, v13")
                A(f"v_xor_b32 v12, v12, v13")
                A(f"v_mul_u32_u24 v11, {pitchg}, v11")
                A(f"v_lshl_add_u32 {v(dst[e])}, v12, 4, v11")

    def wrap(r, step, n):
        return [f"s_add_u32 {s(r)}, {s(r)}, {step}", f"s_cmp_eq_u32 {s(r)}, {step*n}", f"s_cselect_b32 {s(r)}, 0, {s(r)}"]

    ACS = [16, 17, 18, 19, 20]; ACH = [21, 22, 23, 14, 15]
    FB = lambda j: 24 + 4 * j
    vCa = [44, 45, 46, 47, 48]
    UP = [50, 51, 52, 53]; vOn = 54

    def loader(typ):
        T = f"t{typ}"
        qoff, qp, qn = IMG[typ]["q"]; goff, gp, gn = IMG[typ]["g"]; uoff = IMG[typ]["u"][0]
        lane_offsets(qn, 3840, vQ)
        lane_offsets(gn, 3072, [vG])
        A.c("global offsets of this loader's 8 rows")
        A(f"s_mul_i32 {s(sWo)}, {s(sLw)}, {8*3840}")
        A(f"s_mul_i32 {s(sGo)}, {s(sLw)}, {8*3072}")
        if typ == 0:
            A(f"s_lshl_b32 {s(sT0)}, {s(sI)}, 7"); A(f"s_lshl_b32 {s(sT1)}, {s(sI)}, 8")
        else:
            A(f"s_mul_i32 {s(sT0)}, {s(sI)}, 384"); A(f"s_add_u32 {s(sT0)}, {s(sT0)}, 1024")
            A(f"s_lshl_b32 {s(sT1)}, {s(sI)}, 7"); A(f"s_add_u32 {s(sT1)}, {s(sT1)}, 2048")
        A(f"s_add_u32 {s(sWo)}, {s(sWo)}, {s(sT0)}")
        A(f"s_add_u32 {s(sGo)}, {s(sGo)}, {s(sT1)}")
        A(f"s_mul_i32 {s(sT0)}, {s(sWk)}, {32*3840}")
        A(f"s_add_u32 {s(sWo)}, {s(sWo)}, {s(sT0)}")
        A(f"s_mul_i32 {s(sT0)}, {s(sWk)}, {32*3072}")
        A(f"s_add_u32 {s(sGo)}, {s(sGo)}, {s(sT0)}")
        sMq, sMg, sB1, sB2 = 55, 56, 57, 58
        A(f"s_mul_i32 {s(sMq)}, {s(sLw)}, {8*qp}")
        A(f"s_add_u32 {s(sMq)}, {s(sMq)}, {LDS_W + qoff}")
        A(f"s_mul_i32 {s(sMg)}, {s(sLw)}, {8*gp}")
        A(f"s_add_u32 {s(sMg)}, {s(sMg)}, {LDS_W + goff}")
        def x_groups():
            g = []
            for ii in range(4):
                pre = [f"s_add_u32 {s(sB1)}, {s(sMx)}, {s(sXsl)}"] if ii == 0 else []
                g.append(pre + [f"s_add_u32 m0, {s(sB1)}, {ii*1024}", f"s_add_u32 {s(sT0)}, {s(sXo)}, {ii*10240}",
                                f"buffer_load_dwordx4 {v(vXo if ii & 1 else vXe)}, {s(sX,4)}, {s(sT0)} offen lds"])
            g[-1] += [f"s_add_u32 {s(sXo)}, {s(sXo)}, 128", f"s_add_u32 {s(sXk)}, {s(sXk)}, 1", f"s_cmp_eq_u32 {s(sXk)}, 10",
                      f"s_cselect_b32 {s(sT0)}, 1280, 0", f"s_cselect_b32 {s(sXk)}, 0, {s(sXk)}",
                      f"s_sub_u32 {s(sXo)}, {s(sXo)}, {s(sT0)}"] + wrap(sXsl, XS, NXS)
            return g
        def w_groups():
            g = []
            for e in range(qn):
                pre = [f"s_add_u32 {s(sB1)}, {s(sMq)}, {s(sWsl2)}", f"s_add_u32 {s(sB2)}, {s(sMg)}, {s(sWsl2)}"] if e == 0 else []
                g.append(pre + [f"s_add_u32 m0, {s(sB1)}, {e*1024}", "s_nop 0",
                                f"buffer_load_dwordx4 {v(vQ[e] if qn == 3 else vQ[0])}, {s(sW,4)}, {s(sWo)} offen lds"])
            for desc, off in ((sG, 0), (sU, uoff - goff)):
                for e in range(gn):
                    g.append([f"s_add_u32 m0, {s(sB2)}, {off + e*1024}", f"s_add_u32 {s(sT0)}, {s(sGo)}, {e*4*3072}",
                              f"buffer_load_dwordx4 {v(vG)}, {s(desc,4)}, {s(sT0)} offen lds"])
            g[-1] += [f"s_add_u32 {s(sWo)}, {s(sWo)}, {32*3840}", f"s_add_u32 {s(sGo)}, {s(sGo)}, {32*3072}",
                      f"s_add_u32 {s(sWk)}, {s(sWk)}, 1", f"s_cmp_eq_u32 {s(sWk)}, 20",
                      f"s_cselect_b32 {s(sT0)}, {640*3840}, 0", f"s_cselect_b32 {s(sT1)}, {640*3072}, 0", f"s_cselect_b32 {s(sWk)}, 0, {s(sWk)}",
                      f"s_sub_u32 {s(sWo)}, {s(sWo)}, {s(sT0)}", f"s_sub_u32 {s(sGo)}, {s(sGo)}, {s(sT1)}"] + wrap(sWsl2, WSZ, NWS)
            return g
        def emit(groups):
            for g in groups:
                for ln in g: A(ln)
        if "fine" in variant: stamp(A, 4)
        emit(x_groups()[:1])
        if "fine" in variant: stamp(A, 3)
        emit(x_groups()[1:] + w_groups() + w_groups())
        A.c("column sums: loader (step parity lw&1, wave column lw>>1) adds the fragments of five column tiles along k")
        A(f"s_lshl_b32 {s(sT2)}, {s(sSp)}, 4")
        frag_addrs(A, typ, vCa, vL, sHalf, 56, extra_rows_s=sT2)
        pitch = [IMG[typ][k][1] for (k, _, _) in SLOTS[typ]]
        for r in ACS + ACH: A(f"v_mov_b32 {v(r)}, 0")
        A(f"v_mov_b32 {v(vOn)}, 0x3f803f80")
        def interval(groups):
            if "nocs" in variant:
                emit(groups); return
            for j in range(5):
                A(f"v_add_u32 v10, {s(sCsl)}, {v(vCa[j])}")
                A(f"ds_read_b64_tr_b16 {v(FB(j),2)}, v10")
                A(f"ds_read_b64_tr_b16 {v(FB(j)+2,2)}, v10 offset:{4*pitch[j]}")
            for ln in wrap(sCsl, WSZ, NWS): A(ln)
            work = []
            for j in range(5):
                w = [f"s_waitcnt lgkmcnt({8-2*j})"]
                for k in range(4):
                    lo, hi = UP[2 * (k & 1)], UP[2 * (k & 1) + 1]
                    if "csvalu" in variant:
                        w += [f"v_lshlrev_b32 {v(lo)}, 16, {v(FB(j)+k)}", f"v_and_b32 {v(hi)}, 0xffff0000, {v(FB(j)+k)}",
                              f"v_add_f32 {v(ACS[j])}, {v(ACS[j])}, {v(lo)}", f"v_add_f32 {v(ACH[j])}, {v(ACH[j])}, {v(hi)}"]
                    else:
                        w += [f"v_dot2c_f32_bf16 {v(ACS[j] if k & 1 else ACH[j])}, {v(FB(j)+k)}, {v(vOn)}"]
                work.append(w)
            groups = list(groups)
            if "interleave" not in variant:
                emit(groups)
                A("s_waitcnt lgkmcnt(0)")
                for k in range(4):
                    for j in range(5): A(work[j][1 + k]) if "csvalu" not in variant else None
                if "csvalu" not in variant: return
                groups = []
            if groups: emit([groups.pop(0)])
            while work or groups:
                if work:
                    for ln in work.pop(0): A(ln)
                take = 1 if len(groups) <= len(work) + 1 else 2
                for _ in range(take):
                    if groups: emit([groups.pop(0)])
        def bar(cnt, st=None):
            A(f"s_waitcnt vmcnt({cnt})")
            if st is not None: stamp(A, st)
            A("s_barrier")
        stamp(A, 1)
        bar(5, 2)
        interval(x_groups() + w_groups())
        bar(9, None if 'fine' in variant else 3)
        interval(w_groups() + x_groups() + w_groups())
        A(f"s_mov_b32 {s(sPair)}, 7")
        A.label(f"L_k1_lpair{T}")
        bar(14)
        interval(w_groups())
        bar(14)
        interval(x_groups() + w_groups())
        A(f"s_sub_u32 {s(sPair)}, {s(sPair)}, 1")
        A(f"s_cmp_lg_u32 {s(sPair)}, 0")
        A(f"s_cbranch_scc1 L_k1_lpair{T}")
        bar(14)
        interval(w_groups())
        bar(14)
        interval([])
        bar(5)
        interval([])
        bar(0, 5)
        interval([])

    A(f"s_cmp_ge_u32 {s(sCt)}, 8")
    A("s_cbranch_scc1 L_k1_loader1")
    loader(0)
    A("s_branch L_k1_lsum")
    A.label("L_k1_loader1")
    loader(1)
    A.label("L_k1_lsum")
    A.c("combine the k halves and the two step parities; array order [wave column][slot][32]")
    A("s_nop 2")
    for j in range(5): A(f"v_add_f32 {v(ACS[j])}, {v(ACS[j])}, {v(ACH[j])}")
    for j in range(5): A(f"v_mov_b32 {v(FB(0)+j)}, {v(ACS[j])}")
    A("s_nop 1")
    for j in range(5): A(f"v_permlane32_swap_b32 {v(ACS[j])}, {v(FB(0)+j)}")
    A("s_nop 0")
    for j in range(5): A(f"v_add_f32 {v(ACS[j])}, {v(ACS[j])}, {v(FB(0)+j)}")
    A(f"v_and_b32 v10, 31, {v(vL)}")
    A(f"v_lshlrev_b32 v10, 2, v10")
    A(f"s_mul_i32 {s(sT0)}, {s(sHalf)}, 640")
    A(f"s_add_u32 {s(sT0)}, {s(sT0)}, {LDS_CS}")
    A(f"v_add_u32 v10, {s(sT0)}, v10")
    A(f"s_cmp_eq_u32 {s(sSp)}, 0")
    A("s_cbranch_scc0 L_k1_cs3")
    for j in range(5): A(f"ds_write_b32 v10, {v(ACS[j])} offset:{128*j}")
    A("s_waitcnt lgkmcnt(0)")
    A("s_barrier")
    A("s_branch L_k1_cs4")
    A.label("L_k1_cs3")
    A("s_barrier")
    for j in range(5): A(f"ds_read_b32 {v(FB(0)+j)}, v10 offset:{128*j}")
    A("s_waitcnt lgkmcnt(0)")
    for j in range(5): A(f"v_add_f32 {v(ACS[j])}, {v(ACS[j])}, {v(FB(0)+j)}")
    for j in range(5): A(f"ds_write_b32 v10, {v(ACS[j])} offset:{128*j}")
    A("s_waitcnt lgkmcnt(0)")
    A.label("L_k1_cs4")
    A("s_barrier")
    if extra_tail: extra_tail(A, sWS, sLw, sRb, sCt, vL)
    stamp(A, 6)
    stamp_flush(A, 7, 69, sWS, 60)
    A.label("L_k1_end")
    A("s_endpgm")
    return NAME, 512, LDS_BYTES, descriptor(NAME, NV)
```

```python
from asm import *

S, D, H, DH, F = 2048, 640, 32, 20, 1536
WS_QKV = 0
QKV_HEAD = S * 48
PLANE = S * 8
WS_XN = 0x00A00000
WS_H = 0x00D00000
WS_O = 0x01400000
WS_OR = 0x01600000
WS_FLAG = 0x01700000
WS_SIZE = 0x01A00000
LOG2E = 1.4426950408889634
QSCALE = (DH ** -0.5) * LOG2E

K_X, K_WQKV, K_WO, K_BX, K_WG, K_WU, K_WD, K_OUT, K_DBG, K_WS = [8 * i for i in range(10)]

def f32bits(x):
    import struct
    return struct.unpack("<I", struct.pack("<f", x))[0]

def srd(A, d, base, nbytes):
    A(f"s_mov_b32 {s(d)}, {s(base)}")
    A(f"s_and_b32 {s(d+1)}, {s(base+1)}, 0xffff")
    A(f"s_mov_b32 {s(d+2)}, {nbytes}")
    A(f"s_mov_b32 {s(d+3)}, 0x00020000")

def code_prefetch(A, tag, start_label, nkb, sp, vt, vd, lane_reg):
    A(f"s_getpc_b64 {s(sp,2)}")
    A.label(f"L_pc_{tag}")
    A(f"s_add_u32 {s(sp)}, {s(sp)}, {start_label}-L_pc_{tag}")
    A(f"s_addc_u32 {s(sp+1)}, {s(sp+1)}, 0")
    A(f"v_lshlrev_b32 {v(vt)}, 4, {v(lane_reg)}")
    for i in range(nkb):
        A(f"global_load_dwordx4 {v(vd,4)}, {v(vt)}, {s(sp,2)}")
        if i + 1 < nkb:
            A(f"v_add_u32 {v(vt)}, 1024, {v(vt)}")

def kernel_header(A, name):
    A(f".globl {name}")
    A(".p2align 8")
    A(f".type {name},@function")
    A.label(name)

def descriptor(name, nvgpr, nsgpr=96, accum=None):
    accum = accum or ((nvgpr + 3) // 4 * 4)
    return f""".amdhsa_kernel {name}
  .amdhsa_next_free_vgpr {nvgpr}
  .amdhsa_next_free_sgpr {nsgpr}
  .amdhsa_accum_offset {accum}
  .amdhsa_group_segment_fixed_size 0
  .amdhsa_kernarg_size 80
  .amdhsa_user_sgpr_count 2
  .amdhsa_user_sgpr_kernarg_segment_ptr 1
  .amdhsa_system_sgpr_workgroup_id_x 1
.end_amdhsa_kernel
"""

STAMPS = False
STAMP_BASE = 0
DEBUG = False
WS_STAMP = 0x01780000
def stamp(A, idx):
    import common
    if common.STAMPS and idx == 0:
        A("s_memrealtime s[70:71]")
    if common.STAMPS:
        A(f"s_memtime {s(80+2*idx,2)}")
def rstamp(A, idx):
    import common
    if common.STAMPS:
        A(f"s_memrealtime {s(70+2*idx,2)}")
def stamp_flush(A, n, slot_sreg, sws, vtmp):
    import common
    if not common.STAMPS: return
    A("s_waitcnt lgkmcnt(0)")
    A(f"s_lshl_b32 s79, {s(slot_sreg)}, 6")
    A(f"s_add_u32 s79, s79, {WS_STAMP + common.STAMP_BASE}")
    A(f"v_mov_b32 {v(vtmp+1)}, 0")
    for i in range(n):
        if i == 0:
            A(f"v_mov_b32 {v(vtmp)}, s80")
        else:
            A(f"s_sub_u32 s78, {s(80+2*i)}, s80")
            A(f"v_mov_b32 {v(vtmp)}, s78")
        A(f"buffer_store_dword {v(vtmp)}, {v(vtmp+1)}, {s(sws,4)}, s79 offen offset:{4*i}")
        A("s_nop 0")
    A("s_memrealtime s[72:73]")
    A("s_waitcnt lgkmcnt(0)")
    for i in range(2):
        A(f"v_mov_b32 {v(vtmp)}, {s(70+2*i)}")
        A(f"buffer_store_dword {v(vtmp)}, {v(vtmp+1)}, {s(sws,4)}, s79 offen offset:{4*(14+i)}")
        A("s_nop 0")

WS_DBG = 0x01980000
def dump_regs(A, regs, slot0, sWS, sWave, vtmp, tag):
    A(f"s_or_b32 s77, s2, {s(sWave)}")
    A(f"s_cmp_lg_u32 s77, 0")
    A(f"s_cbranch_scc1 L_dump_{tag}")
    A(f"v_and_b32 {v(vtmp)}, 63, v0")
    A(f"v_lshlrev_b32 {v(vtmp)}, 2, {v(vtmp)}")
    for i, r in enumerate(regs):
        A(f"s_mov_b32 s77, {WS_DBG + (slot0 + i) * 256}")
        A(f"buffer_store_dword {v(r)}, {v(vtmp)}, {s(sWS,4)}, s77 offen")
    A("s_waitcnt vmcnt(0)")
    A.label(f"L_dump_{tag}")
```

```python
from common import *
import common
import attn3
from attn import lds_arrive, lds_wait
from ffn import out_setup, OUT_SLOT

NAME = "main_kernel"
PITCH = 656
REG = 32 * PITCH
LDS_CNT = attn3.KV_BYTES
LDS_CNT_O = LDS_CNT + 4
LDS_CNT_G = LDS_CNT + 8
LDS_G = 65280
LDS_BYTES = LDS_G + 4 * REG
NV = 168

def global_wait(A, tag, sWS, sOff, target, vT, sTmp, sSpin):
    A(f"s_mov_b32 {s(sSpin)}, 0x8000")
    A(f"v_mov_b32 {v(vT+1)}, 0")
    A.label(f"L_gw_{tag}")
    A(f"buffer_load_dword {v(vT)}, {v(vT+1)}, {s(sWS,4)}, {s(sOff)} offen sc1")
    A("s_waitcnt vmcnt(0)")
    A(f"v_readfirstlane_b32 {s(sTmp)}, {v(vT)}")
    A(f"s_sub_u32 {s(sSpin)}, {s(sSpin)}, 1")
    A(f"s_cbranch_scc1 L_gg_{tag}")
    A(f"s_cmp_ge_u32 {s(sTmp)}, {target}")
    A(f"s_cbranch_scc1 L_gg_{tag}")
    A("s_sleep 2")
    A(f"s_branch L_gw_{tag}")
    A.label(f"L_gg_{tag}")

def gen(A, variant="", prefetch=None):
    sWS, sWD, sWO, sXd, sOut = 8, 12, 16, 32, 36
    sWave, sHead, sQb, sT0, sT1 = 20, 21, 22, 23, 24
    kernel_header(A, NAME)
    A("s_cmp_ge_u32 s2, 256")
    A("s_cbranch_scc1 L_main_end")
    A(f"s_load_dwordx2 s[28:29], s[0:1], {K_WS}")
    A(f"s_load_dwordx2 s[4:5], s[0:1], {K_WD}")
    A(f"s_load_dwordx2 s[6:7], s[0:1], {K_WO}")
    A(f"s_load_dwordx2 s[30:31], s[0:1], {K_X}")
    A(f"s_load_dwordx2 s[26:27], s[0:1], {K_OUT}")
    A("v_lshrrev_b32 v1, 6, v0")
    A("v_and_b32 v2, 63, v0")
    A(f"v_readfirstlane_b32 {s(sWave)}, v1")
    A(f"v_mov_b32 v3, {LDS_CNT}")
    A(f"v_mov_b32 v4, 0")
    A(f"v_mov_b32 v5, 0")
    A(f"v_mov_b32 v6, 0")
    A(f"v_mov_b32 v7, 0")
    A("ds_write_b128 v3, v[4:7]")
    A("s_waitcnt lgkmcnt(0)")
    srd(A, sWS, 28, WS_SIZE)
    if "tlb2" in variant:
        A.c("touch the pages of the buffers used late in this kernel so that address translation is ready")
        A(f"s_cmp_lg_u32 {s(sWave)}, 8")
        A("s_cbranch_scc1 L_main_tlb")
        srd(A, 40, 26, S * D * 2)
        srd(A, 44, 30, S * D * 2)
        srd(A, 48, 6, D * D * 2)
        A("v_lshlrev_b32 v3, 19, v2")
        A("buffer_load_dword v167, v3, s[40:43], 0 offen")
        A("buffer_load_dword v167, v3, s[44:47], 0 offen")
        A("buffer_load_dword v167, v3, s[48:51], 0 offen")
        A(f"buffer_load_dword v167, v3, {s(sWS,4)}, 0 offen")
        A.label("L_main_tlb")
    stamp(A, 0)
    if common.STAMPS:
        A(f"s_mul_i32 s69, s2, 12")
        A(f"s_add_u32 s69, s69, {s(sWave)}")
    A("s_barrier")
    A(f"s_cmp_ge_u32 {s(sWave)}, 8")
    A("s_cbranch_scc1 L_main_gemm")

    A(f"s_and_b32 {s(sT0)}, s2, 7")
    A(f"s_lshr_b32 {s(sQb)}, s2, 3")
    A(f"s_lshr_b32 {s(sHead)}, {s(sQb)}, 3")
    A(f"s_lshl_b32 {s(sT0)}, {s(sT0)}, 2")
    A(f"s_add_u32 {s(sHead)}, {s(sHead)}, {s(sT0)}")
    A(f"s_and_b32 {s(sQb)}, {s(sQb)}, 7")
    def signal(A):
        A.c("every wave drains its stores and counts itself in LDS; the last one raises the device-scope counter of the query block")
        A("s_waitcnt vmcnt(0)")
        stamp(A, 6)
        A(f"v_mov_b32 v3, {LDS_CNT_O}")
        A(f"v_mov_b32 v4, 1")
        A("s_mov_b64 exec, 1")
        A("ds_add_rtn_u32 v5, v3, v4")
        A("s_waitcnt lgkmcnt(0)")
        A(f"v_readfirstlane_b32 {s(sT0)}, v5")
        A(f"s_lshl_b32 {s(sT1)}, {s(sQb)}, 8")
        A(f"s_add_u32 {s(sT1)}, {s(sT1)}, {WS_FLAG}")
        A(f"s_cmp_lg_u32 {s(sT0)}, 7")
        A("s_cbranch_scc1 L_main_nosig")
        A("v_mov_b32 v3, 0")
        A(f"buffer_atomic_add v4, v3, {s(sWS,4)}, {s(sT1)} offen")
        A.label("L_main_nosig")
        A("s_mov_b64 exec, -1")
    def finish(A):
        stamp(A, 3)
        stamp_flush(A, 7, 69, sWS, 144)
        A("s_endpgm")
    attn3.role(A, sWS, sWave, sHead, sQb, 0, LDS_CNT, 2, on_stored=signal, variant=variant, done=finish)

    A.label("L_main_gemm")
    if "gprio" in variant: A("s_setprio 3")
    sW, sTb, sCq, sM, sB1, sB2, sA1, sA2, sA3, sXo = 21, 22, 25, 40, 41, 42, 43, 44, 45, 46
    srd(A, sWD, 4, F * D * 2)
    srd(A, sWO, 6, D * D * 2)
    srd(A, sXd, 30, S * D * 2)
    srd(A, sOut, 26, S * D * 2)
    A(f"s_sub_u32 {s(sW)}, {s(sWave)}, 8")
    A(f"s_and_b32 {s(sT0)}, s2, 7")
    A(f"s_lshr_b32 {s(sCq)}, s2, 3")
    A(f"s_lshr_b32 {s(sTb)}, {s(sCq)}, 2")
    A(f"s_lshl_b32 {s(sT0)}, {s(sT0)}, 3")
    A(f"s_add_u32 {s(sTb)}, {s(sTb)}, {s(sT0)}")
    A(f"s_and_b32 {s(sCq)}, {s(sCq)}, 3")
    vL, vA, vLin = 2, 3, 4
    vD = [5, 6, 7, 8, 9]; vDr = [10, 11, 12, 13, 14]
    AF = lambda i: 16 + 4 * i
    OF = lambda k: (16 + 4 * k) if k < 4 else (132 + 4 * (k - 4))
    WF = lambda j: 32 + 4 * j
    ACC = lambda j: 52 + 16 * j
    T = 156
    A(f"v_lshlrev_b32 {v(vLin)}, 4, {v(vL)}")
    out_setup(A, vL, vA, vD, vDr, T)
    A(f"s_mul_i32 {s(sM)}, {s(sW)}, {REG}")
    A(f"s_add_u32 {s(sM)}, {s(sM)}, {LDS_G}")
    A(f"v_add_u32 {v(vA)}, {s(sM)}, {v(vA)}")
    A(f"s_mul_i32 {s(sXo)}, {s(sTb)}, {32*1280}")
    A(f"s_mul_i32 {s(sT1)}, {s(sCq)}, 320")
    A(f"s_add_u32 {s(sXo)}, {s(sXo)}, {s(sT1)}")
    A(f"s_mul_i32 {s(sB1)}, {s(sW)}, {24*16*1280}")
    A(f"s_add_u32 {s(sB1)}, {s(sB1)}, {s(sT1)}")
    A(f"s_mul_i32 {s(sA1)}, {s(sTb)}, 96")
    A(f"s_mul_i32 {s(sT0)}, {s(sW)}, 24")
    A(f"s_add_u32 {s(sA1)}, {s(sA1)}, {s(sT0)}")
    A(f"s_lshl_b32 {s(sA1)}, {s(sA1)}, 10")
    A(f"s_add_u32 {s(sA1)}, {s(sA1)}, {WS_H}")

    def wdma(vd, desc, sbase, off, slot):
        for e in range(5):
            A(f"s_add_u32 m0, {s(sM)}, {slot*OUT_SLOT + e*1024}")
            A(f"s_add_u32 {s(sT0)}, {s(sbase)}, {off}")
            A(f"buffer_load_dwordx4 {v(vd[e])}, {s(desc,4)}, {s(sT0)} offen lds")
    def wreads(slot, j):
        return [f"ds_read_b64_tr_b16 {v(WF(j)+2*i,2)}, {v(vA)} offset:{slot*OUT_SLOT + i*2560 + j*64}" for i in range(2)]
    mf = lambda j, b: f"v_mfma_f32_32x32x16_bf16 {v(ACC(j),16)}, {v(WF(j),4)}, {v(b,4)}, {v(ACC(j),16)}"

    sBh, sAh, sCnt = 47, 48, 49
    A(f"s_mov_b32 {s(sBh)}, {s(sB1)}")
    A(f"s_mov_b32 {s(sAh)}, {s(sA1)}")
    def issue_h(slot):
        wdma(vD, sWD, sBh, 0, slot)
        A(f"buffer_load_dwordx4 {v(AF(slot),4)}, {v(vLin)}, {s(sWS,4)}, {s(sAh)} offen")
        A(f"s_add_u32 {s(sBh)}, {s(sBh)}, {16*1280}")
        A(f"s_add_u32 {s(sAh)}, {s(sAh)}, 1024")
    for k in range(3): issue_h(k)
    A.c("accumulators start from the residual x: wave w adds register group w of every column tile")
    for r in range(ACC(0), ACC(4) + 16): A(f"v_mov_b32 {v(r)}, 0")
    A(f"v_and_b32 {v(T)}, 31, {v(vL)}")
    A(f"v_mul_u32_u24 {v(T)}, 1280, {v(T)}")
    A(f"v_lshrrev_b32 {v(T+1)}, 5, {v(vL)}")
    A(f"v_lshl_add_u32 {v(T)}, {v(T+1)}, 3, {v(T)}")
    A(f"s_lshl_b32 {s(sT1)}, {s(sW)}, 4")
    A(f"s_add_u32 {s(sT1)}, {s(sT1)}, {s(sXo)}")
    XR = 132
    for j in range(5):
        A(f"buffer_load_dwordx2 {v(XR+2*j,2)}, {v(T)}, {s(sXd,4)}, {s(sT1)} offen offset:{64*j}")
    A("s_waitcnt vmcnt(0)")
    for w in range(4):
        if w < 3:
            A(f"s_cmp_lg_u32 {s(sW)}, {w}")
            A(f"s_cbranch_scc1 L_main_res{w}")
        for j in range(5):
            for e in range(2):
                A(f"v_lshlrev_b32 {v(ACC(j)+4*w+2*e)}, 16, {v(XR+2*j+e)}")
                A(f"v_and_b32 {v(ACC(j)+4*w+2*e+1)}, 0xffff0000, {v(XR+2*j+e)}")
        if w < 3:
            A("s_branch L_main_resdone")
            A.label(f"L_main_res{w}")
    A.label("L_main_resdone")
    for j in range(5):
        for ln in wreads(0, j): A(ln)
    A(f"s_mov_b32 {s(sCnt)}, 6")
    A.label("L_main_hloop")
    for k in range(4):
        A.c("step k+1 must have landed before its fragments are read; two younger steps may be in flight")
        A("s_waitcnt vmcnt(6)")
        for j in range(5):
            A("s_waitcnt lgkmcnt(8)")
            A(mf(j, AF(k)))
            for ln in wreads((k + 1) & 3, j): A(ln)
        issue_h((k + 3) & 3)
    A(f"s_sub_u32 {s(sCnt)}, {s(sCnt)}, 1")
    A(f"s_cmp_lg_u32 {s(sCnt)}, 0")
    A("s_cbranch_scc1 L_main_hloop")
    stamp(A, 1)

    A("s_waitcnt vmcnt(0) lgkmcnt(0)")
    A(f"s_mul_i32 {s(sT1)}, {s(sCq)}, 320")
    A(f"s_mul_i32 {s(sB1)}, {s(sW)}, {8*20*1280}")
    A(f"s_add_u32 {s(sB1)}, {s(sB1)}, {s(sT1)}")
    A(f"s_add_u32 {s(sB2)}, {s(sB1)}, {16*1280}")
    A(f"s_lshl_b32 {s(sA1)}, {s(sTb)}, 5")
    A(f"s_lshl_b32 {s(sT0)}, {s(sW)}, 3")
    A(f"s_add_u32 {s(sT0)}, {s(sT0)}, {s(sA1)}")
    A(f"s_lshl_b32 {s(sA2)}, {s(sT0)}, 10")
    A(f"s_add_u32 {s(sA2)}, {s(sA2)}, {WS_O}")
    A(f"s_lshl_b32 {s(sA3)}, {s(sT0)}, 8")
    A(f"s_add_u32 {s(sA3)}, {s(sA3)}, {WS_OR}")
    A.c("leftover steps: lane (t, h) takes units 2h and 2h+1 of four heads")
    vRem = T + 2
    A(f"v_and_b32 {v(vRem)}, 31, {v(vL)}")
    A(f"v_lshlrev_b32 {v(vRem)}, 3, {v(vRem)}")
    A(f"v_lshrrev_b32 {v(T+3)}, 5, {v(vL)}")
    A(f"v_lshl_add_u32 {v(vRem)}, {v(T+3)}, 9, {v(vRem)}")
    osteps = [(vD, sB1, k * 20 * 1280, sA2, k * 1024) for k in range(8)] + [(vDr, sB2, k * 80 * 1280, sA3, k * 1024) for k in range(2)]
    for k in range(4): wdma(osteps[k][0], sWO, osteps[k][1], osteps[k][2], k)
    A.c("touch the remaining Wo rows of this wave so that they are L2 hits later")
    for k in range(4, 10):
        for e in range(5):
            A(f"s_add_u32 {s(sT0)}, {s(osteps[k][1])}, {osteps[k][2]}")
            A(f"buffer_load_dwordx4 {v(132,4)}, {v(osteps[k][0][e])}, {s(sWO,4)}, {s(sT0)} offen")
    A("s_waitcnt vmcnt(0)")
    for j in range(5):
        for ln in wreads(0, j): A(ln)
    A(f"s_lshr_b32 {s(sT1)}, {s(sTb)}, 3")
    A(f"s_lshl_b32 {s(sT1)}, {s(sT1)}, 8")
    A(f"s_add_u32 {s(sT1)}, {s(sT1)}, {WS_FLAG}")
    global_wait(A, "o", sWS, sT1, 32, T, 50, 78)
    stamp(A, 2)
    for k in range(8):
        A(f"s_add_u32 {s(sT0)}, {s(sA2)}, {k*1024}")
        A(f"buffer_load_dwordx4 {v(OF(k),4)}, {v(vLin)}, {s(sWS,4)}, {s(sT0)} offen sc1")
    for k in range(2):
        for i in range(2):
            A(f"buffer_load_dwordx2 {v(OF(8+k)+2*i,2)}, {v(vRem)}, {s(sWS,4)}, {s(sA3)} offen offset:{k*1024 + i*256} sc1")
    waits = [11, 15, 19, 10, 10, 10, 10, 5, 0, None]
    for k in range(10):
        if waits[k] is not None: A(f"s_waitcnt vmcnt({waits[k]})")
        for j in range(5):
            A(f"s_waitcnt lgkmcnt({8 if k < 9 else 2*(4-j)})")
            A(mf(j, OF(k)))
            if k < 9:
                for ln in wreads((k + 1) & 3, j): A(ln)
        if k + 4 < 10:
            wdma(osteps[k+4][0], sWO, osteps[k+4][1], osteps[k+4][2], k & 3)
    stamp(A, 3)
    A(f"v_and_b32 {v(T)}, 31, {v(vL)}")
    A(f"v_mul_u32_u24 {v(T)}, {PITCH}, {v(T)}")
    A(f"v_lshrrev_b32 {v(T+1)}, 5, {v(vL)}")
    A(f"v_lshl_add_u32 {v(T)}, {v(T+1)}, 4, {v(T)}")
    A(f"v_add_u32 {v(T)}, {s(sM)}, {v(T)}")
    A(f"v_mov_b32 {v(T+2)}, {LDS_CNT_G}")
    A(f"v_mov_b32 {v(T+3)}, 1")
    vTid = T + 4
    A(f"v_subrev_u32 {v(vTid)}, 512, v0")
    vXo = [T + 5, T + 6, T + 7]; vRo = [T + 8, T + 9, T + 10]
    for i in range(3):
        A(f"v_add_u32 v16, {256*i}, {v(vTid)}")
        A(f"v_mul_u32_u24 v17, 52429, v16")
        A(f"v_lshrrev_b32 v17, 20, v17")
        A(f"v_mul_u32_u24 v18, 20, v17")
        A(f"v_sub_u32 v18, v16, v18")
        A(f"v_mul_u32_u24 v19, 1280, v17")
        A(f"v_lshl_add_u32 {v(vXo[i])}, v18, 4, v19")
        A(f"v_mul_u32_u24 v19, {PITCH}, v17")
        A(f"v_lshl_add_u32 v19, v18, 5, v19")
        A(f"v_add_u32 {v(vRo[i])}, {LDS_G}, v19")
    for j in range(5):
        for g in range(4):
            A(f"ds_write_b128 {v(T)}, {v(ACC(j)+4*g,4)} offset:{j*128 + g*32}")
    A("s_waitcnt lgkmcnt(0)")
    lds_arrive(A, T + 2, T + 3)
    A(f"s_mov_b32 {s(sT1)}, 4")
    lds_wait(A, "gred", T + 2, T + 11, sT0, sT1)
    P0 = 16
    for i in range(3):
        if i == 2:
            A(f"v_cmp_gt_u32 vcc, 128, {v(vTid)}")
            A("s_nop 0")
            A("s_and_saveexec_b64 s[50:51], vcc")
            A("s_cbranch_execz L_main_gdone")
        for w in range(4):
            for hh in range(2):
                A(f"ds_read_b128 {v(P0+8*w+4*hh,4)}, {v(vRo[i])} offset:{w*REG + 16*hh}")
        A("s_waitcnt lgkmcnt(0)")
        for e in range(8):
            A(f"v_add_f32 {v(P0+e)}, {v(P0+e)}, {v(P0+8+e)}")
            A(f"v_add_f32 {v(P0+16+e)}, {v(P0+16+e)}, {v(P0+24+e)}")
        for e in range(8):
            A(f"v_add_f32 {v(P0+e)}, {v(P0+e)}, {v(P0+16+e)}")
        for e in range(4):
            A(f"v_cvt_pk_bf16_f32 {v(P0+32+e)}, {v(P0+2*e)}, {v(P0+2*e+1)}")
        A(f"buffer_store_dwordx4 {v(P0+32,4)}, {v(vXo[i])}, {s(sOut,4)}, {s(sXo)} offen")
        A("s_nop 1")
    A.label("L_main_gdone")
    A("s_mov_b64 exec, -1")
    stamp(A, 4)
    stamp_flush(A, 5, 69, sWS, 16)
    A.label("L_main_end")
    A("s_endpgm")
    return NAME, 768, LDS_BYTES, descriptor(NAME, NV)

def zero_flags(A, sWS, sLw, sRb, sCt, vL):
    A(f"s_load_dwordx2 s[4:5], s[0:1], {K_WD}")
    A(f"s_load_dwordx2 s[6:7], s[0:1], {K_WO}")
    A(f"s_or_b32 s31, s2, {s(sLw)}")
    A("s_cmp_lg_u32 s31, 0")
    A("s_cbranch_scc1 L_k1_noflag")
    A(f"v_lshlrev_b32 v10, 8, {v(vL)}")
    A("v_mov_b32 v11, 0")
    A(f"s_mov_b32 s31, {WS_FLAG}")
    A(f"buffer_store_dword v11, v10, {s(sWS,4)}, s31 offen")
    A.label("L_k1_noflag")
    if PREFETCH_W:
        A("s_waitcnt lgkmcnt(0)")
        srd(A, 8, 4, F * D * 2)
        srd(A, 12, 6, D * D * 2)
        A.c("1024 helper waves: two KiB of Wd each (1920 KiB), one KiB of Wo for the first 800")
        A(f"s_lshl_b32 s31, s2, 2")
        A(f"s_add_u32 s31, s31, {s(sLw)}")
        A(f"v_lshlrev_b32 v10, 4, {v(vL)}")
        A(f"s_lshl_b32 s32, s31, 11")
        A(f"buffer_load_dwordx4 v[16:19], v10, s[8:11], s32 offen")
        A(f"buffer_load_dwordx4 v[20:23], v10, s[8:11], s32 offen offset:1024")
        A(f"s_lshl_b32 s32, s31, 10")
        A(f"buffer_load_dwordx4 v[24:27], v10, s[12:15], s32 offen")
    if PREFETCH_CODE:
        A(f"s_cmp_ge_u32 s2, 8")
        A("s_cbranch_scc1 L_k1_nocode")
        code_prefetch(A, "k2code", NAME, 4, 46, 12, 28, vL)
        A.label("L_k1_nocode")
PREFETCH_W = True
PREFETCH_CODE = False
```

```python
from common import *
import common

NAME = "norm_kernel"

def gen(A, code_labels=(), variant=''):
    SC = ' sc1' if 'sc1' in variant else ''
    sX, sWS, sP = 8, 12, 16
    kernel_header(A, NAME)
    A("s_cmp_ge_u32 s2, 256")
    A("s_cbranch_scc1 L_k0_end")
    A(f"s_load_dwordx4 s[4:7], s[0:1], {K_X}")
    A(f"s_load_dwordx2 s[28:29], s[0:1], {K_WS}")
    A(f"s_load_dwordx2 s[20:21], s[0:1], {K_WO}")
    A(f"s_load_dwordx4 s[24:27], s[0:1], {K_WG}")
    A(f"s_load_dwordx2 s[22:23], s[0:1], {K_WD}")
    A.c("thread u: token j = u & 7 of this workgroup's eight, granules g = u >> 3 and g + 40")
    A("v_and_b32 v1, 7, v0")
    A("v_lshrrev_b32 v2, 3, v0")
    A("v_mul_u32_u24 v3, 1280, v1")
    A("v_lshl_add_u32 v3, v2, 4, v3")
    A("v_and_b32 v30, 63, v0")
    A("v_lshrrev_b32 v31, 6, v0")
    A("s_mul_i32 s30, s2, 10240")
    A("v_readfirstlane_b32 s31, v31")
    A("s_waitcnt lgkmcnt(0)")
    srd(A, sX, 4, S * D * 2)
    A(f"buffer_load_dwordx4 v[4:7], v3, {s(sX,4)}, s30 offen")
    A(f"buffer_load_dwordx4 v[8:11], v3, {s(sX,4)}, s30 offen offset:640")
    srd(A, sWS, 28, WS_SIZE)
    stamp(A, 0)
    if common.STAMPS:
        A("s_mul_i32 s36, s2, 5")
        A("s_add_u32 s36, s36, s31")
    A.c("prefetch: wave n = 5*wg + w of 1280 touches its share of every weight matrix (results unused)")
    A("s_mul_i32 s32, s2, 5")
    A("s_add_u32 s32, s32, s31")
    A("v_lshlrev_b32 v29, 4, v30")
    for (base, nbytes) in ((6, D * 3 * D * 2), (24, D * F * 2), (26, D * F * 2), (22, F * D * 2), (20, D * D * 2)):
        per = -(-nbytes // (1280 * 1024))
        srd(A, sP, base, nbytes)
        A(f"s_mul_i32 s33, s32, {per*1024}")
        for i in range(per):
            A(f"buffer_load_dwordx4 v[48:51], v29, {s(sP,4)}, s33 offen offset:{i*1024}")
    for n, (lab, kb) in enumerate(code_labels):
        A(f"s_cmp_ge_u32 s32, {kb}")
        A(f"s_cbranch_scc1 L_k0_code{n}")
        A(f"s_getpc_b64 s[34:35]")
        A.label(f"L_k0_pc{n}")
        A(f"s_add_u32 s34, s34, {lab}-L_k0_pc{n}")
        A(f"s_addc_u32 s35, s35, 0")
        A(f"s_lshl_b32 s33, s32, 10")
        A(f"v_add_u32 v28, s33, v29")
        A(f"global_load_dwordx4 v[48:51], v28, s[34:35]")
        A.label(f"L_k0_code{n}")
    A.c("hand-off counters of the main kernel")
    A("s_cmp_lg_u32 s32, 0")
    A("s_cbranch_scc1 L_k0_noflag")
    A("v_lshlrev_b32 v28, 8, v30")
    A("v_mov_b32 v27, 0")
    A(f"s_mov_b32 s33, {WS_FLAG}")
    A(f"buffer_store_dword v27, v28, {s(sWS,4)}, s33 offen")
    A.label("L_k0_noflag")
    nv = sum(-(-nb // (1280 * 1024)) for nb in (D * 3 * D * 2, D * F * 2, D * F * 2, F * D * 2, D * D * 2))
    A.c("the two row loads are the oldest requests")
    A(f"s_waitcnt vmcnt({nv})")
    for k in range(8):
        A(f"v_lshlrev_b32 v{32+2*k}, 16, v{4+k}")
        A(f"v_and_b32 v{33+2*k}, 0xffff0000, v{4+k}")
    A("v_add_f32 v12, v32, v33")
    A("v_mul_f32 v13, v32, v32")
    A("v_fmac_f32 v13, v33, v33")
    for k in range(2, 16):
        A(f"v_add_f32 v12, v12, v{32+k}")
        A(f"v_fmac_f32 v13, v{32+k}, v{32+k}")
    A.c("add over the eight lanes of a wave that hold the same token (lane bits 3, 4, 5)")
    for r in (12, 13):
        A(f"v_mov_b32 v14, v{r}")
        A("s_nop 1")
        A(f"v_add_f32_dpp v{r}, v14, v{r} row_ror:8 row_mask:0xf bank_mask:0xf")
        A(f"v_mov_b32 v14, v{r}")
        A("s_nop 1")
        A(f"v_permlane16_swap_b32 v14, v{r}")
        A("s_nop 0")
        A(f"v_add_f32 v{r}, v{r}, v14")
        A(f"v_mov_b32 v14, v{r}")
        A("s_nop 1")
        A(f"v_permlane32_swap_b32 v14, v{r}")
        A("s_nop 0")
        A(f"v_add_f32 v{r}, v{r}, v14")
    A.c("partial sums of the five waves meet in LDS: [wave][token][2]")
    A("v_lshlrev_b32 v15, 3, v1")
    A("v_lshl_add_u32 v16, v31, 6, v15")
    A("ds_write_b64 v16, v[12:13]")
    A("s_waitcnt lgkmcnt(0)")
    A("s_barrier")
    for w in range(5): A(f"ds_read_b64 v[{16+2*w}:{17+2*w}], v15 offset:{64*w}")
    A("s_waitcnt lgkmcnt(0)")
    A("v_add_f32 v16, v16, v18"); A("v_add_f32 v17, v17, v19")
    A("v_add_f32 v20, v20, v22"); A("v_add_f32 v21, v21, v23")
    A("v_add_f32 v16, v16, v20"); A("v_add_f32 v17, v17, v21")
    A("v_add_f32 v16, v16, v24"); A("v_add_f32 v17, v17, v25")
    A(f"v_mul_f32 v16, {f32bits(1.0/D):#x}, v16")
    A(f"v_mul_f32 v17, {f32bits(1.0/D):#x}, v17")
    A("v_fma_f32 v17, -v16, v16, v17")
    A("v_max_f32 v17, 0, v17")
    A(f"v_add_f32 v17, {f32bits(1e-5):#x}, v17")
    A("v_rsq_f32 v17, v17")
    A("s_nop 0")
    A("v_mul_f32 v16, v16, v17")
    A("v_sub_f32 v16, 0, v16")
    for k in range(16): A(f"v_fma_f32 v{32+k}, v{32+k}, v17, v16")
    for k in range(8): A(f"v_cvt_pk_bf16_f32 v{4+k}, v{32+2*k}, v{33+2*k}")
    A.c("granule g -> step g>>1, half g&1; token tile wg>>2, tokens (wg&3)*8 + j")
    A("v_lshrrev_b32 v12, 1, v2")
    A("v_lshlrev_b32 v12, 10, v12")
    A("v_and_b32 v13, 1, v2")
    A("v_lshl_add_u32 v12, v13, 9, v12")
    A("v_lshl_add_u32 v12, v1, 4, v12")
    A("s_lshr_b32 s30, s2, 2")
    A(f"s_mul_i32 s30, s30, {40*1024}")
    A("s_and_b32 s33, s2, 3")
    A("s_lshl_b32 s33, s33, 7")
    A("s_add_u32 s30, s30, s33")
    A(f"s_add_u32 s30, s30, {WS_XN}")
    A(f"buffer_store_dwordx4 v[4:7], v12, {s(sWS,4)}, s30 offen{SC}")
    A(f"s_add_u32 s30, s30, {20*1024}")
    A(f"buffer_store_dwordx4 v[8:11], v12, {s(sWS,4)}, s30 offen{SC}")
    if common.STAMPS: A("s_waitcnt vmcnt(0)")
    stamp(A, 1)
    stamp_flush(A, 2, 36, sWS, 52)
    A.label("L_k0_end")
    A("s_endpgm")
    return NAME, 320, 512, descriptor(NAME, 56, nsgpr=96)
```

```python
from common import *
import common

NAME = "proj_kernel"
XS, WSZ = 16384, 20480
NXS, NWS = 3, 5
LDS_X = 0
LDS_W = NXS * XS
LDS_STATS = LDS_W + NWS * WSZ
LDS_CS = LDS_STATS + 1024
LDS_BYTES = LDS_CS + 1280
NV = 256
IMG = {0: dict(q=(0, 128, 1), g=(4096, 256, 2), u=(12288, 256, 2)),
       1: dict(q=(0, 384, 3), g=(12288, 128, 1), u=(16384, 128, 1))}
SLOTS = {0: [("q", 0, 1), ("g", 0, 2), ("u", 0, 2), ("g", 1, 2), ("u", 1, 2)],
         1: [("q", 0, 3), ("q", 1, 3), ("q", 2, 3), ("g", 0, 1), ("u", 0, 1)]}

def frag_addrs(A, typ, dst, vL, sCol, vT, extra_rows_s=None):
    vR, vRow, vIn, vB = vT, vT + 1, vT + 2, vT + 3
    A(f"v_bfe_u32 {v(vR)}, {v(vL)}, 2, 2")
    A(f"v_lshrrev_b32 {v(vRow)}, 5, {v(vL)}")
    A(f"v_lshl_add_u32 {v(vRow)}, {v(vRow)}, 3, {v(vR)}")
    if extra_rows_s is not None: A(f"v_add_u32 {v(vRow)}, {s(extra_rows_s)}, {v(vRow)}")
    A(f"v_bfe_u32 {v(vIn)}, {v(vL)}, 4, 1")
    A(f"v_lshlrev_b32 {v(vIn)}, 5, {v(vIn)}")
    A(f"v_and_b32 {v(vB)}, 3, {v(vL)}")
    A(f"v_lshl_add_u32 {v(vIn)}, {v(vB)}, 3, {v(vIn)}")
    for j, (kind, b0, step) in enumerate(SLOTS[typ]):
        off, pitch, n = IMG[typ][kind]
        A(f"s_mul_i32 s64, {s(sCol)}, {step}")
        A(f"s_add_u32 s64, s64, {b0}")
        if n == 2:
            A(f"v_xor_b32 {v(vB)}, s64, {v(vR)}")
        else:
            A(f"v_lshrrev_b32 {v(vB)}, 1, {v(vR)}")
            A(f"v_xor_b32 {v(vB)}, s64, {v(vB)}")
        A(f"v_lshl_add_u32 {v(vB)}, {v(vB)}, 6, {v(vIn)}")
        A(f"v_mul_u32_u24 {v(dst[j])}, {pitch}, {v(vRow)}")
        A(f"v_add_u32 {v(dst[j])}, {v(dst[j])}, {v(vB)}")
        A(f"v_add_u32 {v(dst[j])}, {LDS_W + off}, {v(dst[j])}")

def gen(A, prefetch=None, variant="", extra_tail=None):
    SC = ' sc1' if 'plainst' not in variant else ''
    sX, sW, sG, sU, sWS = 8, 12, 16, 20, 24
    sWave, sRb, sCt, sT0, sT1, sT2, sT3, sI = 28, 29, 30, 31, 32, 33, 34, 35
    kernel_header(A, NAME)
    A("s_cmp_ge_u32 s2, 256")
    A("s_cbranch_scc1 L_k1_end")
    A(f"s_load_dwordx4 s[4:7], s[0:1], {K_X}")
    A(f"s_load_dwordx4 s[36:39], s[0:1], {K_WG}")
    A(f"s_load_dwordx2 s[40:41], s[0:1], {K_WS}")
    A("v_lshrrev_b32 v1, 6, v0")
    A("v_and_b32 v2, 63, v0")
    A(f"v_readfirstlane_b32 {s(sWave)}, v1")
    A.c("workgroup -> (row block, column tile): each XCD covers 8 row blocks x 4 column tiles")
    A(f"s_and_b32 {s(sT0)}, s2, 7")
    A(f"s_lshr_b32 {s(sT1)}, s2, 3")
    A(f"s_and_b32 {s(sRb)}, {s(sT0)}, 1")
    A(f"s_lshl_b32 {s(sRb)}, {s(sRb)}, 3")
    A(f"s_and_b32 {s(sT2)}, {s(sT1)}, 7")
    A(f"s_add_u32 {s(sRb)}, {s(sRb)}, {s(sT2)}")
    A(f"s_lshr_b32 {s(sCt)}, {s(sT0)}, 1")
    A(f"s_lshl_b32 {s(sCt)}, {s(sCt)}, 2")
    A(f"s_lshr_b32 {s(sT2)}, {s(sT1)}, 3")
    A(f"s_add_u32 {s(sCt)}, {s(sCt)}, {s(sT2)}")
    A(f"s_and_b32 {s(sI)}, {s(sCt)}, 7")
    A("s_waitcnt lgkmcnt(0)")
    srd(A, sX, 4, S * D * 2)
    srd(A, sW, 6, D * 3 * D * 2)
    srd(A, sG, 36, D * F * 2)
    srd(A, sU, 38, D * F * 2)
    srd(A, sWS, 40, WS_SIZE)
    vL = 2
    stamp(A, 0)
    if "tlb" in variant:
        A.c("touch every page of the buffers early so that address translation misses overlap")
        A(f"v_lshlrev_b32 v3, 19, {v(vL)}")
        for k, d in enumerate((sX, sW, sG, sU, sWS)):
            A(f"s_cmp_lg_u32 {s(sWave)}, {k}")
            A(f"s_cbranch_scc1 L_k1_tlb{k}")
            A(f"buffer_load_dword v31, v3, {s(d,4)}, 0 offen")
            A.label(f"L_k1_tlb{k}")
    if common.STAMPS:
        A(f"s_lshl_b32 s69, s2, 3")
        A(f"s_add_u32 s69, s69, {s(sWave)}")
    A(f"s_cmp_ge_u32 {s(sWave)}, 4")
    A("s_cbranch_scc1 L_k1_loader")

    vT, vHf = 3, 4
    vXa = [[5 + 4 * sg + k for k in range(4)] for sg in range(2)]
    vWa = [13, 14, 15, 16, 17]
    vSum, vSq = [18, 19], [20, 21]
    vU = [22, 23, 24, 25]
    vTmp = 26
    FX = lambda p, sg: 32 + 28 * p + 4 * sg
    FW = lambda p, j: 32 + 28 * p + 8 + 4 * j
    ACC = lambda j, sg: 96 + 32 * j + 16 * sg
    sWm, sWn, sTT0, sTT1 = 42, 43, 44, 45
    A(f"s_lshr_b32 {s(sWm)}, {s(sWave)}, 1")
    A(f"s_and_b32 {s(sWn)}, {s(sWave)}, 1")
    A(f"s_lshl_b32 {s(sT0)}, {s(sWm)}, 1")
    A(f"s_add_u32 {s(sTT0)}, {s(sT0)}, {s(sWn)}")
    A(f"s_xor_b32 {s(sTT1)}, {s(sTT0)}, 1")
    A(f"v_and_b32 {v(vT)}, 31, {v(vL)}")
    A(f"v_lshrrev_b32 {v(vHf)}, 5, {v(vL)}")
    A.c("x fragment addresses: t*128 + 16*((2s+h) ^ ((t>>1)&7)) + tile*4096")
    A(f"v_bfe_u32 {v(vTmp)}, {v(vT)}, 1, 3")
    A(f"v_xor_b32 {v(vTmp)}, {v(vTmp)}, {v(vHf)}")
    A(f"v_lshlrev_b32 {v(vTmp)}, 4, {v(vTmp)}")
    A(f"v_lshl_add_u32 {v(vTmp)}, {v(vT)}, 7, {v(vTmp)}")
    for sg, st in ((0, sTT0), (1, sTT1)):
        A(f"s_lshl_b32 {s(sT0)}, {s(st)}, 12")
        A(f"v_add_u32 {v(vXa[sg][0])}, {s(sT0)}, {v(vTmp)}")
        for k in range(1, 4):
            A(f"v_xor_b32 {v(vXa[sg][k])}, {32*k}, {v(vXa[sg][0])}")
    if "nopf" not in variant:
        A.c("every compute wave touches its share of x and of the three weight matrices, so that later copies find them on chip")
        A(f"s_lshl_b32 {s(sT0)}, s2, 2")
        A(f"s_add_u32 {s(sT0)}, {s(sT0)}, {s(sWave)}")
        A(f"v_lshlrev_b32 v25, 4, {v(vL)}")
        for d, nb in ((sW, D*3*D*2), (sG, D*F*2), (sU, D*F*2), (sX, S*D*2)):
            per = -(-nb // (1024 * 1024))
            A(f"s_mul_i32 {s(sT1)}, {s(sT0)}, {per*1024}")
            for i in range(per):
                A(f"buffer_load_dwordx4 v[88:91], v25, {s(d,4)}, {s(sT1)} offen offset:{i*1024}")
    for r in vSum + vSq: A(f"v_mov_b32 {v(r)}, 0")
    if "sdot" in variant: A(f"v_mov_b32 {v(vU[0])}, 0x3f803f80")
    for r in range(96, 256): A(f"v_mov_b32 {v(r)}, 0")

    def mainloop(typ):
        pitch = [IMG[typ][k][1] for (k, _, _) in SLOTS[typ]]
        tag = f"L_k1_loop{typ}"
        sXs, sWsl, sCnt, sDw, sDx = 50, 51, 52, 53, 63
        frag_addrs(A, typ, vWa, vL, sWn, vTmp)
        if prefetch: prefetch(A, f"k1_{typ}", tag, typ)
        def reads(p, sub):
            out = [f"ds_read_b128 {v(FX(p,sg),4)}, {v(vXa[sg][sub])}" for sg in range(2)]
            for j in range(5):
                for i in range(2):
                    out.append(f"ds_read_b64_tr_b16 {v(FW(p,j)+2*i,2)}, {v(vWa[j])} offset:{(16*(sub&1)+4*i)*pitch[j]}")
            return out
        if "prio" in variant: A("s_setprio 2")
        A("s_barrier")
        stamp(A, 2)
        for ln in reads(0, 0): A(ln)
        A(f"s_mov_b32 {s(sXs)}, 0")
        A(f"s_mov_b32 {s(sWsl)}, 0")
        A(f"s_mov_b32 {s(sCnt)}, 10")
        A(".p2align 3")
        A.label(tag)
        if "trips" in variant:
            A("s_memtime s[66:67]")
            A("s_waitcnt lgkmcnt(0)")
            A("s_sub_u32 s66, s66, s80")
            A("v_mov_b32 v26, s66")
            A(f"s_lshl_b32 s67, s69, 6")
            A(f"s_sub_u32 s66, 10, {s(sCnt)}")
            A("s_lshl_b32 s66, s66, 2")
            A("s_add_u32 s67, s67, s66")
            A(f"s_add_u32 s67, s67, {WS_STAMP + 0x40000}")
            A("v_mov_b32 v27, 0")
            A(f"buffer_store_dword v26, v27, {s(sWS,4)}, s67 offen")
        for n in range(4):
            p = n & 1; nn = (n + 1) & 3
            if n & 1: A("s_barrier")
            mf = lambda j, sg: f"v_mfma_f32_32x32x16_bf16 {v(ACC(j,sg),16)}, {v(FW(p,j),4)}, {v(FX(p,sg),4)}, {v(ACC(j,sg),16)}"
            st = []
            for k in range(4):
                r = FX(p, 0) + k; lo, hi = vU[2 * (k & 1)], vU[2 * (k & 1) + 1]
                st += [f"v_lshlrev_b32 {v(lo)}, 16, {v(r)}", f"v_and_b32 {v(hi)}, 0xffff0000, {v(r)}",
                       f"v_add_f32 {v(vSum[0])}, {v(vSum[0])}, {v(lo)}", f"v_add_f32 {v(vSum[1])}, {v(vSum[1])}, {v(hi)}",
                       f"v_fmac_f32 {v(vSq[0])}, {v(lo)}, {v(lo)}", f"v_fmac_f32 {v(vSq[1])}, {v(hi)}, {v(hi)}"]
            if "sdot" in variant:
                st = []
                for k in range(4):
                    st += [f"v_dot2c_f32_bf16 {v(vSum[0])}, {v(FX(p,0)+k)}, {v(vU[0])}", f"v_dot2c_f32_bf16 {v(vSq[0])}, {v(FX(p,0)+k)}, {v(FX(p,0)+k)}"]
            rd = reads(1 - p, nn)
            gap = {m: [] for m in range(10)}
            updx = lambda k: [f"v_add_u32 {v(vXa[sg][k])}, {s(sDx)}, {v(vXa[sg][k])}" for sg in range(2)]
            updw = lambda j: [f"v_add_u32 {v(vWa[j])}, {s(sDw)}, {v(vWa[j])}"]
            if n == 3: gap[0] += updx(0)
            gap[0] += rd[0:2]
            for j in range(5):
                m = 1 + 2 * j
                if n & 1: gap[m] += updw(j)
                gap[m] += rd[2 + 2 * j: 4 + 2 * j]
            tail = []
            if n == 3:
                for k in range(1, 4): tail += updx(k)
            if n & 1 == 0:
                tail += [f"s_add_u32 {s(sT0)}, {s(sWsl)}, {WSZ}", f"s_cmp_eq_u32 {s(sT0)}, {NWS*WSZ}", f"s_cselect_b32 {s(sT0)}, 0, {s(sT0)}",
                         f"s_sub_u32 {s(sDw)}, {s(sT0)}, {s(sWsl)}", f"s_mov_b32 {s(sWsl)}, {s(sT0)}"]
                if n == 2:
                    tail += [f"s_add_u32 {s(sT0)}, {s(sXs)}, {XS}", f"s_cmp_eq_u32 {s(sT0)}, {NXS*XS}", f"s_cselect_b32 {s(sT0)}, 0, {s(sT0)}",
                             f"s_sub_u32 {s(sDx)}, {s(sT0)}, {s(sXs)}", f"s_mov_b32 {s(sXs)}, {s(sT0)}"]
            fill = st + tail
            quota = {m: 0 for m in range(10)}
            room = {m: max(0, 5 - len(gap[m])) for m in range(10)}
            left = len(fill)
            while left:
                progressed = False
                for m in range(10):
                    if left and quota[m] < room[m]:
                        quota[m] += 1; left -= 1; progressed = True
                if not progressed:
                    for m in range(10):
                        if left: quota[m] += 1; left -= 1
            fi = 0
            for m, (j, sg) in enumerate([(j, sg) for j in range(5) for sg in range(2)]):
                if sg == 0: A(f"s_waitcnt lgkmcnt({8 if j == 0 else 10})")
                A(mf(j, sg))
                for ln in gap[m]: A(ln)
                for ln in fill[fi:fi + quota[m]]: A(ln)
                fi += quota[m]
        A(f"s_sub_u32 {s(sCnt)}, {s(sCnt)}, 1")
        A(f"s_cmp_lg_u32 {s(sCnt)}, 0")
        A(f"s_cbranch_scc1 {tag}")

    A(f"s_cmp_ge_u32 {s(sCt)}, 8")
    A("s_cbranch_scc1 L_k1_main1")
    mainloop(0)
    A("s_branch L_k1_post")
    A.label("L_k1_main1")
    mainloop(1)
    A.label("L_k1_post")
    stamp(A, 3)

    t0, t1 = vTmp, vTmp + 1
    A("s_waitcnt vmcnt(0) lgkmcnt(0)")
    A("s_nop 2")
    A(f"v_add_f32 {v(vSum[0])}, {v(vSum[0])}, {v(vSum[1])}")
    A(f"v_add_f32 {v(vSq[0])}, {v(vSq[0])}, {v(vSq[1])}")
    A(f"s_lshl_b32 {s(sT0)}, {s(sTT0)}, 8")
    A(f"s_add_u32 {s(sT0)}, {s(sT0)}, {LDS_STATS}")
    A(f"v_mov_b32 v32, {v(vSum[0])}")
    A(f"v_mov_b32 v33, {v(vSq[0])}")
    A(f"v_lshl_add_u32 {v(t0)}, {v(vT)}, 3, {s(sT0)}")
    A("s_nop 0")
    A(f"v_permlane32_swap_b32 {v(vSum[0])}, v32")
    A(f"v_permlane32_swap_b32 {v(vSq[0])}, v33")
    A("s_nop 0")
    A(f"v_add_f32 {v(vSum[0])}, {v(vSum[0])}, v32")
    A(f"v_add_f32 {v(vSq[0])}, {v(vSq[0])}, v33")
    vMu, vRs = 40, 41
    A(f"v_mul_f32 {v(vMu)}, {f32bits(1.0/D):#x}, {v(vSum[0])}")
    A(f"v_mul_f32 {v(t1)}, {f32bits(1.0/D):#x}, {v(vSq[0])}")
    A(f"v_fma_f32 {v(t1)}, -{v(vMu)}, {v(vMu)}, {v(t1)}")
    A(f"v_max_f32 {v(t1)}, 0, {v(t1)}")
    A(f"v_add_f32 {v(t1)}, {f32bits(1e-5):#x}, {v(t1)}")
    A(f"v_rsq_f32 {v(vRs)}, {v(t1)}")
    A("s_nop 0")
    A(f"ds_write_b64 {v(t0)}, {v(vMu,2)}")
    A("s_waitcnt lgkmcnt(0)")
    A("s_barrier")
    stamp(A, 4)
    ST = [6, 8]
    for sg, st in ((0, sTT0), (1, sTT1)):
        A(f"s_lshl_b32 {s(sT0)}, {s(st)}, 8")
        A(f"s_add_u32 {s(sT0)}, {s(sT0)}, {LDS_STATS}")
        A(f"v_lshl_add_u32 {v(t0)}, {v(vT)}, 3, {s(sT0)}")
        A(f"ds_read_b64 {v(ST[sg],2)}, {v(t0)}")
    vCsA = 5
    A(f"s_mul_i32 {s(sT0)}, {s(sWn)}, 640")
    A(f"s_add_u32 {s(sT0)}, {s(sT0)}, {LDS_CS}")
    A(f"v_lshl_add_u32 {v(vCsA)}, {v(vHf)}, 4, {s(sT0)}")
    NMU = [10, 12]; RF = [14, 16]; TM = 18; PK = 26
    CS = lambda u, g: 32 + 16 * u + 4 * g
    def load_cs(j, u):
        for g in range(4): A(f"ds_read_b128 {v(CS(u,g),4)}, {v(vCsA)} offset:{128*j + 32*g}")
    vQo, vLin = 30, 31
    A(f"v_lshlrev_b32 {v(vQo)}, 3, {v(vT)}")
    A(f"v_lshl_add_u32 {v(vQo)}, {v(vHf)}, 14, {v(vQo)}")
    A(f"v_lshlrev_b32 {v(vLin)}, 4, {v(vL)}")
    sTok = [54, 55]; sHb = [56, 57]; sU0, sFac = 58, 59
    for sg, st in ((0, sTT0), (1, sTT1)):
        A(f"s_lshl_b32 {s(sT0)}, {s(sRb)}, 2")
        A(f"s_add_u32 {s(sT0)}, {s(sT0)}, {s(st)}")
        A(f"s_lshl_b32 {s(sTok[sg])}, {s(sT0)}, 8")
        A(f"s_add_u32 {s(sTok[sg])}, {s(sTok[sg])}, {WS_QKV}")
        A(f"s_mul_i32 {s(sHb[sg])}, {s(sT0)}, {96*1024}")
        A(f"s_add_u32 {s(sHb[sg])}, {s(sHb[sg])}, {WS_H}")
    A("s_waitcnt lgkmcnt(0)")
    for sg in range(2):
        A(f"v_sub_f32 {v(NMU[sg])}, 0, {v(ST[sg])}")
        A(f"v_mov_b32 {v(RF[sg])}, {v(ST[sg]+1)}")
        A(f"v_mul_f32 {v(RF[sg]+1)}, {f32bits(-LOG2E):#x}, {v(ST[sg]+1)}")

    def q_tile(j, u):
        A(f"s_cmp_lt_u32 {s(sU0)}, 160")
        A(f"s_cselect_b32 {s(sFac)}, {f32bits(QSCALE):#x}, 1.0")
        A(f"s_lshl_b32 {s(sT1)}, {s(sU0)}, 14")
        QF = [20, 22]
        for sg in range(2): A(f"v_mul_f32 {v(QF[sg])}, {s(sFac)}, {v(ST[sg]+1)}")
        for g in range(4):
            for sg in range(2):
                acc = ACC(j, sg) + 4 * g
                for e in range(2):
                    A(f"v_pk_fma_f32 {v(acc+2*e,2)}, {v(CS(u,g)+2*e,2)}, {v(NMU[sg],2)}, {v(acc+2*e,2)} op_sel_hi:[1,0,1]")
            for sg in range(2):
                acc = ACC(j, sg) + 4 * g
                for e in range(2):
                    A(f"v_pk_mul_f32 {v(acc+2*e,2)}, {v(acc+2*e,2)}, {v(QF[sg],2)} op_sel_hi:[1,0]")
            for sg in range(2):
                acc = ACC(j, sg) + 4 * g
                for e in range(2):
                    A(f"v_cvt_pk_bf16_f32 {v(acc+e)}, {v(acc+2*e)}, {v(acc+2*e+1)}")
            for sg in range(2):
                A(f"s_add_u32 {s(sT0)}, {s(sT1)}, {s(sTok[sg])}")
                A(f"s_add_u32 {s(sT0)}, {s(sT0)}, {2*g*PLANE}")
                A(f"buffer_store_dwordx2 {v(ACC(j,sg)+4*g,2)}, {v(vQo)}, {s(sWS,4)}, {s(sT0)} offen{SC}")

    def gu_pair(jg, ju, step_s):
        for sg in range(2):
            g0, u0 = ACC(jg, sg), ACC(ju, sg)
            for g in range(4):
                for e in range(2):
                    A(f"v_pk_fma_f32 {v(g0+4*g+2*e,2)}, {v(CS(0,g)+2*e,2)}, {v(NMU[sg],2)}, {v(g0+4*g+2*e,2)} op_sel_hi:[1,0,1]")
                    A(f"v_pk_fma_f32 {v(u0+4*g+2*e,2)}, {v(CS(1,g)+2*e,2)}, {v(NMU[sg],2)}, {v(u0+4*g+2*e,2)} op_sel_hi:[1,0,1]")
            for half in range(2):
                o = 8 * half
                for e in range(4):
                    A(f"v_pk_mul_f32 {v(TM+2*e,2)}, {v(g0+o+2*e,2)}, {v(RF[sg],2)} op_sel:[0,1] op_sel_hi:[1,1]")
                for e in range(4):
                    A(f"v_pk_mul_f32 {v(g0+o+2*e,2)}, {v(g0+o+2*e,2)}, {v(RF[sg],2)} op_sel_hi:[1,0]")
                for e in range(8): A(f"v_exp_f32 {v(TM+e)}, {v(TM+e)}")
                for e in range(4):
                    A(f"v_pk_mul_f32 {v(u0+o+2*e,2)}, {v(u0+o+2*e,2)}, {v(RF[sg],2)} op_sel_hi:[1,0]")
                for e in range(4):
                    A(f"v_pk_add_f32 {v(TM+2*e,2)}, {v(TM+2*e,2)}, 1.0 op_sel_hi:[1,0]")
                for e in range(4):
                    A(f"v_pk_mul_f32 {v(u0+o+2*e,2)}, {v(u0+o+2*e,2)}, {v(g0+o+2*e,2)}")
                for e in range(8): A(f"v_rcp_f32 {v(TM+e)}, {v(TM+e)}")
                A(f"s_add_u32 {s(sT0)}, {s(step_s)}, {half}")
                A(f"s_lshl_b32 {s(sT0)}, {s(sT0)}, 10")
                A(f"s_add_u32 {s(sT0)}, {s(sT0)}, {s(sHb[sg])}")
                for e in range(4):
                    A(f"v_pk_mul_f32 {v(u0+o+2*e,2)}, {v(u0+o+2*e,2)}, {v(TM+2*e,2)}")
                for e in range(4):
                    A(f"v_cvt_pk_bf16_f32 {v(g0+o+e)}, {v(u0+o+2*e)}, {v(u0+o+2*e+1)}")
                A(f"buffer_store_dwordx4 {v(g0+o,4)}, {v(vLin)}, {s(sWS,4)}, {s(sT0)} offen{SC}")

    sStep = 60
    A(f"s_cmp_ge_u32 {s(sCt)}, 8")
    A("s_cbranch_scc1 L_k1_epi1")
    A.c("type A: unit 16i + 8wn, gate tiles at step 8i + 4wn + 2e")
    load_cs(0, 2)
    load_cs(1, 0); load_cs(2, 1)
    A(f"s_lshl_b32 {s(sU0)}, {s(sI)}, 4")
    A(f"s_lshl_b32 {s(sT0)}, {s(sWn)}, 3")
    A(f"s_add_u32 {s(sU0)}, {s(sU0)}, {s(sT0)}")
    A(f"s_lshr_b32 {s(sStep)}, {s(sU0)}, 1")
    A("s_waitcnt lgkmcnt(8)")
    q_tile(0, 2)
    A("s_waitcnt lgkmcnt(0)")
    gu_pair(1, 2, sStep)
    load_cs(3, 0); load_cs(4, 1)
    A(f"s_add_u32 {s(sStep)}, {s(sStep)}, 2")
    A("s_waitcnt lgkmcnt(0)")
    gu_pair(3, 4, sStep)
    A("s_branch L_k1_done")
    A.label("L_k1_epi1")
    A.c("type B: units 128 + 48i + 24wn + 8q (only below 480), gate tile at step 64 + 4i + 2wn")
    load_cs(0, 2)
    load_cs(3, 0); load_cs(4, 1)
    A(f"s_mul_i32 {s(sU0)}, {s(sI)}, 48")
    A(f"s_mul_i32 {s(sT0)}, {s(sWn)}, 24")
    A(f"s_add_u32 {s(sU0)}, {s(sU0)}, {s(sT0)}")
    A(f"s_add_u32 {s(sU0)}, {s(sU0)}, 128")
    A(f"s_lshl_b32 {s(sStep)}, {s(sI)}, 2")
    A(f"s_lshl_b32 {s(sT0)}, {s(sWn)}, 1")
    A(f"s_add_u32 {s(sStep)}, {s(sStep)}, {s(sT0)}")
    A(f"s_add_u32 {s(sStep)}, {s(sStep)}, 64")
    A("s_waitcnt lgkmcnt(0)")
    gu_pair(3, 4, sStep)
    for q in range(3):
        A(f"s_cmp_ge_u32 {s(sU0)}, 480")
        A("s_cbranch_scc1 L_k1_done")
        if q:
            load_cs(q, 2)
            A("s_waitcnt lgkmcnt(0)")
        q_tile(q, 2)
        A(f"s_add_u32 {s(sU0)}, {s(sU0)}, 8")
    A.label("L_k1_done")
    stamp(A, 5)
    if common.STAMPS: A("s_waitcnt vmcnt(0)")
    stamp(A, 6)
    stamp_flush(A, 7, 69, sWS, 22)
    A("s_endpgm")

    A.label("L_k1_loader")
    sLw, sXo, sWo, sGo, sMx, sXsl, sWsl2, sCsl, sPair, sXk, sWk, sSp, sHalf = 42, 43, 44, 45, 46, 47, 48, 49, 50, 51, 52, 53, 54
    vXe, vXo = 3, 4
    vQ = [5, 6, 7]; vG = 8
    A(f"s_sub_u32 {s(sLw)}, {s(sWave)}, 4")
    if "hprio" in variant: A("s_setprio 3")
    A.c("x pieces: 8 rows x 128 B, granule p of row t holds source granule p ^ ((t>>1)&7)")
    A(f"v_lshrrev_b32 v10, 3, {v(vL)}")
    A(f"v_mul_u32_u24 v10, 1280, v10")
    A(f"v_and_b32 v11, 7, {v(vL)}")
    A(f"v_lshrrev_b32 v12, 4, {v(vL)}")
    A(f"v_xor_b32 v11, v11, v12")
    A(f"v_lshl_add_u32 {v(vXe)}, v11, 4, v10")
    A(f"v_xor_b32 v11, 4, v11")
    A(f"v_lshl_add_u32 {v(vXo)}, v11, 4, v10")
    A(f"s_lshl_b32 {s(sT0)}, {s(sRb)}, 7")
    A(f"s_lshl_b32 {s(sT1)}, {s(sLw)}, 5")
    A(f"s_add_u32 {s(sT0)}, {s(sT0)}, {s(sT1)}")
    A(f"s_mul_i32 {s(sXo)}, {s(sT0)}, 1280")
    A(f"s_lshl_b32 {s(sMx)}, {s(sLw)}, 12")
    A(f"s_add_u32 {s(sMx)}, {s(sMx)}, {LDS_X}")
    for r in (sXsl, sWsl2, sCsl): A(f"s_mov_b32 {s(r)}, 0")
    A.c("rotated k order: workgroups that share rows or columns start at different chunks")
    if "rot" in variant.split(","):
        A(f"s_and_b32 {s(sT0)}, {s(sCt)}, 3")
        A(f"s_mul_i32 {s(sT1)}, {s(sT0)}, 5")
        A(f"s_lshr_b32 {s(sT1)}, {s(sT1)}, 1")
        A(f"s_lshr_b32 {s(sT0)}, {s(sCt)}, 2")
        A(f"s_add_u32 {s(sT1)}, {s(sT1)}, {s(sT0)}")
        A(f"s_add_u32 {s(sT1)}, {s(sT1)}, {s(sRb)}")
        A(f"s_mul_i32 {s(sT0)}, {s(sT1)}, 205")
        A(f"s_lshr_b32 {s(sT0)}, {s(sT0)}, 11")
        A(f"s_mul_i32 {s(sT0)}, {s(sT0)}, 10")
        A(f"s_sub_u32 {s(sXk)}, {s(sT1)}, {s(sT0)}")
    else:
        A(f"s_mov_b32 {s(sXk)}, 0")
    A(f"s_lshl_b32 {s(sWk)}, {s(sXk)}, 1")
    A(f"s_lshl_b32 {s(sT0)}, {s(sXk)}, 7")
    A(f"s_add_u32 {s(sXo)}, {s(sXo)}, {s(sT0)}")
    A(f"s_and_b32 {s(sSp)}, {s(sLw)}, 1")
    A(f"s_lshr_b32 {s(sHalf)}, {s(sLw)}, 1")

    def lane_offsets(n, pitchg, dst):
        if n == 1:
            A(f"v_lshrrev_b32 v10, 3, {v(vL)}")
            A(f"v_bfe_u32 v11, v10, 1, 1")
            A(f"v_lshlrev_b32 v11, 2, v11")
            A(f"v_and_b32 v12, 7, {v(vL)}")
            A(f"v_xor_b32 v12, v12, v11")
            A(f"v_mul_u32_u24 v10, {pitchg}, v10")
            A(f"v_lshl_add_u32 {v(dst[0])}, v12, 4, v10")
        elif n == 2:
            A(f"v_lshrrev_b32 v10, 4, {v(vL)}")
            A(f"v_lshlrev_b32 v11, 2, v10")
            A(f"v_and_b32 v12, 15, {v(vL)}")
            A(f"v_xor_b32 v12, v12, v11")
            A(f"v_mul_u32_u24 v10, {pitchg}, v10")
            A(f"v_lshl_add_u32 {v(dst[0])}, v12, 4, v10")
        else:
            for e in range(3):
                A(f"v_add_u32 v10, {64*e}, {v(vL)}")
                A(f"v_mul_u32_u24 v11, 43691, v10")
                A(f"v_lshrrev_b32 v11, 20, v11")
                A(f"v_mul_u32_u24 v12, 24, v11")
                A(f"v_sub_u32 v12, v10, v12")
                A(f"v_bfe_u32 v13, v11, 1, 1")
                A(f"v_lshlrev_b32 v13, 2, v13")
                A(f"v_xor_b32 v12, v12, v13")
                A(f"v_mul_u32_u24 v11, {pitchg}, v11")
                A(f"v_lshl_add_u32 {v(dst[e])}, v12, 4, v11")

    def wrap(r, step, n):
        return [f"s_add_u32 {s(r)}, {s(r)}, {step}", f"s_cmp_eq_u32 {s(r)}, {step*n}", f"s_cselect_b32 {s(r)}, 0, {s(r)}"]

    ACS = [16, 17, 18, 19, 20]; ACH = [21, 22, 23, 14, 15]
    FB = lambda j: 24 + 4 * j
    vCa = [44, 45, 46, 47, 48]
    UP = [50, 51, 52, 53]; vOn = 54
    A4 = lambda j: 64 + 4 * j; vOn2 = 84

    def loader(typ):
        T = f"t{typ}"
        qoff, qp, qn = IMG[typ]["q"]; goff, gp, gn = IMG[typ]["g"]; uoff = IMG[typ]["u"][0]
        lane_offsets(qn, 3840, vQ)
        lane_offsets(gn, 3072, [vG])
        A.c("global offsets of this loader's 8 rows")
        A(f"s_mul_i32 {s(sWo)}, {s(sLw)}, {8*3840}")
        A(f"s_mul_i32 {s(sGo)}, {s(sLw)}, {8*3072}")
        if typ == 0:
            A(f"s_lshl_b32 {s(sT0)}, {s(sI)}, 7"); A(f"s_lshl_b32 {s(sT1)}, {s(sI)}, 8")
        else:
            A(f"s_mul_i32 {s(sT0)}, {s(sI)}, 384"); A(f"s_add_u32 {s(sT0)}, {s(sT0)}, 1024")
            A(f"s_lshl_b32 {s(sT1)}, {s(sI)}, 7"); A(f"s_add_u32 {s(sT1)}, {s(sT1)}, 2048")
        A(f"s_add_u32 {s(sWo)}, {s(sWo)}, {s(sT0)}")
        A(f"s_add_u32 {s(sGo)}, {s(sGo)}, {s(sT1)}")
        A(f"s_mul_i32 {s(sT0)}, {s(sWk)}, {32*3840}")
        A(f"s_add_u32 {s(sWo)}, {s(sWo)}, {s(sT0)}")
        A(f"s_mul_i32 {s(sT0)}, {s(sWk)}, {32*3072}")
        A(f"s_add_u32 {s(sGo)}, {s(sGo)}, {s(sT0)}")
        sMq, sMg, sB1, sB2 = 55, 56, 57, 58
        A(f"s_mul_i32 {s(sMq)}, {s(sLw)}, {8*qp}")
        A(f"s_add_u32 {s(sMq)}, {s(sMq)}, {LDS_W + qoff}")
        A(f"s_mul_i32 {s(sMg)}, {s(sLw)}, {8*gp}")
        A(f"s_add_u32 {s(sMg)}, {s(sMg)}, {LDS_W + goff}")
        def x_groups():
            g = []
            for ii in range(4):
                pre = [f"s_add_u32 {s(sB1)}, {s(sMx)}, {s(sXsl)}"] if ii == 0 else []
                g.append(pre + [f"s_add_u32 m0, {s(sB1)}, {ii*1024}", f"s_add_u32 {s(sT0)}, {s(sXo)}, {ii*10240}",
                                f"buffer_load_dwordx4 {v(vXo if ii & 1 else vXe)}, {s(sX,4)}, {s(sT0)} offen lds"])
            g[-1] += [f"s_add_u32 {s(sXo)}, {s(sXo)}, 128", f"s_add_u32 {s(sXk)}, {s(sXk)}, 1", f"s_cmp_eq_u32 {s(sXk)}, 10",
                      f"s_cselect_b32 {s(sT0)}, 1280, 0", f"s_cselect_b32 {s(sXk)}, 0, {s(sXk)}",
                      f"s_sub_u32 {s(sXo)}, {s(sXo)}, {s(sT0)}"] + wrap(sXsl, XS, NXS)
            return g
        def w_groups():
            g = []
            for e in range(qn):
                pre = [f"s_add_u32 {s(sB1)}, {s(sMq)}, {s(sWsl2)}", f"s_add_u32 {s(sB2)}, {s(sMg)}, {s(sWsl2)}"] if e == 0 else []
                g.append(pre + [f"s_add_u32 m0, {s(sB1)}, {e*1024}", "s_nop 0",
                                f"buffer_load_dwordx4 {v(vQ[e] if qn == 3 else vQ[0])}, {s(sW,4)}, {s(sWo)} offen lds"])
            for desc, off in ((sG, 0), (sU, uoff - goff)):
                for e in range(gn):
                    g.append([f"s_add_u32 m0, {s(sB2)}, {off + e*1024}", f"s_add_u32 {s(sT0)}, {s(sGo)}, {e*4*3072}",
                              f"buffer_load_dwordx4 {v(vG)}, {s(desc,4)}, {s(sT0)} offen lds"])
            g[-1] += [f"s_add_u32 {s(sWo)}, {s(sWo)}, {32*3840}", f"s_add_u32 {s(sGo)}, {s(sGo)}, {32*3072}",
                      f"s_add_u32 {s(sWk)}, {s(sWk)}, 1", f"s_cmp_eq_u32 {s(sWk)}, 20",
                      f"s_cselect_b32 {s(sT0)}, {640*3840}, 0", f"s_cselect_b32 {s(sT1)}, {640*3072}, 0", f"s_cselect_b32 {s(sWk)}, 0, {s(sWk)}",
                      f"s_sub_u32 {s(sWo)}, {s(sWo)}, {s(sT0)}", f"s_sub_u32 {s(sGo)}, {s(sGo)}, {s(sT1)}"] + wrap(sWsl2, WSZ, NWS)
            return g
        def emit(groups):
            for g in groups:
                for ln in g: A(ln)
        if "fine" in variant: stamp(A, 4)
        emit(x_groups()[:1])
        if "fine" in variant: stamp(A, 3)
        emit(x_groups()[1:] + w_groups())
        A.c("column sums: loader (step parity lw&1, wave column lw>>1) adds the fragments of five column tiles along k")
        A(f"s_lshl_b32 {s(sT2)}, {s(sSp)}, 4")
        frag_addrs(A, typ, vCa, vL, sHalf, 56, extra_rows_s=sT2)
        pitch = [IMG[typ][k][1] for (k, _, _) in SLOTS[typ]]
        for r in ACS + ACH: A(f"v_mov_b32 {v(r)}, 0")
        A(f"v_mov_b32 {v(vOn)}, 0x3f803f80")
        if "cs44" in variant:
            for r in range(64, 84): A(f"v_mov_b32 {v(r)}, 0")
            A(f"v_mov_b32 {v(vOn2)}, 0x3f803f80"); A(f"v_mov_b32 {v(vOn2+1)}, 0x3f803f80")
        def interval(groups):
            if "nocs" in variant:
                emit(groups); return
            for j in range(5):
                A(f"v_add_u32 v10, {s(sCsl)}, {v(vCa[j])}")
                A(f"ds_read_b64_tr_b16 {v(FB(j),2)}, v10")
                A(f"ds_read_b64_tr_b16 {v(FB(j)+2,2)}, v10 offset:{4*pitch[j]}")
            for ln in wrap(sCsl, WSZ, NWS): A(ln)
            work = []
            for j in range(5):
                w = [f"s_waitcnt lgkmcnt({8-2*j})"]
                for k in range(4):
                    lo, hi = UP[2 * (k & 1)], UP[2 * (k & 1) + 1]
                    if "csvalu" in variant:
                        w += [f"v_lshlrev_b32 {v(lo)}, 16, {v(FB(j)+k)}", f"v_and_b32 {v(hi)}, 0xffff0000, {v(FB(j)+k)}",
                              f"v_add_f32 {v(ACS[j])}, {v(ACS[j])}, {v(lo)}", f"v_add_f32 {v(ACH[j])}, {v(ACH[j])}, {v(hi)}"]
                    elif "cs44" in variant:
                        if k & 1 == 0: w += [f"v_mfma_f32_4x4x4_16b_bf16 {v(A4(j),4)}, {v(FB(j)+k,2)}, {v(vOn2,2)}, {v(A4(j),4)}"]
                    else:
                        w += [f"v_dot2c_f32_bf16 {v(ACS[j] if k & 1 else ACH[j])}, {v(FB(j)+k)}, {v(vOn)}"]
                work.append(w)
            groups = list(groups)
            if "interleave" not in variant:
                emit(groups)
                A("s_waitcnt lgkmcnt(0)")
                for k in range(2 if "cs44" in variant else 4):
                    for j in range(5): A(work[j][1 + k]) if "csvalu" not in variant else None
                if "csvalu" not in variant: return
                groups = []
            if groups: emit([groups.pop(0)])
            while work or groups:
                if work:
                    for ln in work.pop(0): A(ln)
                take = 1 if len(groups) <= len(work) + 1 else 2
                for _ in range(take):
                    if groups: emit([groups.pop(0)])
        def bar(cnt, st=None):
            A(f"s_waitcnt vmcnt({cnt})")
            if st is not None: stamp(A, st)
            A("s_barrier")
        stamp(A, 1)
        bar(0, 2)
        interval(w_groups() + x_groups() + w_groups())
        bar(9, None if 'fine' in variant else 3)
        interval(w_groups() + x_groups() + w_groups())
        A(f"s_mov_b32 {s(sPair)}, 7")
        A.label(f"L_k1_lpair{T}")
        bar(14)
        interval(w_groups())
        bar(14)
        interval(x_groups() + w_groups())
        A(f"s_sub_u32 {s(sPair)}, {s(sPair)}, 1")
        A(f"s_cmp_lg_u32 {s(sPair)}, 0")
        A(f"s_cbranch_scc1 L_k1_lpair{T}")
        bar(14)
        interval(w_groups())
        bar(14)
        interval([])
        bar(5)
        interval([])
        bar(0, 5)
        interval([])

    A(f"s_cmp_ge_u32 {s(sCt)}, 8")
    A("s_cbranch_scc1 L_k1_loader1")
    loader(0)
    A("s_branch L_k1_lsum")
    A.label("L_k1_loader1")
    loader(1)
    A.label("L_k1_lsum")
    A.c("combine the k halves and the two step parities; array order [wave column][slot][32]")
    A("s_nop 7")
    if "cs44" in variant:
        A.c("lane l takes register l&3 of its block: the sum of row l")
        A(f"v_and_b32 v10, 3, {v(vL)}")
        for j in range(5):
            A(f"v_mov_b32 {v(ACS[j])}, {v(A4(j))}")
        for i in range(1, 4):
            A(f"v_cmp_eq_u32 vcc, {i}, v10")
            A("s_nop 1")
            for j in range(5): A(f"v_cndmask_b32 {v(ACS[j])}, {v(ACS[j])}, {v(A4(j)+i)}, vcc")
    else:
        for j in range(5): A(f"v_add_f32 {v(ACS[j])}, {v(ACS[j])}, {v(ACH[j])}")
    for j in range(5): A(f"v_mov_b32 {v(FB(0)+j)}, {v(ACS[j])}")
    A("s_nop 1")
    for j in range(5): A(f"v_permlane32_swap_b32 {v(ACS[j])}, {v(FB(0)+j)}")
    A("s_nop 0")
    for j in range(5): A(f"v_add_f32 {v(ACS[j])}, {v(ACS[j])}, {v(FB(0)+j)}")
    A(f"v_and_b32 v10, 31, {v(vL)}")
    A(f"v_lshlrev_b32 v10, 2, v10")
    A(f"s_mul_i32 {s(sT0)}, {s(sHalf)}, 640")
    A(f"s_add_u32 {s(sT0)}, {s(sT0)}, {LDS_CS}")
    A(f"v_add_u32 v10, {s(sT0)}, v10")
    A(f"s_cmp_eq_u32 {s(sSp)}, 0")
    A("s_cbranch_scc0 L_k1_cs3")
    for j in range(5): A(f"ds_write_b32 v10, {v(ACS[j])} offset:{128*j}")
    A("s_waitcnt lgkmcnt(0)")
    A("s_barrier")
    A("s_branch L_k1_cs4")
    A.label("L_k1_cs3")
    A("s_barrier")
    for j in range(5): A(f"ds_read_b32 {v(FB(0)+j)}, v10 offset:{128*j}")
    A("s_waitcnt lgkmcnt(0)")
    for j in range(5): A(f"v_add_f32 {v(ACS[j])}, {v(ACS[j])}, {v(FB(0)+j)}")
    for j in range(5): A(f"ds_write_b32 v10, {v(ACS[j])} offset:{128*j}")
    A("s_waitcnt lgkmcnt(0)")
    A.label("L_k1_cs4")
    A("s_barrier")
    if extra_tail: extra_tail(A, sWS, sLw, sRb, sCt, vL)
    stamp(A, 6)
    stamp_flush(A, 7, 69, sWS, 60)
    A.label("L_k1_end")
    A("s_endpgm")
    return NAME, 512, LDS_BYTES, descriptor(NAME, NV)
```

```python
from common import *
from k1c import IMG, SLOTS, frag_addrs, XS, WSZ, NXS, NWS, LDS_X, LDS_W
import common

NAME = "proj_kernel"
LDS_BYTES = LDS_W + NWS * WSZ
NV = 256

def gen(A, prefetch=None, variant=""):
    SC = " sc1" if "sc1" in variant else (" nt" if "nt" in variant.split(",") else (" sc0 sc1" if "sc01" in variant else ""))
    sW, sG, sU, sWS = 12, 16, 20, 24
    sWave, sRb, sCt, sT0, sT1, sT2, sT3, sI = 28, 29, 30, 31, 32, 33, 34, 35
    kernel_header(A, NAME)
    A("s_cmp_ge_u32 s2, 256")
    A("s_cbranch_scc1 L_k1_end")
    A(f"s_load_dwordx2 s[6:7], s[0:1], {K_WQKV}")
    A(f"s_load_dwordx4 s[36:39], s[0:1], {K_WG}")
    A(f"s_load_dwordx2 s[40:41], s[0:1], {K_WS}")
    A("v_lshrrev_b32 v1, 6, v0")
    A("v_and_b32 v2, 63, v0")
    A(f"v_readfirstlane_b32 {s(sWave)}, v1")
    A.c("workgroup -> (row block, column tile): each XCD covers 8 row blocks x 4 column tiles")
    A(f"s_and_b32 {s(sT0)}, s2, 7")
    A(f"s_lshr_b32 {s(sT1)}, s2, 3")
    A(f"s_and_b32 {s(sRb)}, {s(sT0)}, 1")
    A(f"s_lshl_b32 {s(sRb)}, {s(sRb)}, 3")
    A(f"s_and_b32 {s(sT2)}, {s(sT1)}, 7")
    A(f"s_add_u32 {s(sRb)}, {s(sRb)}, {s(sT2)}")
    A(f"s_lshr_b32 {s(sCt)}, {s(sT0)}, 1")
    A(f"s_lshl_b32 {s(sCt)}, {s(sCt)}, 2")
    A(f"s_lshr_b32 {s(sT2)}, {s(sT1)}, 3")
    A(f"s_add_u32 {s(sCt)}, {s(sCt)}, {s(sT2)}")
    A(f"s_and_b32 {s(sI)}, {s(sCt)}, 7")
    A("s_waitcnt lgkmcnt(0)")
    srd(A, sWS, 40, WS_SIZE)
    srd(A, sW, 6, D * 3 * D * 2)
    srd(A, sG, 36, D * F * 2)
    srd(A, sU, 38, D * F * 2)
    vL = 2
    stamp(A, 0)
    if common.STAMPS:
        A(f"s_lshl_b32 s69, s2, 3")
        A(f"s_add_u32 s69, s69, {s(sWave)}")
    A(f"s_cmp_ge_u32 {s(sWave)}, 4")
    A("s_cbranch_scc1 L_k1_loader")

    vT, vHf = 3, 4
    vXa = [5, 6]
    vWa = [13, 14, 15, 16, 17]
    vTmp = 26
    FX = lambda p, sg: 32 + 28 * p + 4 * sg
    FW = lambda p, j: 32 + 28 * p + 8 + 4 * j
    ACC = lambda j, sg: 96 + 32 * j + 16 * sg
    sWm, sWn, sTT0 = 42, 43, 44
    A(f"s_lshr_b32 {s(sWm)}, {s(sWave)}, 1")
    A(f"s_and_b32 {s(sWn)}, {s(sWave)}, 1")
    A(f"s_lshl_b32 {s(sTT0)}, {s(sWm)}, 1")
    A(f"v_and_b32 {v(vT)}, 31, {v(vL)}")
    A(f"v_lshrrev_b32 {v(vHf)}, 5, {v(vL)}")
    A.c("x fragments: [token tile][step][lane][16 B] inside a stage")
    A(f"s_lshl_b32 {s(sT0)}, {s(sTT0)}, 12")
    A(f"v_lshlrev_b32 {v(vTmp)}, 4, {v(vL)}")
    A(f"v_add_u32 {v(vXa[0])}, {s(sT0)}, {v(vTmp)}")
    A(f"v_add_u32 {v(vXa[1])}, 4096, {v(vXa[0])}")

    def mainloop(typ):
        pitch = [IMG[typ][k][1] for (k, _, _) in SLOTS[typ]]
        tag = f"L_k1_loop{typ}"
        sXs, sWsl, sCnt, sDw, sDx = 50, 51, 52, 53, 63
        frag_addrs(A, typ, vWa, vL, sWn, vTmp)
        if prefetch: prefetch(A, f"k1_{typ}", tag, typ)
        for r in range(96, 256): A(f"v_mov_b32 {v(r)}, 0")
        def reads(p, sub):
            out = [f"ds_read_b128 {v(FX(p,sg),4)}, {v(vXa[sg])} offset:{sub*1024}" for sg in range(2)]
            for j in range(5):
                for i in range(2):
                    out.append(f"ds_read_b64_tr_b16 {v(FW(p,j)+2*i,2)}, {v(vWa[j])} offset:{(16*(sub&1)+4*i)*pitch[j]}")
            return out
        if "prio" in variant: A("s_setprio 2")
        A("s_barrier")
        stamp(A, 2)
        for ln in reads(0, 0): A(ln)
        A(f"s_mov_b32 {s(sXs)}, 0")
        A(f"s_mov_b32 {s(sWsl)}, 0")
        A(f"s_mov_b32 {s(sCnt)}, 10")
        A(".p2align 3")
        A.label(tag)
        for n in range(4):
            p = n & 1; nn = (n + 1) & 3
            if n & 1: A("s_barrier")
            mf = lambda j, sg: f"v_mfma_f32_32x32x16_bf16 {v(ACC(j,sg),16)}, {v(FW(p,j),4)}, {v(FX(p,sg),4)}, {v(ACC(j,sg),16)}"
            rd = reads(1 - p, nn)
            gap = {m: [] for m in range(10)}
            if n == 3: gap[0] += [f"v_add_u32 {v(vXa[sg])}, {s(sDx)}, {v(vXa[sg])}" for sg in range(2)]
            gap[0] += rd[0:2]
            for j in range(5):
                m = 1 + 2 * j
                if n & 1: gap[m] += [f"v_add_u32 {v(vWa[j])}, {s(sDw)}, {v(vWa[j])}"]
                gap[m] += rd[2 + 2 * j: 4 + 2 * j]
            if n & 1 == 0:
                gap[2] += [f"s_add_u32 {s(sT0)}, {s(sWsl)}, {WSZ}", f"s_cmp_eq_u32 {s(sT0)}, {NWS*WSZ}", f"s_cselect_b32 {s(sT0)}, 0, {s(sT0)}"]
                gap[4] += [f"s_sub_u32 {s(sDw)}, {s(sT0)}, {s(sWsl)}", f"s_mov_b32 {s(sWsl)}, {s(sT0)}"]
                if n == 2:
                    gap[6] += [f"s_add_u32 {s(sT0)}, {s(sXs)}, {XS}", f"s_cmp_eq_u32 {s(sT0)}, {NXS*XS}", f"s_cselect_b32 {s(sT0)}, 0, {s(sT0)}"]
                    gap[8] += [f"s_sub_u32 {s(sDx)}, {s(sT0)}, {s(sXs)}", f"s_mov_b32 {s(sXs)}, {s(sT0)}"]
            for m, (j, sg) in enumerate([(j, sg) for j in range(5) for sg in range(2)]):
                if sg == 0: A(f"s_waitcnt lgkmcnt({8 if j == 0 else 10})")
                A(mf(j, sg))
                for ln in gap[m]: A(ln)
        A(f"s_sub_u32 {s(sCnt)}, {s(sCnt)}, 1")
        A(f"s_cmp_lg_u32 {s(sCnt)}, 0")
        A(f"s_cbranch_scc1 {tag}")

    A(f"s_cmp_ge_u32 {s(sCt)}, 8")
    A("s_cbranch_scc1 L_k1_main1")
    mainloop(0)
    A("s_branch L_k1_post")
    A.label("L_k1_main1")
    mainloop(1)
    A.label("L_k1_post")
    stamp(A, 3)
    TM = 8; QF = 18
    vQo, vLin, vC = 30, 31, 20
    A("s_waitcnt vmcnt(0) lgkmcnt(0)")
    A(f"v_lshlrev_b32 {v(vQo)}, 3, {v(vT)}")
    A(f"v_lshl_add_u32 {v(vQo)}, {v(vHf)}, 14, {v(vQo)}")
    A(f"v_lshlrev_b32 {v(vLin)}, 4, {v(vL)}")
    A(f"v_mov_b32 {v(vC)}, {f32bits(-LOG2E):#x}")
    sTok = [54, 55]; sHb = [56, 57]; sU0, sFac = 58, 59
    for sg in range(2):
        A(f"s_lshl_b32 {s(sT0)}, {s(sRb)}, 2")
        A(f"s_add_u32 {s(sT0)}, {s(sT0)}, {s(sTT0)}")
        if sg: A(f"s_add_u32 {s(sT0)}, {s(sT0)}, 1")
        A(f"s_lshl_b32 {s(sTok[sg])}, {s(sT0)}, 8")
        A(f"s_add_u32 {s(sTok[sg])}, {s(sTok[sg])}, {WS_QKV}")
        A(f"s_mul_i32 {s(sHb[sg])}, {s(sT0)}, {96*1024}")
        A(f"s_add_u32 {s(sHb[sg])}, {s(sHb[sg])}, {WS_H}")

    def q_tile(j):
        A(f"s_cmp_lt_u32 {s(sU0)}, 160")
        A(f"s_cselect_b32 {s(sFac)}, {f32bits(QSCALE):#x}, 1.0")
        A(f"s_lshl_b32 {s(sT1)}, {s(sU0)}, 14")
        A(f"v_mov_b32 {v(QF)}, {s(sFac)}")
        for g in range(4):
            for sg in range(2):
                acc = ACC(j, sg) + 4 * g
                for e in range(2):
                    A(f"v_pk_mul_f32 {v(acc+2*e,2)}, {v(acc+2*e,2)}, {v(QF,2)} op_sel_hi:[1,0]")
            for sg in range(2):
                acc = ACC(j, sg) + 4 * g
                for e in range(2):
                    A(f"v_cvt_pk_bf16_f32 {v(acc+e)}, {v(acc+2*e)}, {v(acc+2*e+1)}")
            for sg in range(2):
                A(f"s_add_u32 {s(sT0)}, {s(sT1)}, {s(sTok[sg])}")
                A(f"s_add_u32 {s(sT0)}, {s(sT0)}, {2*g*PLANE}")
                A(f"buffer_store_dwordx2 {v(ACC(j,sg)+4*g,2)}, {v(vQo)}, {s(sWS,4)}, {s(sT0)} offen{SC}")

    def gu_pair(jg, ju, step_s):
        for sg in range(2):
            g0, u0 = ACC(jg, sg), ACC(ju, sg)
            for half in range(2):
                o = 8 * half
                for e in range(4):
                    A(f"v_pk_mul_f32 {v(TM+2*e,2)}, {v(g0+o+2*e,2)}, {v(vC,2)} op_sel_hi:[1,0]")
                for e in range(8): A(f"v_exp_f32 {v(TM+e)}, {v(TM+e)}")
                for e in range(4):
                    A(f"v_pk_mul_f32 {v(u0+o+2*e,2)}, {v(u0+o+2*e,2)}, {v(g0+o+2*e,2)}")
                for e in range(4):
                    A(f"v_pk_add_f32 {v(TM+2*e,2)}, {v(TM+2*e,2)}, 1.0 op_sel_hi:[1,0]")
                A(f"s_add_u32 {s(sT0)}, {s(step_s)}, {half}")
                for e in range(8): A(f"v_rcp_f32 {v(TM+e)}, {v(TM+e)}")
                A(f"s_lshl_b32 {s(sT0)}, {s(sT0)}, 10")
                A(f"s_add_u32 {s(sT0)}, {s(sT0)}, {s(sHb[sg])}")
                for e in range(4):
                    A(f"v_pk_mul_f32 {v(u0+o+2*e,2)}, {v(u0+o+2*e,2)}, {v(TM+2*e,2)}")
                for e in range(4):
                    A(f"v_cvt_pk_bf16_f32 {v(g0+o+e)}, {v(u0+o+2*e)}, {v(u0+o+2*e+1)}")
                A(f"buffer_store_dwordx4 {v(g0+o,4)}, {v(vLin)}, {s(sWS,4)}, {s(sT0)} offen{SC}")

    sStep = 60
    A(f"s_cmp_ge_u32 {s(sCt)}, 8")
    A("s_cbranch_scc1 L_k1_epi1")
    A.c("type A: unit 16i + 8wn, gate tiles at step 8i + 4wn + 2e")
    A(f"s_lshl_b32 {s(sU0)}, {s(sI)}, 4")
    A(f"s_lshl_b32 {s(sT0)}, {s(sWn)}, 3")
    A(f"s_add_u32 {s(sU0)}, {s(sU0)}, {s(sT0)}")
    A(f"s_lshr_b32 {s(sStep)}, {s(sU0)}, 1")
    q_tile(0)
    gu_pair(1, 2, sStep)
    A(f"s_add_u32 {s(sStep)}, {s(sStep)}, 2")
    gu_pair(3, 4, sStep)
    A("s_branch L_k1_done")
    A.label("L_k1_epi1")
    A.c("type B: units 128 + 48i + 24wn + 8q (only below 480), gate tile at step 64 + 4i + 2wn")
    A(f"s_mul_i32 {s(sU0)}, {s(sI)}, 48")
    A(f"s_mul_i32 {s(sT0)}, {s(sWn)}, 24")
    A(f"s_add_u32 {s(sU0)}, {s(sU0)}, {s(sT0)}")
    A(f"s_add_u32 {s(sU0)}, {s(sU0)}, 128")
    A(f"s_lshl_b32 {s(sStep)}, {s(sI)}, 2")
    A(f"s_lshl_b32 {s(sT0)}, {s(sWn)}, 1")
    A(f"s_add_u32 {s(sStep)}, {s(sStep)}, {s(sT0)}")
    A(f"s_add_u32 {s(sStep)}, {s(sStep)}, 64")
    for q in range(3):
        A(f"s_cmp_ge_u32 {s(sU0)}, 480")
        A("s_cbranch_scc1 L_k1_epi2")
        q_tile(q)
        A(f"s_add_u32 {s(sU0)}, {s(sU0)}, 8")
    A.label("L_k1_epi2")
    gu_pair(3, 4, sStep)
    A.label("L_k1_done")
    stamp(A, 5)
    if common.STAMPS: A("s_waitcnt vmcnt(0)")
    stamp(A, 6)
    stamp_flush(A, 7, 69, sWS, 22)
    A("s_endpgm")

    A.label("L_k1_loader")
    sLw, sXo, sWo, sGo, sMx, sXsl, sWsl2, sPair, sXk, sWk = 42, 43, 44, 45, 46, 47, 48, 50, 51, 52
    vX = 3; vQ = [5, 6, 7]; vG = 8
    A(f"s_sub_u32 {s(sLw)}, {s(sWave)}, 4")
    A.c("loader w copies the four fragments of token tile w of every 64-deep chunk")
    A(f"v_lshlrev_b32 {v(vX)}, 4, {v(vL)}")
    A(f"s_lshl_b32 {s(sT0)}, {s(sRb)}, 2")
    A(f"s_add_u32 {s(sT0)}, {s(sT0)}, {s(sLw)}")
    A(f"s_mul_i32 {s(sXo)}, {s(sT0)}, {40*1024}")
    A(f"s_add_u32 {s(sXo)}, {s(sXo)}, {WS_XN}")
    A(f"s_lshl_b32 {s(sMx)}, {s(sLw)}, 12")
    A(f"s_add_u32 {s(sMx)}, {s(sMx)}, {LDS_X}")
    for r in (sXsl, sWsl2): A(f"s_mov_b32 {s(r)}, 0")
    if "rot" in variant.split(","):
        A.c("rotated k order: workgroups that share rows or columns start at different chunks")
        A(f"s_and_b32 {s(sT0)}, {s(sCt)}, 3")
        A(f"s_mul_i32 {s(sT1)}, {s(sT0)}, 5")
        A(f"s_lshr_b32 {s(sT1)}, {s(sT1)}, 1")
        A(f"s_lshr_b32 {s(sT0)}, {s(sCt)}, 2")
        A(f"s_add_u32 {s(sT1)}, {s(sT1)}, {s(sT0)}")
        A(f"s_add_u32 {s(sT1)}, {s(sT1)}, {s(sRb)}")
        A(f"s_mul_i32 {s(sT0)}, {s(sT1)}, 205")
        A(f"s_lshr_b32 {s(sT0)}, {s(sT0)}, 11")
        A(f"s_mul_i32 {s(sT0)}, {s(sT0)}, 10")
        A(f"s_sub_u32 {s(sXk)}, {s(sT1)}, {s(sT0)}")
    else:
        A(f"s_mov_b32 {s(sXk)}, 0")
    A(f"s_lshl_b32 {s(sWk)}, {s(sXk)}, 1")
    A(f"s_lshl_b32 {s(sT0)}, {s(sXk)}, 12")
    A(f"s_add_u32 {s(sXo)}, {s(sXo)}, {s(sT0)}")
    def wrap(r, step, n):
        return [f"s_add_u32 {s(r)}, {s(r)}, {step}", f"s_cmp_eq_u32 {s(r)}, {step*n}", f"s_cselect_b32 {s(r)}, 0, {s(r)}"]
    sB1, sB2 = 57, 58
    def issue_x():
        A(f"s_add_u32 {s(sB1)}, {s(sMx)}, {s(sXsl)}")
        for ii in range(4):
            A(f"s_add_u32 m0, {s(sB1)}, {ii*1024}")
            A(f"s_add_u32 {s(sT0)}, {s(sXo)}, {ii*1024}")
            A(f"buffer_load_dwordx4 {v(vX)}, {s(sWS,4)}, {s(sT0)} offen lds")
        for ln in [f"s_add_u32 {s(sXo)}, {s(sXo)}, 4096", f"s_add_u32 {s(sXk)}, {s(sXk)}, 1", f"s_cmp_eq_u32 {s(sXk)}, 10",
                   f"s_cselect_b32 {s(sT0)}, {40*1024}, 0", f"s_cselect_b32 {s(sXk)}, 0, {s(sXk)}",
                   f"s_sub_u32 {s(sXo)}, {s(sXo)}, {s(sT0)}"] + wrap(sXsl, XS, NXS): A(ln)
    issue_x()

    def lane_offsets(n, pitchg, dst):
        if n == 1:
            A(f"v_lshrrev_b32 v10, 3, {v(vL)}")
            A(f"v_bfe_u32 v11, v10, 1, 1")
            A(f"v_lshlrev_b32 v11, 2, v11")
            A(f"v_and_b32 v12, 7, {v(vL)}")
            A(f"v_xor_b32 v12, v12, v11")
            A(f"v_mul_u32_u24 v10, {pitchg}, v10")
            A(f"v_lshl_add_u32 {v(dst[0])}, v12, 4, v10")
        elif n == 2:
            A(f"v_lshrrev_b32 v10, 4, {v(vL)}")
            A(f"v_lshlrev_b32 v11, 2, v10")
            A(f"v_and_b32 v12, 15, {v(vL)}")
            A(f"v_xor_b32 v12, v12, v11")
            A(f"v_mul_u32_u24 v10, {pitchg}, v10")
            A(f"v_lshl_add_u32 {v(dst[0])}, v12, 4, v10")
        else:
            for e in range(3):
                A(f"v_add_u32 v10, {64*e}, {v(vL)}")
                A(f"v_mul_u32_u24 v11, 43691, v10")
                A(f"v_lshrrev_b32 v11, 20, v11")
                A(f"v_mul_u32_u24 v12, 24, v11")
                A(f"v_sub_u32 v12, v10, v12")
                A(f"v_bfe_u32 v13, v11, 1, 1")
                A(f"v_lshlrev_b32 v13, 2, v13")
                A(f"v_xor_b32 v12, v12, v13")
                A(f"v_mul_u32_u24 v11, {pitchg}, v11")
                A(f"v_lshl_add_u32 {v(dst[e])}, v12, 4, v11")

    def loader(typ):
        T = f"t{typ}"
        qoff, qp, qn = IMG[typ]["q"]; goff, gp, gn = IMG[typ]["g"]; uoff = IMG[typ]["u"][0]
        lane_offsets(qn, 3840, vQ)
        lane_offsets(gn, 3072, [vG])
        A(f"s_mul_i32 {s(sWo)}, {s(sLw)}, {8*3840}")
        A(f"s_mul_i32 {s(sGo)}, {s(sLw)}, {8*3072}")
        if typ == 0:
            A(f"s_lshl_b32 {s(sT0)}, {s(sI)}, 7"); A(f"s_lshl_b32 {s(sT1)}, {s(sI)}, 8")
        else:
            A(f"s_mul_i32 {s(sT0)}, {s(sI)}, 384"); A(f"s_add_u32 {s(sT0)}, {s(sT0)}, 1024")
            A(f"s_lshl_b32 {s(sT1)}, {s(sI)}, 7"); A(f"s_add_u32 {s(sT1)}, {s(sT1)}, 2048")
        A(f"s_add_u32 {s(sWo)}, {s(sWo)}, {s(sT0)}")
        A(f"s_add_u32 {s(sGo)}, {s(sGo)}, {s(sT1)}")
        A(f"s_mul_i32 {s(sT0)}, {s(sWk)}, {32*3840}")
        A(f"s_add_u32 {s(sWo)}, {s(sWo)}, {s(sT0)}")
        A(f"s_mul_i32 {s(sT0)}, {s(sWk)}, {32*3072}")
        A(f"s_add_u32 {s(sGo)}, {s(sGo)}, {s(sT0)}")
        sMq, sMg = 55, 56
        A(f"s_mul_i32 {s(sMq)}, {s(sLw)}, {8*qp}")
        A(f"s_add_u32 {s(sMq)}, {s(sMq)}, {LDS_W + qoff}")
        A(f"s_mul_i32 {s(sMg)}, {s(sLw)}, {8*gp}")
        A(f"s_add_u32 {s(sMg)}, {s(sMg)}, {LDS_W + goff}")
        def issue_w():
            A(f"s_add_u32 {s(sB1)}, {s(sMq)}, {s(sWsl2)}")
            A(f"s_add_u32 {s(sB2)}, {s(sMg)}, {s(sWsl2)}")
            for e in range(qn):
                A(f"s_add_u32 m0, {s(sB1)}, {e*1024}")
                A("s_nop 0")
                A(f"buffer_load_dwordx4 {v(vQ[e] if qn == 3 else vQ[0])}, {s(sW,4)}, {s(sWo)} offen lds")
            for desc, off in ((sG, 0), (sU, uoff - goff)):
                for e in range(gn):
                    A(f"s_add_u32 m0, {s(sB2)}, {off + e*1024}")
                    A(f"s_add_u32 {s(sT0)}, {s(sGo)}, {e*4*3072}")
                    A(f"buffer_load_dwordx4 {v(vG)}, {s(desc,4)}, {s(sT0)} offen lds")
            for ln in [f"s_add_u32 {s(sWo)}, {s(sWo)}, {32*3840}", f"s_add_u32 {s(sGo)}, {s(sGo)}, {32*3072}",
                       f"s_add_u32 {s(sWk)}, {s(sWk)}, 1", f"s_cmp_eq_u32 {s(sWk)}, 20",
                       f"s_cselect_b32 {s(sT0)}, {640*3840}, 0", f"s_cselect_b32 {s(sT1)}, {640*3072}, 0", f"s_cselect_b32 {s(sWk)}, 0, {s(sWk)}",
                       f"s_sub_u32 {s(sWo)}, {s(sWo)}, {s(sT0)}", f"s_sub_u32 {s(sGo)}, {s(sGo)}, {s(sT1)}"] + wrap(sWsl2, WSZ, NWS): A(ln)
        def bar(cnt, st=None):
            A(f"s_waitcnt vmcnt({cnt})")
            if st is not None: stamp(A, st)
            A("s_barrier")
        issue_w()
        stamp(A, 1)
        bar(0, 2)
        issue_w(); issue_x(); issue_w()
        bar(9, 3)
        issue_w(); issue_x(); issue_w()
        A(f"s_mov_b32 {s(sPair)}, 7")
        A.label(f"L_k1_lpair{T}")
        bar(14)
        issue_w()
        bar(14)
        issue_x(); issue_w()
        A(f"s_sub_u32 {s(sPair)}, {s(sPair)}, 1")
        A(f"s_cmp_lg_u32 {s(sPair)}, 0")
        A(f"s_cbranch_scc1 L_k1_lpair{T}")
        bar(14)
        issue_w()
        bar(14)
        bar(5)
        bar(0, 5)
        A("s_barrier")

    A(f"s_cmp_ge_u32 {s(sCt)}, 8")
    A("s_cbranch_scc1 L_k1_loader1")
    loader(0)
    A("s_branch L_k1_lend")
    A.label("L_k1_loader1")
    loader(1)
    A.label("L_k1_lend")
    stamp(A, 6)
    stamp_flush(A, 7, 69, sWS, 60)
    A.label("L_k1_end")
    A("s_endpgm")
    return NAME, 512, LDS_BYTES, descriptor(NAME, NV)
```

```python
import sys
from build import *
import k0, k1c, k1d, attn3, ffn, fused, common
args = sys.argv[1:]
out = args[0] if args else "cur.s"
if "stamps" in args: common.STAMPS = True
if "debug" in args: common.DEBUG = True
if "dbgt" in args: common.DBGT = True
variant = ",".join(args[1:])
if "cpf1" in args: fused.PREFETCH_CODE = True
def pf1(A, tag, label, typ):
    code_prefetch(A, tag, label, 2, 46, 26, 28, 2)
    code_prefetch(A, tag + "e", "L_k1_post", 6, 46, 26, 28, 2)
specs = [("norm_kernel", {}), ("norm_kernel", {"L_k0_noflag": True, "L_k0_code0": True, "L_k0_code1": True}),
         ("proj_kernel", {}), ("proj_kernel", {"L_k1_main1": True, "L_k1_epi1": True}),
         ("proj_kernel", {"L_k1_loader": True}), ("proj_kernel", {"L_k1_loader": True, "L_k1_loader1": True})]
g = {"L_go_attn0": True, "L_go_attn": True, "L_go_attnx": True}
specs += [("main_kernel", dict(g)), ("main_kernel", dict(g, L_attn_nodma=True, L_attn_noones=True, L_attn_dma1=True, L_attn_dma2=True, L_attn_dma3=True, L_main_nosig=True)),
          ("main_kernel", dict(g, L_attn_give_b=True)), ("main_kernel", dict(g, L_attn_exact=[True, False], L_attn_norm=[False, True]))]
g2 = {"L_main_gemm": True, "L_gg_o": True, "L_go_gred": True, "L_go_own": True}
specs += [("main_kernel", dict(g2)), ("main_kernel", dict(g2, L_main_res0=True, L_main_res1=True, L_main_res2=True, L_main_last=True))]
av = variant + ("" if "cyc" in variant else ",cyc3")
def with_stamps(fn, which, base=0):
    def g(A):
        common.STAMP_BASE = base if "all3" in args else 0
        old = common.STAMPS
        common.STAMPS = old and (which in args or not any(a.startswith("stk") for a in args))
        r = fn(A)
        common.STAMPS = old
        return r
    return g
ks = [with_stamps(lambda A: k0.gen(A, (("proj_kernel", 16), ("main_kernel", 16)), variant), "stk0", 0), with_stamps(lambda A: k1d.gen(A, pf1, variant), "stk1", 0x40000), with_stamps(lambda A: fused.gen(A, av), "stk2", 0x80000)]
if "two" in args:
    def pf1c(A, tag, label, typ):
        code_prefetch(A, tag, label, 4, 46, 92, 88, 2)
        code_prefetch(A, tag + "e", "L_k1_post", 8, 46, 92, 88, 2)
    ks = [with_stamps(lambda A: k1c.gen(A, pf1c, variant, extra_tail=fused.zero_flags), "stk1", 0x40000), ks[2]]
    specs = [("proj_kernel", {}), ("proj_kernel", {"L_k1_main1": True, "L_k1_epi1": True}),
         ("proj_kernel", {"L_k1_loader": True}), ("proj_kernel", {"L_k1_loader": True, "L_k1_loader1": True, "L_k1_cs3": True})] + specs[6:]
sel = [a for a in args if a.startswith('only=')]
if sel: ks = [ks[int(i)] for i in sel[0][5:].split('+')]; specs = []
build(ks, out, specs)
assemble_check(out)
```

```python
from common import *
import common
import attn3
from attn import lds_arrive, lds_wait
from ffn import out_setup, OUT_SLOT

NAME = "main_kernel"
PITCH = 656
REG = 32 * PITCH
LDS_CNT = attn3.KV_BYTES
LDS_CNT_O = LDS_CNT + 4
LDS_CNT_G = LDS_CNT + 8
LDS_G = 65280
LDS_BYTES = LDS_G + 4 * REG
NV = 168

def global_wait(A, tag, sWS, sOff, target, vT, sTmp, sSpin):
    A(f"s_mov_b32 {s(sSpin)}, 0x8000")
    A(f"v_mov_b32 {v(vT+1)}, 0")
    A.label(f"L_gw_{tag}")
    A(f"buffer_load_dword {v(vT)}, {v(vT+1)}, {s(sWS,4)}, {s(sOff)} offen sc1")
    A("s_waitcnt vmcnt(0)")
    A(f"v_readfirstlane_b32 {s(sTmp)}, {v(vT)}")
    A(f"s_sub_u32 {s(sSpin)}, {s(sSpin)}, 1")
    A(f"s_cbranch_scc1 L_gg_{tag}")
    A(f"s_cmp_ge_u32 {s(sTmp)}, {target}")
    A(f"s_cbranch_scc1 L_gg_{tag}")
    A("s_sleep 2")
    A(f"s_branch L_gw_{tag}")
    A.label(f"L_gg_{tag}")

def gen(A, variant="", prefetch=None):
    sWS, sWD, sWO, sXd, sOut = 8, 12, 16, 32, 36
    sWave, sHead, sQb, sT0, sT1 = 20, 21, 22, 23, 24
    kernel_header(A, NAME)
    A("s_cmp_ge_u32 s2, 256")
    A("s_cbranch_scc1 L_main_end")
    A(f"s_load_dwordx2 s[28:29], s[0:1], {K_WS}")
    A(f"s_load_dwordx2 s[4:5], s[0:1], {K_WD}")
    A(f"s_load_dwordx2 s[6:7], s[0:1], {K_WO}")
    A(f"s_load_dwordx2 s[30:31], s[0:1], {K_X}")
    A(f"s_load_dwordx2 s[26:27], s[0:1], {K_OUT}")
    A("v_lshrrev_b32 v1, 6, v0")
    A("v_and_b32 v2, 63, v0")
    A(f"v_readfirstlane_b32 {s(sWave)}, v1")
    A(f"v_mov_b32 v3, {LDS_CNT}")
    A(f"v_mov_b32 v4, 0")
    A(f"v_mov_b32 v5, 0")
    A(f"v_mov_b32 v6, 0")
    A(f"v_mov_b32 v7, 0")
    A("ds_write_b128 v3, v[4:7]")
    A("s_waitcnt lgkmcnt(0)")
    srd(A, sWS, 28, WS_SIZE)
    if "tlb2" in variant:
        A.c("touch the pages of the buffers used late in this kernel so that address translation is ready")
        A(f"s_cmp_lg_u32 {s(sWave)}, 8")
        A("s_cbranch_scc1 L_main_tlb")
        srd(A, 40, 26, S * D * 2)
        srd(A, 44, 30, S * D * 2)
        srd(A, 48, 6, D * D * 2)
        A("v_lshlrev_b32 v3, 19, v2")
        A("buffer_load_dword v167, v3, s[40:43], 0 offen")
        A("buffer_load_dword v167, v3, s[44:47], 0 offen")
        A("buffer_load_dword v167, v3, s[48:51], 0 offen")
        A(f"buffer_load_dword v167, v3, {s(sWS,4)}, 0 offen")
        A.label("L_main_tlb")
    stamp(A, 0)
    if common.STAMPS:
        A(f"s_mul_i32 s69, s2, 12")
        A(f"s_add_u32 s69, s69, {s(sWave)}")
    if "cpf2" in variant:
        A.c("pull this kernel's code into L2: wave w loads KiB w and w + 12 (results unused)")
        A("s_getpc_b64 s[40:41]")
        A.label("L_main_pc")
        A(f"s_add_u32 s40, s40, {NAME}-L_main_pc")
        A("s_addc_u32 s41, s41, -1")
        A(f"s_lshl_b32 s42, {s(sWave)}, 10")
        A("v_lshlrev_b32 v8, 4, v2")
        A("v_add_u32 v8, s42, v8")
        A("global_load_dwordx4 v[164:167], v8, s[40:41]")
        A(f"s_cmp_lg_u32 {s(sWave)}, 0")
        A("s_cbranch_scc1 L_main_cpf")
        A("v_add_u32 v8, 12288, v8")
        A("global_load_dwordx4 v[164:167], v8, s[40:41]")
        A.label("L_main_cpf")
    A("s_barrier")
    A(f"s_cmp_ge_u32 {s(sWave)}, 8")
    A("s_cbranch_scc1 L_main_gemm")

    A(f"s_and_b32 {s(sT0)}, s2, 7")
    A(f"s_lshr_b32 {s(sQb)}, s2, 3")
    A(f"s_lshr_b32 {s(sHead)}, {s(sQb)}, 3")
    A(f"s_lshl_b32 {s(sT0)}, {s(sT0)}, 2")
    A(f"s_add_u32 {s(sHead)}, {s(sHead)}, {s(sT0)}")
    A(f"s_and_b32 {s(sQb)}, {s(sQb)}, 7")
    def signal(A):
        A.c("every wave drains its stores and counts itself in LDS; the last one raises the device-scope counter of the query block")
        A("s_waitcnt vmcnt(0)")
        stamp(A, 6)
        A(f"v_mov_b32 v3, {LDS_CNT_O}")
        A(f"v_mov_b32 v4, 1")
        A("s_mov_b64 exec, 1")
        A("ds_add_rtn_u32 v5, v3, v4")
        A("s_waitcnt lgkmcnt(0)")
        A(f"v_readfirstlane_b32 {s(sT0)}, v5")
        A(f"s_lshl_b32 {s(sT1)}, {s(sQb)}, 8")
        A(f"s_add_u32 {s(sT1)}, {s(sT1)}, {WS_FLAG}")
        A(f"s_cmp_lg_u32 {s(sT0)}, 7")
        A("s_cbranch_scc1 L_main_nosig")
        A("v_mov_b32 v3, 0")
        A(f"buffer_atomic_add v4, v3, {s(sWS,4)}, {s(sT1)} offen")
        A.label("L_main_nosig")
        A("s_mov_b64 exec, -1")
    def finish(A):
        stamp(A, 3)
        stamp_flush(A, 7, 69, sWS, 144)
        A("s_endpgm")
    attn3.role(A, sWS, sWave, sHead, sQb, 0, LDS_CNT, 2, on_stored=signal, variant=variant, done=finish)

    A.label("L_main_gemm")
    if "gprio" in variant: A("s_setprio 3")
    sW, sTb, sCq, sM, sB1, sB2, sA1, sA2, sA3, sXo = 21, 22, 25, 40, 41, 42, 43, 44, 45, 46
    srd(A, sWD, 4, F * D * 2)
    srd(A, sWO, 6, D * D * 2)
    srd(A, sXd, 30, S * D * 2)
    srd(A, sOut, 26, S * D * 2)
    A(f"s_sub_u32 {s(sW)}, {s(sWave)}, 8")
    A(f"s_and_b32 {s(sT0)}, s2, 7")
    A(f"s_lshr_b32 {s(sCq)}, s2, 3")
    A(f"s_lshr_b32 {s(sTb)}, {s(sCq)}, 2")
    A(f"s_lshl_b32 {s(sT0)}, {s(sT0)}, 3")
    A(f"s_add_u32 {s(sTb)}, {s(sTb)}, {s(sT0)}")
    A(f"s_and_b32 {s(sCq)}, {s(sCq)}, 3")
    vL, vA, vLin = 2, 3, 4
    vD = [5, 6, 7, 8, 9]; vDr = [10, 11, 12, 13, 14]
    AF = lambda i: 16 + 4 * i
    OF = lambda k: (16 + 4 * k) if k < 4 else (132 + 4 * (k - 4))
    WF = lambda j: 32 + 4 * j
    ACC = lambda j: 52 + 16 * j
    T = 156
    A(f"v_lshlrev_b32 {v(vLin)}, 4, {v(vL)}")
    out_setup(A, vL, vA, vD, vDr, T)
    A(f"s_mul_i32 {s(sM)}, {s(sW)}, {REG}")
    A(f"s_add_u32 {s(sM)}, {s(sM)}, {LDS_G}")
    A(f"v_add_u32 {v(vA)}, {s(sM)}, {v(vA)}")
    A(f"s_mul_i32 {s(sXo)}, {s(sTb)}, {32*1280}")
    A(f"s_mul_i32 {s(sT1)}, {s(sCq)}, 320")
    A(f"s_add_u32 {s(sXo)}, {s(sXo)}, {s(sT1)}")
    A(f"s_mul_i32 {s(sB1)}, {s(sW)}, {24*16*1280}")
    A(f"s_add_u32 {s(sB1)}, {s(sB1)}, {s(sT1)}")
    A(f"s_mul_i32 {s(sA1)}, {s(sTb)}, 96")
    A(f"s_mul_i32 {s(sT0)}, {s(sW)}, 24")
    A(f"s_add_u32 {s(sA1)}, {s(sA1)}, {s(sT0)}")
    A(f"s_lshl_b32 {s(sA1)}, {s(sA1)}, 10")
    A(f"s_add_u32 {s(sA1)}, {s(sA1)}, {WS_H}")

    def wdma(vd, desc, sbase, off, slot):
        for e in range(5):
            A(f"s_add_u32 m0, {s(sM)}, {slot*OUT_SLOT + e*1024}")
            A(f"s_add_u32 {s(sT0)}, {s(sbase)}, {off}")
            A(f"buffer_load_dwordx4 {v(vd[e])}, {s(desc,4)}, {s(sT0)} offen lds")
    def wreads(slot, j):
        return [f"ds_read_b64_tr_b16 {v(WF(j)+2*i,2)}, {v(vA)} offset:{slot*OUT_SLOT + i*2560 + j*64}" for i in range(2)]
    mf = lambda j, b: f"v_mfma_f32_32x32x16_bf16 {v(ACC(j),16)}, {v(WF(j),4)}, {v(b,4)}, {v(ACC(j),16)}"

    sBh, sAh, sCnt = 47, 48, 49
    A(f"s_mov_b32 {s(sBh)}, {s(sB1)}")
    A(f"s_mov_b32 {s(sAh)}, {s(sA1)}")
    def issue_h(slot):
        wdma(vD, sWD, sBh, 0, slot)
        A(f"buffer_load_dwordx4 {v(AF(slot),4)}, {v(vLin)}, {s(sWS,4)}, {s(sAh)} offen")
        A(f"s_add_u32 {s(sBh)}, {s(sBh)}, {16*1280}")
        A(f"s_add_u32 {s(sAh)}, {s(sAh)}, 1024")
    for k in range(3): issue_h(k)
    A.c("accumulators start from the residual x: wave w adds register group w of every column tile")
    for r in range(ACC(0), ACC(4) + 16): A(f"v_mov_b32 {v(r)}, 0")
    A(f"v_and_b32 {v(T)}, 31, {v(vL)}")
    A(f"v_mul_u32_u24 {v(T)}, 1280, {v(T)}")
    A(f"v_lshrrev_b32 {v(T+1)}, 5, {v(vL)}")
    A(f"v_lshl_add_u32 {v(T)}, {v(T+1)}, 3, {v(T)}")
    A(f"s_lshl_b32 {s(sT1)}, {s(sW)}, 4")
    A(f"s_add_u32 {s(sT1)}, {s(sT1)}, {s(sXo)}")
    XR = 132
    for j in range(5):
        A(f"buffer_load_dwordx2 {v(XR+2*j,2)}, {v(T)}, {s(sXd,4)}, {s(sT1)} offen offset:{64*j}")
    A("s_waitcnt vmcnt(0)")
    for w in range(4):
        if w < 3:
            A(f"s_cmp_lg_u32 {s(sW)}, {w}")
            A(f"s_cbranch_scc1 L_main_res{w}")
        for j in range(5):
            for e in range(2):
                A(f"v_lshlrev_b32 {v(ACC(j)+4*w+2*e)}, 16, {v(XR+2*j+e)}")
                A(f"v_and_b32 {v(ACC(j)+4*w+2*e+1)}, 0xffff0000, {v(XR+2*j+e)}")
        if w < 3:
            A("s_branch L_main_resdone")
            A.label(f"L_main_res{w}")
    A.label("L_main_resdone")
    for j in range(5):
        for ln in wreads(0, j): A(ln)
    A(f"s_mov_b32 {s(sCnt)}, 6")
    A.label("L_main_hloop")
    for k in range(4):
        A.c("step k+1 must have landed before its fragments are read; two younger steps may be in flight")
        A("s_waitcnt vmcnt(6)")
        for j in range(5):
            A("s_waitcnt lgkmcnt(8)")
            A(mf(j, AF(k)))
            for ln in wreads((k + 1) & 3, j): A(ln)
        issue_h((k + 3) & 3)
    A(f"s_sub_u32 {s(sCnt)}, {s(sCnt)}, 1")
    A(f"s_cmp_lg_u32 {s(sCnt)}, 0")
    A("s_cbranch_scc1 L_main_hloop")
    stamp(A, 1)

    A("s_waitcnt vmcnt(0) lgkmcnt(0)")
    A(f"s_mul_i32 {s(sT1)}, {s(sCq)}, 320")
    A(f"s_mul_i32 {s(sB1)}, {s(sW)}, {8*20*1280}")
    A(f"s_add_u32 {s(sB1)}, {s(sB1)}, {s(sT1)}")
    A(f"s_add_u32 {s(sB2)}, {s(sB1)}, {16*1280}")
    A(f"s_lshl_b32 {s(sA1)}, {s(sTb)}, 5")
    A(f"s_lshl_b32 {s(sT0)}, {s(sW)}, 3")
    A(f"s_add_u32 {s(sT0)}, {s(sT0)}, {s(sA1)}")
    A(f"s_lshl_b32 {s(sA2)}, {s(sT0)}, 10")
    A(f"s_add_u32 {s(sA2)}, {s(sA2)}, {WS_O}")
    A(f"s_lshl_b32 {s(sA3)}, {s(sT0)}, 8")
    A(f"s_add_u32 {s(sA3)}, {s(sA3)}, {WS_OR}")
    A.c("leftover steps: lane (t, h) takes units 2h and 2h+1 of four heads")
    vRem = T + 2
    A(f"v_and_b32 {v(vRem)}, 31, {v(vL)}")
    A(f"v_lshlrev_b32 {v(vRem)}, 3, {v(vRem)}")
    A(f"v_lshrrev_b32 {v(T+3)}, 5, {v(vL)}")
    A(f"v_lshl_add_u32 {v(vRem)}, {v(T+3)}, 9, {v(vRem)}")
    osteps = [(vD, sB1, k * 20 * 1280, sA2, k * 1024) for k in range(8)] + [(vDr, sB2, k * 80 * 1280, sA3, k * 1024) for k in range(2)]
    for k in range(4): wdma(osteps[k][0], sWO, osteps[k][1], osteps[k][2], k)
    A.c("touch the remaining Wo rows of this wave so that they are L2 hits later")
    for k in range(4, 10):
        for e in range(5):
            A(f"s_add_u32 {s(sT0)}, {s(osteps[k][1])}, {osteps[k][2]}")
            A(f"buffer_load_dwordx4 {v(132,4)}, {v(osteps[k][0][e])}, {s(sWO,4)}, {s(sT0)} offen")
    A("s_waitcnt vmcnt(0)")
    for j in range(5):
        for ln in wreads(0, j): A(ln)
    A(f"s_lshr_b32 {s(sT1)}, {s(sTb)}, 3")
    A(f"s_lshl_b32 {s(sT1)}, {s(sT1)}, 8")
    A(f"s_add_u32 {s(sT1)}, {s(sT1)}, {WS_FLAG}")
    global_wait(A, "o", sWS, sT1, 32, T, 50, 78)
    stamp(A, 2)
    for k in range(8):
        A(f"s_add_u32 {s(sT0)}, {s(sA2)}, {k*1024}")
        A(f"buffer_load_dwordx4 {v(OF(k),4)}, {v(vLin)}, {s(sWS,4)}, {s(sT0)} offen sc1")
    for k in range(2):
        for i in range(2):
            A(f"buffer_load_dwordx2 {v(OF(8+k)+2*i,2)}, {v(vRem)}, {s(sWS,4)}, {s(sA3)} offen offset:{k*1024 + i*256} sc1")
    waits = [11, 15, 19, 10, 10, 10, 10, 5, 0, None]
    for k in range(10):
        if waits[k] is not None: A(f"s_waitcnt vmcnt({waits[k]})")
        for j in range(5):
            A(f"s_waitcnt lgkmcnt({8 if k < 9 else 2*(4-j)})")
            A(mf(j, OF(k)))
            if k < 9:
                for ln in wreads((k + 1) & 3, j): A(ln)
        if k + 4 < 10:
            wdma(osteps[k+4][0], sWO, osteps[k+4][1], osteps[k+4][2], k & 3)
    stamp(A, 3)
    A(f"v_and_b32 {v(T)}, 31, {v(vL)}")
    A(f"v_mul_u32_u24 {v(T)}, {PITCH}, {v(T)}")
    A(f"v_lshrrev_b32 {v(T+1)}, 5, {v(vL)}")
    A(f"v_lshl_add_u32 {v(T)}, {v(T+1)}, 4, {v(T)}")
    A(f"v_add_u32 {v(T)}, {s(sM)}, {v(T)}")
    A(f"v_mov_b32 {v(T+2)}, {LDS_CNT_G}")
    A(f"v_mov_b32 {v(T+3)}, 1")
    vTid = T + 4
    A(f"v_subrev_u32 {v(vTid)}, 512, v0")
    vXo = [T + 5, T + 6, T + 7]; vRo = [T + 8, T + 9, T + 10]
    for i in range(3):
        A(f"v_add_u32 v16, {256*i}, {v(vTid)}")
        A(f"v_mul_u32_u24 v17, 52429, v16")
        A(f"v_lshrrev_b32 v17, 20, v17")
        A(f"v_mul_u32_u24 v18, 20, v17")
        A(f"v_sub_u32 v18, v16, v18")
        A(f"v_mul_u32_u24 v19, 1280, v17")
        A(f"v_lshl_add_u32 {v(vXo[i])}, v18, 4, v19")
        A(f"v_mul_u32_u24 v19, {PITCH}, v17")
        A(f"v_lshl_add_u32 v19, v18, 5, v19")
        A(f"v_add_u32 {v(vRo[i])}, {LDS_G}, v19")
    for j in range(5):
        for g in range(4):
            A(f"ds_write_b128 {v(T)}, {v(ACC(j)+4*g,4)} offset:{j*128 + g*32}")
    A("s_waitcnt lgkmcnt(0)")
    lds_arrive(A, T + 2, T + 3)
    A(f"s_mov_b32 {s(sT1)}, 4")
    lds_wait(A, "gred", T + 2, T + 11, sT0, sT1)
    P0 = 16
    for i in range(3):
        if i == 2:
            A(f"v_cmp_gt_u32 vcc, 128, {v(vTid)}")
            A("s_nop 0")
            A("s_and_saveexec_b64 s[50:51], vcc")
            A("s_cbranch_execz L_main_gdone")
        for w in range(4):
            for hh in range(2):
                A(f"ds_read_b128 {v(P0+8*w+4*hh,4)}, {v(vRo[i])} offset:{w*REG + 16*hh}")
        A("s_waitcnt lgkmcnt(0)")
        for e in range(8):
            A(f"v_add_f32 {v(P0+e)}, {v(P0+e)}, {v(P0+8+e)}")
            A(f"v_add_f32 {v(P0+16+e)}, {v(P0+16+e)}, {v(P0+24+e)}")
        for e in range(8):
            A(f"v_add_f32 {v(P0+e)}, {v(P0+e)}, {v(P0+16+e)}")
        for e in range(4):
            A(f"v_cvt_pk_bf16_f32 {v(P0+32+e)}, {v(P0+2*e)}, {v(P0+2*e+1)}")
        A(f"buffer_store_dwordx4 {v(P0+32,4)}, {v(vXo[i])}, {s(sOut,4)}, {s(sXo)} offen")
        A("s_nop 1")
    A.label("L_main_gdone")
    A("s_mov_b64 exec, -1")
    stamp(A, 4)
    stamp_flush(A, 5, 69, sWS, 16)
    A.label("L_main_end")
    A("s_endpgm")
    return NAME, 768, LDS_BYTES, descriptor(NAME, NV)

def zero_flags(A, sWS, sLw, sRb, sCt, vL):
    A(f"s_load_dwordx2 s[4:5], s[0:1], {K_WD}")
    A(f"s_load_dwordx2 s[6:7], s[0:1], {K_WO}")
    A(f"s_or_b32 s31, s2, {s(sLw)}")
    A("s_cmp_lg_u32 s31, 0")
    A("s_cbranch_scc1 L_k1_noflag")
    A(f"v_lshlrev_b32 v10, 8, {v(vL)}")
    A("v_mov_b32 v11, 0")
    A(f"s_mov_b32 s31, {WS_FLAG}")
    A(f"buffer_store_dword v11, v10, {s(sWS,4)}, s31 offen")
    A.label("L_k1_noflag")
    if PREFETCH_W:
        A("s_waitcnt lgkmcnt(0)")
        srd(A, 8, 4, F * D * 2)
        srd(A, 12, 6, D * D * 2)
        A.c("1024 helper waves: two KiB of Wd each (1920 KiB), one KiB of Wo for the first 800")
        A(f"s_lshl_b32 s31, s2, 2")
        A(f"s_add_u32 s31, s31, {s(sLw)}")
        A(f"v_lshlrev_b32 v10, 4, {v(vL)}")
        A(f"s_lshl_b32 s32, s31, 11")
        A(f"buffer_load_dwordx4 v[16:19], v10, s[8:11], s32 offen")
        A(f"buffer_load_dwordx4 v[20:23], v10, s[8:11], s32 offen offset:1024")
        A(f"s_lshl_b32 s32, s31, 10")
        A(f"buffer_load_dwordx4 v[24:27], v10, s[12:15], s32 offen")
    if PREFETCH_CODE:
        A(f"s_cmp_ge_u32 s2, 8")
        A("s_cbranch_scc1 L_k1_nocode")
        code_prefetch(A, "k2code", NAME, 13, 46, 12, 28, vL)
        A.label("L_k1_nocode")
PREFETCH_W = True
PREFETCH_CODE = False
```

```python
from common import *
from attn import lds_arrive, lds_wait
import common

PS = 2080
SLOT = 20992
ONES = 3 * SLOT + 64
KV_BYTES = ONES + 2048
DSHIFT = 104.0

def role(A, sWS, sWv, sHead, sQb, lds_kv, lds_cnt, vL, sb=40, on_stored=None, variant="", done=None):
    sT0, sT1, sT2, sKoff, sVoff, sM, sChunk, sTarget, sSlot, sSlotN, sTile, sKh, sG = [sb + i for i in range(13)]
    sExact, sCk = sb + 19, sb + 20
    vT, vHf, vKa, vKb, vV, vKa0, vKb0, vV0, vCnt, vOne, vTmp, vDma, vVm = 3, 4, 5, 6, 7, 8, 9, 10, 11, 12, 13, 14, 15
    Q1 = [16, 24]; Q2 = [20, 28]
    KA = [32, 40]; KB = [36, 44]
    VA = [48, 56]; VB = [52, 60]
    P = [64, 72]
    SB = [80, 96]
    O = [112, 128]
    T = 144
    A(f"v_and_b32 {v(vT)}, 31, {v(vL)}")
    A(f"v_lshrrev_b32 {v(vHf)}, 5, {v(vL)}")
    A(f"v_lshlrev_b32 {v(vDma)}, 4, {v(vL)}")
    A(f"s_mov_b32 {s(sExact)}, 0")
    A(f"s_lshr_b32 {s(sKh)}, {s(sWv)}, 2")
    A(f"s_and_b32 {s(sG)}, {s(sWv)}, 3")
    A.c("a chunk is 20 pieces of 1 KiB (plane n>>1, half n&1); wave w copies pieces w, w+8 and, for w < 4, w+16")
    sP = [sb + 13, sb + 14, sb + 15]; sL = [sb + 16, sb + 17, sb + 18]
    for i in range(3):
        A(f"s_add_u32 {s(sT0)}, {s(sWv)}, {8*i}")
        A(f"s_lshr_b32 {s(sT1)}, {s(sT0)}, 1")
        A(f"s_and_b32 {s(sT0)}, {s(sT0)}, 1")
        A(f"s_mul_i32 {s(sL[i])}, {s(sT1)}, {PS}")
        A(f"s_lshl_b32 {s(sT2)}, {s(sT0)}, 10")
        A(f"s_add_u32 {s(sL[i])}, {s(sL[i])}, {s(sT2)}")
        A(f"s_add_u32 {s(sL[i])}, {s(sL[i])}, {lds_kv}")
        A.c("planes 0..4 -> key unit 160 + 5*head + p, planes 5..9 -> value unit 320 + 5*head + p - 5")
        A(f"s_cmp_ge_u32 {s(sT1)}, 5")
        A(f"s_cselect_b32 {s(sT0)}, 155, 0")
        A(f"s_add_u32 {s(sT1)}, {s(sT1)}, {s(sT0)}")
        A(f"s_mul_i32 {s(sT0)}, {s(sHead)}, 5")
        A(f"s_add_u32 {s(sT1)}, {s(sT1)}, {s(sT0)}")
        A(f"s_add_u32 {s(sT1)}, {s(sT1)}, 160")
        A(f"s_lshl_b32 {s(sP[i])}, {s(sT1)}, 14")
        A(f"s_add_u32 {s(sP[i])}, {s(sP[i])}, {s(sT2)}")
        A(f"s_add_u32 {s(sP[i])}, {s(sP[i])}, {WS_QKV}")
    ndma = [0]
    NCH = 16 if "twice" in variant else 8
    sDm = sb + 24
    if "twice" in variant: A(f"s_mov_b32 {s(sDm)}, 0")
    def dma(slot_off, in_reg=False):
        ndma[0] += 1
        for i in range(3):
            if i == 2:
                A(f"s_cmp_ge_u32 {s(sWv)}, 4")
                A(f"s_cbranch_scc1 L_attn_dma{ndma[0]}")
            if not in_reg:
                A(f"s_add_u32 m0, {s(sL[i])}, {slot_off}")
            else:
                A(f"s_add_u32 m0, {s(sL[i])}, {s(slot_off)}")
            A("s_nop 0")
            A(f"buffer_load_dwordx4 {v(vDma)}, {s(sWS,4)}, {s(sP[i])} offen lds")
        A.label(f"L_attn_dma{ndma[0]}")
        for i in range(3): A(f"s_add_u32 {s(sP[i])}, {s(sP[i])}, 2048")
        if "twice" in variant:
            A(f"s_add_u32 {s(sDm)}, {s(sDm)}, 1")
            A(f"s_cmp_eq_u32 {s(sDm)}, 8")
            A(f"s_cselect_b32 {s(sT2)}, 16384, 0")
            for i in range(3): A(f"s_sub_u32 {s(sP[i])}, {s(sP[i])}, {s(sT2)}")
    dma(0)
    A.c("query fragments of tiles 2g and 2g+1")
    A(f"s_lshl_b32 {s(sTile)}, {s(sQb)}, 3")
    A(f"s_lshl_b32 {s(sT0)}, {s(sG)}, 1")
    A(f"s_add_u32 {s(sTile)}, {s(sTile)}, {s(sT0)}")
    A(f"s_lshl_b32 {s(sT1)}, {s(sTile)}, 8")
    A(f"s_mul_i32 {s(sT2)}, {s(sHead)}, {5*PLANE}")
    A(f"s_add_u32 {s(sT1)}, {s(sT1)}, {s(sT2)}")
    A(f"s_add_u32 {s(sT1)}, {s(sT1)}, {WS_QKV}")
    A(f"v_lshlrev_b32 {v(vKb0)}, 3, {v(vT)}")
    A(f"v_lshl_add_u32 {v(vKa0)}, {v(vHf)}, 15, {v(vKb0)}")
    A(f"s_add_u32 {s(sT2)}, {s(sT1)}, {PLANE}")
    A(f"s_add_u32 {s(sT0)}, {s(sT1)}, {4*PLANE}")
    for q in range(2):
        A(f"buffer_load_dwordx2 {v(Q1[q],2)}, {v(vKa0)}, {s(sWS,4)}, {s(sT1)} offen offset:{q*256}")
        A(f"buffer_load_dwordx2 {v(Q1[q]+2,2)}, {v(vKa0)}, {s(sWS,4)}, {s(sT2)} offen offset:{q*256}")
        A(f"buffer_load_dwordx2 {v(Q2[q],2)}, {v(vKb0)}, {s(sWS,4)}, {s(sT0)} offen offset:{q*256}")
    dma(SLOT)
    A.c("LDS addresses: keys plane 2h / plane 4 at key*8; values plane c (c<4), plane 4 or the constant plane")
    A(f"v_mul_u32_u24 {v(vKa0)}, {2*PS}, {v(vHf)}")
    A(f"v_add_u32 {v(vKa0)}, {v(vKa0)}, {v(vKb0)}")
    A(f"v_add_u32 {v(vKa0)}, {lds_kv}, {v(vKa0)}")
    A(f"v_add_u32 {v(vKb0)}, {lds_kv + 4*PS}, {v(vKb0)}")
    A(f"v_bfe_u32 {v(T)}, {v(vL)}, 2, 2")
    A(f"v_lshl_add_u32 {v(T)}, {v(vHf)}, 2, {v(T)}")
    A(f"v_lshlrev_b32 {v(T)}, 3, {v(T)}")
    A(f"v_and_b32 {v(T+1)}, 3, {v(vL)}")
    A(f"v_bfe_u32 {v(T+2)}, {v(vL)}, 4, 1")
    A(f"v_lshl_add_u32 {v(T+2)}, {v(T+2)}, 2, {v(T+1)}")
    A(f"v_mul_u32_u24 {v(vV0)}, {PS}, {v(T+2)}")
    A(f"v_add_u32 {v(vV0)}, {lds_kv + 5*PS}, {v(vV0)}")
    A(f"v_cmp_gt_u32 vcc, 5, {v(T+2)}")
    A(f"v_mov_b32 {v(T+1)}, {lds_kv + ONES}")
    A(f"v_mov_b32 {v(vOne)}, 1")
    A(f"v_cndmask_b32 {v(vV0)}, {v(T+1)}, {v(vV0)}, vcc")
    A(f"v_cndmask_b32 {v(vVm)}, 0, {v(vOne)}, vcc")
    A(f"v_add_u32 {v(vV0)}, {v(vV0)}, {v(T)}")
    A(f"v_mov_b32 {v(vCnt)}, {lds_cnt}")
    A.c("constant plane: 256 x (1,0,0,0), written by wave 0")
    A(f"s_cmp_lg_u32 {s(sWv)}, 0")
    A("s_cbranch_scc1 L_attn_noones")
    A(f"v_mov_b32 {v(T)}, 0x3f80")
    A(f"v_mov_b32 {v(T+1)}, 0")
    A(f"v_mov_b32 {v(T+2)}, 0x3f80")
    A(f"v_mov_b32 {v(T+3)}, 0")
    A(f"v_add_u32 {v(T+4)}, {lds_kv + ONES}, {v(vDma)}")
    A(f"ds_write_b128 {v(T+4)}, {v(T,4)}")
    A(f"ds_write_b128 {v(T+4)}, {v(T,4)} offset:1024")
    A("s_waitcnt lgkmcnt(0)")
    A.label("L_attn_noones")
    for b in range(2):
        A(f"v_mov_b32 {v(KB[b]+2)}, 0x3f80")
        A(f"v_mov_b32 {v(KB[b]+3)}, 0")
    for q in range(2):
        for r in range(16): A(f"v_mov_b32 {v(O[q]+r)}, 0")
    for r in range(8):
        A(f"v_mov_b32 {v(P[1]+r)}, 0")
        A(f"v_mov_b32 {v(VA[1]+r)}, 0")
    A(f"v_cmp_eq_u32 vcc, 0, {v(vHf)}")
    A("s_waitcnt vmcnt(2)")
    A("s_nop 0")
    for q in range(2):
        A(f"v_cndmask_b32 {v(Q2[q])}, 0, {v(Q2[q])}, vcc")
        A(f"v_cndmask_b32 {v(Q2[q]+1)}, 0, {v(Q2[q]+1)}, vcc")
        A(f"v_mov_b32 {v(Q2[q]+2)}, 0")
        A(f"v_mov_b32 {v(Q2[q]+3)}, 0")
    A.c("chunk 0 of this wave has landed")
    lds_arrive(A, vCnt, vOne)
    A(f"s_mov_b32 {s(sTarget)}, 8")
    lds_wait(A, "attn0", vCnt, vTmp, sT0, sTarget)
    dbg_time(A, 5, sWv, 0, back=1, tag="k2")
    stamp(A, 1)

    def kreads(b, off):
        return [f"ds_read_b64 {v(KA[b],2)}, {v(vKa)} offset:{off}", f"ds_read_b64 {v(KA[b]+2,2)}, {v(vKa)} offset:{off + PS}",
                f"ds_read_b64 {v(KB[b],2)}, {v(vKb)} offset:{off}"]
    def vreads(b, off):
        return [f"ds_read_b64_tr_b16 {v((VA if m == 0 else VB)[b]+2*i,2)}, {v(vV)} offset:{off + (16*m+8*i)*8}" for m in range(2) for i in range(2)]
    s1 = lambda q, b: f"v_mfma_f32_32x32x16_bf16 {v(SB[q],16)}, {v(KA[b],4)}, {v(Q1[q],4)}, 0"
    s2 = lambda q, b: f"v_mfma_f32_32x32x16_bf16 {v(SB[q],16)}, {v(KB[b],4)}, {v(Q2[q],4)}, {v(SB[q],16)}"
    pv = lambda q, b, m: f"v_mfma_f32_32x32x16_bf16 {v(O[q],16)}, {v((VA if m == 0 else VB)[b],4)}, {v(P[q]+4*m,4)}, {v(O[q],16)}"

    A.c("reference value per query: maximum over the first 64 keys plus a fixed offset, rounded to bf16")
    A(f"v_mov_b32 {v(vKa)}, {v(vKa0)}")
    A(f"v_mov_b32 {v(vKb)}, {v(vKb0)}")
    for ln in kreads(0, 0) + kreads(1, 256): A(ln)
    A(f"s_lshl_b32 {s(sT0)}, {s(sKh)}, 8")
    A(f"v_add_u32 {v(vKa0)}, {s(sT0)}, {v(vKa0)}")
    A(f"v_add_u32 {v(vKb0)}, {s(sT0)}, {v(vKb0)}")
    A(f"v_add_u32 {v(vV0)}, {s(sT0)}, {v(vV0)}")
    A("s_waitcnt lgkmcnt(0)")
    def maxes(first):
        for q in range(2):
            b = SB[q]; t = T + 4 * q
            if first:
                A(f"v_max3_f32 {v(t)}, {v(b)}, {v(b+1)}, {v(b+2)}")
                A(f"v_max3_f32 {v(t+1)}, {v(b+3)}, {v(b+4)}, {v(b+5)}")
                for r in range(3):
                    A(f"v_max3_f32 {v(t + (r & 1))}, {v(t + (r & 1))}, {v(b+6+3*r)}, {v(b+7+3*r)}")
                    A(f"v_max_f32 {v(t + 1 - (r & 1))}, {v(t + 1 - (r & 1))}, {v(b+8+3*r)}")
                A(f"v_max_f32 {v(t)}, {v(t)}, {v(b+15)}")
            else:
                for r in range(0, 16, 4):
                    A(f"v_max3_f32 {v(t)}, {v(t)}, {v(b+r)}, {v(b+r+1)}")
                    A(f"v_max3_f32 {v(t+1)}, {v(t+1)}, {v(b+r+2)}, {v(b+r+3)}")
    for q in range(2):
        A(s1(q, 0)); A(s2(q, 0))
    A("s_nop 7"); A("s_nop 3")
    maxes(True)
    for q in range(2):
        A(s1(q, 1)); A(s2(q, 1))
    A(f"v_mov_b32 {v(vKa)}, {v(vKa0)}")
    A(f"v_mov_b32 {v(vKb)}, {v(vKb0)}")
    A(f"v_mov_b32 {v(vV)}, {v(vV0)}")
    for ln in kreads(0, 0): A(ln)
    A("s_nop 7")
    A(f"v_cmp_eq_u32 vcc, 0, {v(vHf)}")
    maxes(False)
    for q in range(2):
        t = T + 4 * q
        A(f"v_max_f32 {v(t)}, {v(t)}, {v(t+1)}")
        A(f"v_mov_b32 {v(t+1)}, {v(t)}")
    A("s_nop 0")
    for q in range(2):
        t = T + 4 * q
        A(f"v_permlane32_swap_b32 {v(t)}, {v(t+1)}")
    A("s_nop 0")
    for q in range(2):
        t = T + 4 * q
        A(f"v_max_f32 {v(t)}, {v(t)}, {v(t+1)}")
        A(f"v_add_f32 {v(t)}, {f32bits(DSHIFT):#x}, {v(t)}")
        A(f"v_sub_f32 {v(t)}, 0, {v(t)}")
        A(f"v_cvt_pk_bf16_f32 {v(t)}, {v(t)}, 0")
        A(f"v_cndmask_b32 {v(Q2[q]+2)}, 0, {v(t)}, vcc")
    A("s_waitcnt lgkmcnt(0)")
    A("s_nop 0")
    A.c("pipeline prologue: scores of tile A for the first key tile")
    A(s1(0, 0)); A(s2(0, 0))
    A(f"s_mov_b32 {s(sChunk)}, 0")
    A(f"s_mov_b32 {s(sSlot)}, 0")
    A(f"s_mov_b32 {s(sTarget)}, 8")
    A("s_nop 7")
    A(".p2align 3")
    A.label("L_attn_chunk")
    A.c("arrive: own copy of the next chunk has landed and the previous chunk is no longer read")
    A("s_waitcnt vmcnt(0)")
    lds_arrive(A, vCnt, vOne)
    A(f"s_add_u32 {s(sTarget)}, {s(sTarget)}, 8")
    A(f"s_add_u32 {s(sSlotN)}, {s(sSlot)}, {SLOT}")
    A(f"s_cmp_eq_u32 {s(sSlotN)}, {3*SLOT}")
    A(f"s_cselect_b32 {s(sSlotN)}, 0, {s(sSlotN)}")

    A0 = A
    class Filt:
        def __call__(self, ln):
            if "nolds" in variant and ((ln.startswith("ds_read") and "b32" not in ln) or "lgkmcnt(4)" in ln): return
            if "nomfma" in variant and ln.startswith("v_mfma"): return
            if "noexp" in variant and ln.startswith("v_exp"): return
            if "nocvt" in variant and ln.startswith("v_cvt"): return
            A0(ln)
        def c(self, t): A0.c(t)
        def label(self, t): A0.label(t)
    A = Filt()
    def phase(q, mf, extra):
        sb_ = SB[q]
        ex = lambda i: f"v_exp_f32 {v(sb_+i)}, {v(sb_+i)}"
        cv = lambda e: f"v_cvt_pk_bf16_f32 {v(P[q]+e)}, {v(sb_+2*e)}, {v(sb_+2*e+1)}"
        groups = [[ex(0), ex(1), ex(2), cv(0), ex(3), ex(4)],
                  [cv(1), ex(5), ex(6), cv(2), ex(7), ex(8)],
                  [cv(3), ex(9), ex(10), cv(4), ex(11), ex(12)],
                  [cv(5), ex(13), ex(14), ex(15), cv(6), cv(7)]]
        for k in range(4):
            for ln in extra.get(("pre", k), []): A(ln)
            A(mf[k])
            for ln in extra.get(k, []): A(ln)
            for ln in groups[k]: A(ln)

    for i in range(4):
        b = i & 1
        if i == 3:
            pre_k = [f"v_add_u32 {v(vKa)}, {s(sSlotN)}, {v(vKa0)}", f"v_add_u32 {v(vKb)}, {s(sSlotN)}, {v(vKb0)}"]
        else:
            pre_k = []
        if "cyc4" in variant: A(f"s_setprio {3 - (2*i) % 4}")
        if "cyct" in variant: A(f"s_setprio {3 - i}")
        if "cyc3" in variant: A(f"s_setprio {[2,0,1,2][i]}")
        A.c(f"key tile {i}: tile A exponentials")
        phase(0, [s1(1, b), s2(1, b), pv(1, 1 - b, 0), pv(1, 1 - b, 1)],
              {0: pre_k, 1: kreads(1 - b, ((i + 1) & 3) * 512), 3: vreads(b, i * 512)})
        if "cyc4" in variant: A(f"s_setprio {3 - (2*i+1) % 4}")
        if "cyc3" in variant: A(f"s_setprio {[1,2,0,1][i] if i < 3 else 0}")
        A.c(f"key tile {i}: tile B exponentials")
        phase(1, [s1(0, 1 - b), s2(0, 1 - b), pv(0, b, 0), pv(0, b, 1)],
              {("pre", 0): ["s_waitcnt lgkmcnt(4)"], ("pre", 2): ["s_waitcnt lgkmcnt(0)"]})
        if i == 1 and "nosync" not in variant:
            A.c("all waves left the previous chunk: refill its slot with chunk c+2")
            lds_wait(A, "attn", vCnt, vTmp, sT0, sTarget)
            A(f"s_cmp_ge_u32 {s(sChunk)}, {NCH - 2}")
            A("s_cbranch_scc1 L_attn_nodma")
            A(f"s_add_u32 {s(sT1)}, {s(sSlotN)}, {SLOT}")
            A(f"s_cmp_eq_u32 {s(sT1)}, {3*SLOT}")
            A(f"s_cselect_b32 {s(sT1)}, 0, {s(sT1)}")
            dma(sT1, True)
            A.label("L_attn_nodma")
        if i == 3:
            A(f"v_mad_u32_u24 {v(vV)}, {s(sSlotN)}, {v(vVm)}, {v(vV0)}")
    A = A0
    A(f"s_mov_b32 {s(sSlot)}, {s(sSlotN)}")
    A(f"s_add_u32 {s(sChunk)}, {s(sChunk)}, 1")
    A(f"s_cmp_lt_u32 {s(sChunk)}, {NCH}")
    A("s_cbranch_scc1 L_attn_chunk")
    A.c("last value product of tile B")
    A(pv(1, 1, 0)); A(pv(1, 1, 1))
    dbg_time(A, 6, sWv, 0, back=1, tag="k2")
    stamp(A, 2)

    A.c("combine the two key parities: this wave keeps tile kh and hands the other one over through LDS")
    A.c("hand-over areas: waves 0..3 in slot 0 (chunk 6), waves 4..7 in slot 2 (chunk 5); both are dead by now")
    dead = [k for k in range(3) if k != (NCH - 1) % 3]
    A(f"s_mul_i32 {s(sT0)}, {s(sKh)}, {(dead[1]-dead[0])*SLOT}")
    A(f"s_mul_i32 {s(sT2)}, {s(sG)}, 3072")
    A(f"s_add_u32 {s(sT2)}, {s(sT2)}, {lds_kv + dead[0]*SLOT}")
    A(f"s_add_u32 {s(sT0)}, {s(sT0)}, {s(sT2)}")
    A(f"v_add_u32 {v(T)}, {s(sT0)}, {v(vDma)}")
    A(f"s_xor_b32 {s(sT1)}, {s(sKh)}, 1")
    A(f"s_mul_i32 {s(sT1)}, {s(sT1)}, {(dead[1]-dead[0])*SLOT}")
    A(f"s_add_u32 {s(sT1)}, {s(sT1)}, {s(sT2)}")
    A(f"v_add_u32 {v(T+1)}, {s(sT1)}, {v(vDma)}")
    A(f"s_cmp_eq_u32 {s(sKh)}, 0")
    A("s_nop 4")
    A("s_cbranch_scc1 L_attn_give_b")
    for k in range(3): A(f"ds_write_b128 {v(T)}, {v(O[0]+4*k,4)} offset:{1024*k}")
    for r in range(12): A(f"v_mov_b32 {v(O[0]+r)}, {v(O[1]+r)}")
    for r in range(4):
        A(f"v_mov_b32 {v(Q1[0]+r)}, {v(Q1[1]+r)}")
    for r in range(2):
        A(f"v_mov_b32 {v(Q2[0]+r)}, {v(Q2[1]+r)}")
    A(f"s_add_u32 {s(sTile)}, {s(sTile)}, 1")
    A("s_branch L_attn_given")
    A.label("L_attn_give_b")
    for k in range(3): A(f"ds_write_b128 {v(T)}, {v(O[1]+4*k,4)} offset:{1024*k}")
    A.label("L_attn_given")
    A("s_waitcnt lgkmcnt(0)")
    lds_arrive(A, vCnt, vOne)
    A(f"s_add_u32 {s(sTarget)}, {s(sTarget)}, 8")
    lds_wait(A, "attnx", vCnt, vTmp, sT0, sTarget)
    stamp(A, 4)
    for k in range(3): A(f"ds_read_b128 {v(SB[0]+4*k,4)}, {v(T+1)} offset:{1024*k}")
    A("s_waitcnt lgkmcnt(0)")
    Of = O[0]
    for r in range(12): A(f"v_add_f32 {v(Of+r)}, {v(Of+r)}, {v(SB[0]+r)}")
    A.c("the reference value is only a stand-in for the row maximum: check that nothing overflowed or vanished")
    A.label("L_attn_check")
    A(f"v_mov_b32 {v(T)}, {v(Of+8)}")
    A(f"v_mov_b32 {v(T+1)}, {v(Of+8)}")
    A(f"v_mul_f32 {v(T+2)}, 0, {v(Of)}")
    A("s_nop 0")
    A(f"v_permlane32_swap_b32 {v(T)}, {v(T+1)}")
    for r in range(1, 12): A(f"v_fma_f32 {v(T+2)}, {v(Of+r)}, 0, {v(T+2)}")
    A(f"s_cmp_eq_u32 {s(sExact)}, 1")
    A("s_cbranch_scc1 L_attn_norm")
    A(f"v_mov_b32 {v(T+3)}, {f32bits(2.0**-107):#x}")
    A(f"v_mov_b32 {v(T+4)}, {f32bits(2.0**124):#x}")
    A(f"v_cmp_ge_f32 vcc, {v(T+1)}, {v(T+3)}")
    A(f"v_cmp_le_f32 {s(sCk,2)}, {v(T+1)}, {v(T+4)}")
    A(f"v_cmp_o_f32 {s(sCk+2,2)}, {v(T+2)}, {v(T+2)}")
    A("s_nop 0")
    A(f"s_and_b64 vcc, vcc, {s(sCk,2)}")
    A(f"s_and_b64 vcc, vcc, {s(sCk+2,2)}")
    A("s_cmp_eq_u64 vcc, exec")
    A("s_cbranch_scc0 L_attn_exact")
    A.label("L_attn_norm")
    A.c("normalise by the row sum (row 20 of the accumulator, held by the upper half in register 8)")
    A(f"v_rcp_f32 {v(T)}, {v(T+1)}")
    A("s_nop 0")
    for r in range(12): A(f"v_mul_f32 {v(Of+r)}, {v(Of+r)}, {v(T)}")
    PP = P[0]
    for e in range(6): A(f"v_cvt_pk_bf16_f32 {v(PP+e)}, {v(Of+2*e)}, {v(Of+2*e+1)}")
    A(f"s_lshl_b32 {s(sT1)}, {s(sTile)}, 5")
    A(f"s_add_u32 {s(sT1)}, {s(sT1)}, {s(sHead)}")
    A(f"s_lshl_b32 {s(sT0)}, {s(sT1)}, 10")
    A(f"s_add_u32 {s(sT0)}, {s(sT0)}, {WS_O}")
    sc = " sc1" if on_stored else ""
    A(f"buffer_store_dwordx4 {v(PP,4)}, {v(vDma)}, {s(sWS,4)}, {s(sT0)} offen{sc}")
    A.c("leftover four dims: 256 contiguous bytes per (tile, head), held by the lower half")
    A(f"s_lshl_b32 {s(sT0)}, {s(sT1)}, 8")
    A(f"s_add_u32 {s(sT0)}, {s(sT0)}, {WS_OR}")
    A(f"v_lshlrev_b32 {v(T)}, 3, {v(vT)}")
    A("s_mov_b32 exec_hi, 0")
    A(f"buffer_store_dwordx2 {v(PP+4,2)}, {v(T)}, {s(sWS,4)}, {s(sT0)} offen{sc}")
    A("s_mov_b64 exec, -1")
    stamp(A, 5)
    if on_stored: on_stored(A)
    done(A)

    A.label("L_attn_exact")
    if "countexact" in variant:
        A(f"s_load_dwordx2 s[64:65], s[0:1], {K_DBG}")
        A("s_waitcnt lgkmcnt(0)")
        A("v_mov_b32 v5, 0"); A("v_mov_b32 v6, 1")
        A("s_mov_b64 exec, 1")
        A("global_atomic_add v5, v6, s[64:65]")
        A("s_waitcnt vmcnt(0)")
        A("s_mov_b64 exec, -1")
    A(f"s_mov_b32 {s(sExact)}, 1")
    q1, q2 = Q1[0], Q2[0]
    ka, kb = KA[0], KB[0]
    sb0 = SB[0]
    vKo, vK4, vVo, vW, vR, vMx = 5, 6, 7, 8, 9, 10
    PRIV, PP2 = ((NCH - 1) % 3) * SLOT, 288
    A(f"s_mul_i32 {s(sKoff)}, {s(sHead)}, {5*PLANE}")
    A(f"s_add_u32 {s(sKoff)}, {s(sKoff)}, {160*PLANE + WS_QKV}")
    A(f"s_add_u32 {s(sVoff)}, {s(sKoff)}, {160*PLANE}")
    A(f"v_lshlrev_b32 {v(vK4)}, 3, {v(vT)}")
    A(f"v_lshl_add_u32 {v(vKo)}, {v(vHf)}, 15, {v(vK4)}")
    A(f"v_mov_b32 {v(q2+2)}, 0")
    A(f"v_mov_b32 {v(q2+3)}, 0")
    A(f"v_mov_b32 {v(kb+2)}, 0x3f803f80")
    A(f"v_mov_b32 {v(kb+3)}, 0x3f80")
    A(f"v_mov_b32 {v(vMx)}, 0xff800000")
    def kload(off):
        A(f"s_add_u32 {s(sT0)}, {s(off)}, {PLANE}")
        A(f"s_add_u32 {s(sT1)}, {s(off)}, {4*PLANE}")
        A(f"buffer_load_dwordx2 {v(ka,2)}, {v(vKo)}, {s(sWS,4)}, {s(off)} offen")
        A(f"buffer_load_dwordx2 {v(ka+2,2)}, {v(vKo)}, {s(sWS,4)}, {s(sT0)} offen")
        A(f"buffer_load_dwordx2 {v(kb,2)}, {v(vK4)}, {s(sWS,4)}, {s(sT1)} offen")
    A(f"s_mov_b32 {s(sM)}, {s(sKoff)}")
    A(f"s_mov_b32 {s(sChunk)}, 64")
    A.label("L_attn_max")
    kload(sM)
    A("s_waitcnt vmcnt(0)")
    A(s1(0, 0)); A(s2(0, 0))
    A("s_nop 7"); A("s_nop 3")
    for r in range(0, 16, 2): A(f"v_max3_f32 {v(vMx)}, {v(vMx)}, {v(sb0+r)}, {v(sb0+r+1)}")
    A(f"s_add_u32 {s(sM)}, {s(sM)}, 256")
    A(f"s_sub_u32 {s(sChunk)}, {s(sChunk)}, 1")
    A(f"s_cmp_lg_u32 {s(sChunk)}, 0")
    A("s_cbranch_scc1 L_attn_max")
    A(f"v_mov_b32 {v(T)}, {v(vMx)}")
    A("s_nop 1")
    A(f"v_permlane32_swap_b32 {v(vMx)}, {v(T)}")
    A("s_nop 0")
    A(f"v_max_f32 {v(vMx)}, {v(vMx)}, {v(T)}")
    A.c("-max as three bf16 terms in slots 20, 21, 22")
    A(f"v_sub_f32 {v(vMx)}, 0, {v(vMx)}")
    A(f"v_and_b32 {v(T)}, 0xffff0000, {v(vMx)}")
    A(f"v_sub_f32 {v(T+1)}, {v(vMx)}, {v(T)}")
    A(f"v_and_b32 {v(T+2)}, 0xffff0000, {v(T+1)}")
    A(f"v_sub_f32 {v(T+3)}, {v(T+1)}, {v(T+2)}")
    A(f"v_lshrrev_b32 {v(T)}, 16, {v(T)}")
    A(f"v_or_b32 {v(T)}, {v(T)}, {v(T+2)}")
    A(f"v_lshrrev_b32 {v(T+3)}, 16, {v(T+3)}")
    A(f"v_cmp_eq_u32 vcc, 0, {v(vHf)}")
    A.c("addresses of the private value staging area")
    A(f"s_mul_i32 {s(sT0)}, {s(sWv)}, 2624")
    A(f"s_add_u32 {s(sT2)}, {s(sT0)}, {lds_kv + PRIV}")
    A(f"v_cndmask_b32 {v(q2+2)}, 0, {v(T)}, vcc")
    A(f"v_cndmask_b32 {v(q2+3)}, 0, {v(T+3)}, vcc")
    A(f"v_mul_u32_u24 {v(vVo)}, {3*PLANE}, {v(vHf)}")
    A(f"v_add_u32 {v(vVo)}, {v(vVo)}, {v(vK4)}")
    A(f"v_mul_u32_u24 {v(vW)}, {3*PP2}, {v(vHf)}")
    A(f"v_add_u32 {v(vW)}, {v(vW)}, {v(vK4)}")
    A(f"v_add_u32 {v(vW)}, {s(sT2)}, {v(vW)}")
    A(f"v_bfe_u32 {v(T)}, {v(vL)}, 2, 2")
    A(f"v_lshl_add_u32 {v(T)}, {v(vHf)}, 2, {v(T)}")
    A(f"v_lshlrev_b32 {v(T)}, 3, {v(T)}")
    A(f"v_and_b32 {v(T+1)}, 3, {v(vL)}")
    A(f"v_bfe_u32 {v(T+2)}, {v(vL)}, 4, 1")
    A(f"v_lshl_add_u32 {v(T+2)}, {v(T+2)}, 2, {v(T+1)}")
    A(f"v_mul_u32_u24 {v(vR)}, {PP2}, {v(T+2)}")
    A(f"v_add_u32 {v(vR)}, {s(sT2)}, {v(vR)}")
    A(f"v_cmp_gt_u32 vcc, 5, {v(T+2)}")
    A(f"v_mov_b32 {v(T+1)}, {lds_kv + ONES}")
    A("s_nop 0")
    A(f"v_cndmask_b32 {v(vR)}, {v(T+1)}, {v(vR)}, vcc")
    A(f"v_add_u32 {v(vR)}, {v(vR)}, {v(T)}")
    for r in range(16): A(f"v_mov_b32 {v(Of+r)}, 0")
    A(f"s_mov_b32 {s(sM)}, {s(sKoff)}")
    A(f"s_mov_b32 {s(sSlot)}, {s(sVoff)}")
    A(f"s_mov_b32 {s(sChunk)}, 64")
    A.label("L_attn_again")
    kload(sM)
    for e in range(3):
        A(f"s_add_u32 {s(sT0)}, {s(sSlot)}, {e*PLANE}")
        A(f"buffer_load_dwordx2 {v(P[1]+2*e,2)}, {v(vVo)}, {s(sWS,4)}, {s(sT0)} offen")
    A("s_waitcnt vmcnt(0)")
    A(s1(0, 0)); A(s2(0, 0))
    A(f"ds_write_b64 {v(vW)}, {v(P[1],2)}")
    A(f"ds_write_b64 {v(vW)}, {v(P[1]+2,2)} offset:{PP2}")
    A("s_mov_b32 exec_hi, 0")
    A(f"ds_write_b64 {v(vW)}, {v(P[1]+4,2)} offset:{2*PP2}")
    A("s_mov_b64 exec, -1")
    A("s_waitcnt lgkmcnt(0)")
    for m in range(2):
        for i in range(2):
            A(f"ds_read_b64_tr_b16 {v((VA if m == 0 else VB)[0]+2*i,2)}, {v(vR)} offset:{(16*m+8*i)*8}")
    A("s_nop 7")
    for r in range(16): A(f"v_exp_f32 {v(sb0+r)}, {v(sb0+r)}")
    A("s_nop 0")
    for e in range(8): A(f"v_cvt_pk_bf16_f32 {v(P[0]+e)}, {v(sb0+2*e)}, {v(sb0+2*e+1)}")
    A("s_waitcnt lgkmcnt(0)")
    A("s_nop 0")
    A(pv(0, 0, 0)); A(pv(0, 0, 1))
    A(f"s_add_u32 {s(sM)}, {s(sM)}, 256")
    A(f"s_add_u32 {s(sSlot)}, {s(sSlot)}, 256")
    A(f"s_sub_u32 {s(sChunk)}, {s(sChunk)}, 1")
    A(f"s_cmp_lg_u32 {s(sChunk)}, 0")
    A("s_cbranch_scc1 L_attn_again")
    A("s_nop 7"); A("s_nop 7")
    A("s_branch L_attn_check")


NAME = "attn_kernel"
def gen(A, variant=""):
    sWS, sWave, sHead, sQb, sT0 = 16, 20, 21, 22, 23
    LDS_CNT = KV_BYTES
    kernel_header(A, NAME)
    A("s_cmp_ge_u32 s2, 256")
    A("s_cbranch_scc1 L_attn_end")
    A(f"s_load_dwordx2 s[28:29], s[0:1], {K_WS}")
    A("v_lshrrev_b32 v1, 6, v0")
    A("v_and_b32 v2, 63, v0")
    A(f"v_readfirstlane_b32 {s(sWave)}, v1")
    A(f"s_and_b32 {s(sT0)}, s2, 7")
    A(f"s_lshr_b32 {s(sQb)}, s2, 3")
    A(f"s_lshr_b32 {s(sHead)}, {s(sQb)}, 3")
    A(f"s_lshl_b32 {s(sT0)}, {s(sT0)}, 2")
    A(f"s_add_u32 {s(sHead)}, {s(sHead)}, {s(sT0)}")
    A(f"s_and_b32 {s(sQb)}, {s(sQb)}, 7")
    A(f"v_mov_b32 v3, {LDS_CNT}")
    A(f"v_mov_b32 v4, 0")
    A("ds_write_b32 v3, v4")
    A("s_waitcnt lgkmcnt(0)")
    srd(A, sWS, 28, WS_SIZE)
    stamp(A, 0)
    if common.STAMPS:
        A(f"s_lshl_b32 s27, s2, 3")
        A(f"s_add_u32 s27, s27, {s(sWave)}")
    A("s_barrier")
    if 'prio' in variant:
        A(f's_cmp_lt_u32 {s(sWave)}, 4')
        A('s_cbranch_scc1 L_attn_noprio')
        A('s_setprio 1')
        A.label('L_attn_noprio')
    role(A, sWS, sWave, sHead, sQb, 0, LDS_CNT, 2, variant=variant)
    stamp(A, 3)
    stamp_flush(A, 4, 27, sWS, 144)
    A.label("L_attn_end")
    A("s_endpgm")
    return NAME, 512, 90112, descriptor(NAME, 152)
```

```python
from asm import *

S, D, H, DH, F = 2048, 640, 32, 20, 1536
WS_QKV = 0
QKV_HEAD = S * 48
PLANE = S * 8
WS_XN = 0x00A00000
WS_H = 0x00D00000
WS_O = 0x01400000
WS_OR = 0x01600000
WS_FLAG = 0x01700000
WS_SIZE = 0x01A00000
LOG2E = 1.4426950408889634
QSCALE = (DH ** -0.5) * LOG2E

K_X, K_WQKV, K_WO, K_BX, K_WG, K_WU, K_WD, K_OUT, K_DBG, K_WS = [8 * i for i in range(10)]

def f32bits(x):
    import struct
    return struct.unpack("<I", struct.pack("<f", x))[0]

def srd(A, d, base, nbytes):
    A(f"s_mov_b32 {s(d)}, {s(base)}")
    A(f"s_and_b32 {s(d+1)}, {s(base+1)}, 0xffff")
    A(f"s_mov_b32 {s(d+2)}, {nbytes}")
    A(f"s_mov_b32 {s(d+3)}, 0x00020000")

def code_prefetch(A, tag, start_label, nkb, sp, vt, vd, lane_reg):
    A(f"s_getpc_b64 {s(sp,2)}")
    A.label(f"L_pc_{tag}")
    A(f"s_add_u32 {s(sp)}, {s(sp)}, {start_label}-L_pc_{tag}")
    A(f"s_addc_u32 {s(sp+1)}, {s(sp+1)}, 0")
    A(f"v_lshlrev_b32 {v(vt)}, 4, {v(lane_reg)}")
    for i in range(nkb):
        A(f"global_load_dwordx4 {v(vd,4)}, {v(vt)}, {s(sp,2)}")
        if i + 1 < nkb:
            A(f"v_add_u32 {v(vt)}, 1024, {v(vt)}")

def kernel_header(A, name):
    A(f".globl {name}")
    A(".p2align 8")
    A(f".type {name},@function")
    A.label(name)

def descriptor(name, nvgpr, nsgpr=96, accum=None):
    accum = accum or ((nvgpr + 3) // 4 * 4)
    return f""".amdhsa_kernel {name}
  .amdhsa_next_free_vgpr {nvgpr}
  .amdhsa_next_free_sgpr {nsgpr}
  .amdhsa_accum_offset {accum}
  .amdhsa_group_segment_fixed_size 0
  .amdhsa_kernarg_size 80
  .amdhsa_user_sgpr_count 2
  .amdhsa_user_sgpr_kernarg_segment_ptr 1
  .amdhsa_system_sgpr_workgroup_id_x 1
.end_amdhsa_kernel
"""

STAMPS = False
STAMP_BASE = 0
DEBUG = False
WS_STAMP = 0x01780000
def stamp(A, idx):
    import common
    if common.STAMPS and idx == 0:
        A("s_memrealtime s[70:71]")
    if common.STAMPS:
        A(f"s_memtime {s(80+2*idx,2)}")
def rstamp(A, idx):
    import common
    if common.STAMPS:
        A(f"s_memrealtime {s(70+2*idx,2)}")
def stamp_flush(A, n, slot_sreg, sws, vtmp):
    import common
    if not common.STAMPS: return
    A("s_waitcnt lgkmcnt(0)")
    A(f"s_lshl_b32 s79, {s(slot_sreg)}, 6")
    A(f"s_add_u32 s79, s79, {WS_STAMP + common.STAMP_BASE}")
    A(f"v_mov_b32 {v(vtmp+1)}, 0")
    for i in range(n):
        if i == 0:
            A(f"v_mov_b32 {v(vtmp)}, s80")
        else:
            A(f"s_sub_u32 s78, {s(80+2*i)}, s80")
            A(f"v_mov_b32 {v(vtmp)}, s78")
        A(f"buffer_store_dword {v(vtmp)}, {v(vtmp+1)}, {s(sws,4)}, s79 offen offset:{4*i}")
        A("s_nop 0")
    A("s_memrealtime s[72:73]")
    A("s_waitcnt lgkmcnt(0)")
    for i in range(2):
        A(f"v_mov_b32 {v(vtmp)}, {s(70+2*i)}")
        A(f"buffer_store_dword {v(vtmp)}, {v(vtmp+1)}, {s(sws,4)}, s79 offen offset:{4*(14+i)}")
        A("s_nop 0")

WS_DBG = 0x01980000
def dump_regs(A, regs, slot0, sWS, sWave, vtmp, tag):
    A(f"s_or_b32 s77, s2, {s(sWave)}")
    A(f"s_cmp_lg_u32 s77, 0")
    A(f"s_cbranch_scc1 L_dump_{tag}")
    A(f"v_and_b32 {v(vtmp)}, 63, v0")
    A(f"v_lshlrev_b32 {v(vtmp)}, 2, {v(vtmp)}")
    for i, r in enumerate(regs):
        A(f"s_mov_b32 s77, {WS_DBG + (slot0 + i) * 256}")
        A(f"buffer_store_dword {v(r)}, {v(vtmp)}, {s(sWS,4)}, s77 offen")
    A("s_waitcnt vmcnt(0)")
    A.label(f"L_dump_{tag}")


DBGT = False
def dbg_time(A, idx, wave_sreg, wave, back=0, tag=""):
    import common
    if not common.DBGT: return
    A(f"s_cmp_lg_u32 s2, 0")
    A(f"s_cbranch_scc1 L_dbgt_{tag}{idx}")
    A(f"s_cmp_lg_u32 {s(wave_sreg)}, {wave}")
    A(f"s_cbranch_scc1 L_dbgt_{tag}{idx}")
    A(f"s_load_dwordx2 s[96:97], s[0:1], {K_DBG}")
    A(f"s_memrealtime s[98:99]")
    A("s_waitcnt lgkmcnt(0)")
    if back:
        A(f"s_sub_u32 s96, s96, {512*back}")
        A(f"s_subb_u32 s97, s97, 0")
    A("v_mov_b32 v1, s98")
    A("v_mov_b32 v0, 0" if False else "s_nop 0")
    A(f"s_mov_b64 exec, 1")
    A(f"s_mov_b32 s99, {4*idx}")
    A("v_writelane_b32 v1, s98, 0")
    A(f"s_add_u32 s96, s96, s99")
    A(f"s_addc_u32 s97, s97, 0")
    A("v_mov_b32 v167, 0" if tag == "k2" else "v_mov_b32 v95, 0")
    A(f"global_store_dword {'v167' if tag == 'k2' else 'v95'}, v1, s[96:97]")
    A("s_mov_b64 exec, -1")
    A.label(f"L_dbgt_{tag}{idx}")
```

```python
from common import *
import common
import attn3
from attn import lds_arrive, lds_wait
from ffn import out_setup, OUT_SLOT

NAME = "main_kernel"
PITCH = 656
REG = 32 * PITCH
LDS_CNT = attn3.KV_BYTES
LDS_CNT_O = LDS_CNT + 4
LDS_CNT_G = LDS_CNT + 8
LDS_G = 65280
LDS_BYTES = LDS_G + 4 * REG
NV = 168

def global_wait(A, tag, sWS, sOff, target, vT, sTmp, sSpin):
    A(f"s_mov_b32 {s(sSpin)}, 0x8000")
    A(f"v_mov_b32 {v(vT+1)}, 0")
    A.label(f"L_gw_{tag}")
    A(f"buffer_load_dword {v(vT)}, {v(vT+1)}, {s(sWS,4)}, {s(sOff)} offen sc1")
    A("s_waitcnt vmcnt(0)")
    A(f"v_readfirstlane_b32 {s(sTmp)}, {v(vT)}")
    A(f"s_sub_u32 {s(sSpin)}, {s(sSpin)}, 1")
    A(f"s_cbranch_scc1 L_gg_{tag}")
    A(f"s_cmp_ge_u32 {s(sTmp)}, {target}")
    A(f"s_cbranch_scc1 L_gg_{tag}")
    A("s_sleep 2")
    A(f"s_branch L_gw_{tag}")
    A.label(f"L_gg_{tag}")

def gen(A, variant="", prefetch=None):
    sWS, sWD, sWO, sXd, sOut = 8, 12, 16, 32, 36
    sWave, sHead, sQb, sT0, sT1 = 20, 21, 22, 23, 24
    kernel_header(A, NAME)
    A("s_cmp_ge_u32 s2, 256")
    A("s_cbranch_scc1 L_main_end")
    A(f"s_load_dwordx2 s[28:29], s[0:1], {K_WS}")
    A(f"s_load_dwordx2 s[4:5], s[0:1], {K_WD}")
    A(f"s_load_dwordx2 s[6:7], s[0:1], {K_WO}")
    A(f"s_load_dwordx2 s[30:31], s[0:1], {K_X}")
    A(f"s_load_dwordx2 s[26:27], s[0:1], {K_OUT}")
    A("v_lshrrev_b32 v1, 6, v0")
    A("v_and_b32 v2, 63, v0")
    A(f"v_readfirstlane_b32 {s(sWave)}, v1")
    A(f"v_mov_b32 v3, {LDS_CNT}")
    A(f"v_mov_b32 v4, 0")
    A(f"v_mov_b32 v5, 0")
    A(f"v_mov_b32 v6, 0")
    A(f"v_mov_b32 v7, 0")
    A("ds_write_b128 v3, v[4:7]")
    A("s_waitcnt lgkmcnt(0)")
    srd(A, sWS, 28, WS_SIZE)
    if "tlb2" in variant:
        A.c("touch the pages of the buffers used late in this kernel so that address translation is ready")
        A(f"s_cmp_lg_u32 {s(sWave)}, 8")
        A("s_cbranch_scc1 L_main_tlb")
        srd(A, 40, 26, S * D * 2)
        srd(A, 44, 30, S * D * 2)
        srd(A, 48, 6, D * D * 2)
        A("v_lshlrev_b32 v3, 19, v2")
        A("buffer_load_dword v167, v3, s[40:43], 0 offen")
        A("buffer_load_dword v167, v3, s[44:47], 0 offen")
        A("buffer_load_dword v167, v3, s[48:51], 0 offen")
        A(f"buffer_load_dword v167, v3, {s(sWS,4)}, 0 offen")
        A.label("L_main_tlb")
    dbg_time(A, 4, sWave, 0, back=1, tag="k2")
    stamp(A, 0)
    if common.STAMPS:
        A(f"s_mul_i32 s69, s2, 12")
        A(f"s_add_u32 s69, s69, {s(sWave)}")
    if "cpf2" in variant:
        A.c("pull this kernel's code into L2: wave w loads KiB w and w + 12 (results unused)")
        A("s_getpc_b64 s[40:41]")
        A.label("L_main_pc")
        A(f"s_add_u32 s40, s40, {NAME}-L_main_pc")
        A("s_addc_u32 s41, s41, -1")
        A(f"s_lshl_b32 s42, {s(sWave)}, 10")
        A("v_lshlrev_b32 v8, 4, v2")
        A("v_add_u32 v8, s42, v8")
        A("global_load_dwordx4 v[164:167], v8, s[40:41]")
        A(f"s_cmp_lg_u32 {s(sWave)}, 0")
        A("s_cbranch_scc1 L_main_cpf")
        A("v_add_u32 v8, 12288, v8")
        A("global_load_dwordx4 v[164:167], v8, s[40:41]")
        A.label("L_main_cpf")
    A("s_barrier")
    A(f"s_cmp_ge_u32 {s(sWave)}, 8")
    A("s_cbranch_scc1 L_main_gemm")

    A(f"s_and_b32 {s(sT0)}, s2, 7")
    A(f"s_lshr_b32 {s(sQb)}, s2, 3")
    A(f"s_lshr_b32 {s(sHead)}, {s(sQb)}, 3")
    A(f"s_lshl_b32 {s(sT0)}, {s(sT0)}, 2")
    A(f"s_add_u32 {s(sHead)}, {s(sHead)}, {s(sT0)}")
    A(f"s_and_b32 {s(sQb)}, {s(sQb)}, 7")
    def signal(A):
        A.c("every wave drains its stores and counts itself in LDS; the last one raises the device-scope counter of the query block")
        A("s_waitcnt vmcnt(0)")
        stamp(A, 6)
        A(f"v_mov_b32 v3, {LDS_CNT_O}")
        A(f"v_mov_b32 v4, 1")
        A("s_mov_b64 exec, 1")
        A("ds_add_rtn_u32 v5, v3, v4")
        A("s_waitcnt lgkmcnt(0)")
        A(f"v_readfirstlane_b32 {s(sT0)}, v5")
        A(f"s_lshl_b32 {s(sT1)}, {s(sQb)}, 8")
        A(f"s_add_u32 {s(sT1)}, {s(sT1)}, {WS_FLAG}")
        A(f"s_cmp_lg_u32 {s(sT0)}, 7")
        A("s_cbranch_scc1 L_main_nosig")
        A("v_mov_b32 v3, 0")
        A(f"buffer_atomic_add v4, v3, {s(sWS,4)}, {s(sT1)} offen")
        A.label("L_main_nosig")
        A("s_mov_b64 exec, -1")
    def finish(A):
        dbg_time(A, 7, sWave, 0, back=1, tag="k2")
        stamp(A, 3)
        stamp_flush(A, 7, 69, sWS, 144)
        A("s_endpgm")
    attn3.role(A, sWS, sWave, sHead, sQb, 0, LDS_CNT, 2, on_stored=signal, variant=variant, done=finish)

    A.label("L_main_gemm")
    if "gprio" in variant: A("s_setprio 3")
    sW, sTb, sCq, sM, sB1, sB2, sA1, sA2, sA3, sXo = 21, 22, 25, 40, 41, 42, 43, 44, 45, 46
    srd(A, sWD, 4, F * D * 2)
    srd(A, sWO, 6, D * D * 2)
    srd(A, sXd, 30, S * D * 2)
    srd(A, sOut, 26, S * D * 2)
    A(f"s_sub_u32 {s(sW)}, {s(sWave)}, 8")
    A(f"s_and_b32 {s(sT0)}, s2, 7")
    A(f"s_lshr_b32 {s(sCq)}, s2, 3")
    A(f"s_lshr_b32 {s(sTb)}, {s(sCq)}, 2")
    A(f"s_lshl_b32 {s(sT0)}, {s(sT0)}, 3")
    A(f"s_add_u32 {s(sTb)}, {s(sTb)}, {s(sT0)}")
    A(f"s_and_b32 {s(sCq)}, {s(sCq)}, 3")
    vL, vA, vLin = 2, 3, 4
    vD = [5, 6, 7, 8, 9]; vDr = [10, 11, 12, 13, 14]
    AF = lambda i: 16 + 4 * i
    OF = lambda k: (16 + 4 * k) if k < 4 else (132 + 4 * (k - 4))
    WF = lambda j: 32 + 4 * j
    ACC = lambda j: 52 + 16 * j
    T = 156
    A(f"v_lshlrev_b32 {v(vLin)}, 4, {v(vL)}")
    out_setup(A, vL, vA, vD, vDr, T)
    A(f"s_mul_i32 {s(sM)}, {s(sW)}, {REG}")
    A(f"s_add_u32 {s(sM)}, {s(sM)}, {LDS_G}")
    A(f"v_add_u32 {v(vA)}, {s(sM)}, {v(vA)}")
    A(f"s_mul_i32 {s(sXo)}, {s(sTb)}, {32*1280}")
    A(f"s_mul_i32 {s(sT1)}, {s(sCq)}, 320")
    A(f"s_add_u32 {s(sXo)}, {s(sXo)}, {s(sT1)}")
    A(f"s_mul_i32 {s(sB1)}, {s(sW)}, {24*16*1280}")
    A(f"s_add_u32 {s(sB1)}, {s(sB1)}, {s(sT1)}")
    A(f"s_mul_i32 {s(sA1)}, {s(sTb)}, 96")
    A(f"s_mul_i32 {s(sT0)}, {s(sW)}, 24")
    A(f"s_add_u32 {s(sA1)}, {s(sA1)}, {s(sT0)}")
    A(f"s_lshl_b32 {s(sA1)}, {s(sA1)}, 10")
    A(f"s_add_u32 {s(sA1)}, {s(sA1)}, {WS_H}")

    def wdma(vd, desc, sbase, off, slot):
        for e in range(5):
            A(f"s_add_u32 m0, {s(sM)}, {slot*OUT_SLOT + e*1024}")
            A(f"s_add_u32 {s(sT0)}, {s(sbase)}, {off}")
            A(f"buffer_load_dwordx4 {v(vd[e])}, {s(desc,4)}, {s(sT0)} offen lds")
    def wreads(slot, j):
        return [f"ds_read_b64_tr_b16 {v(WF(j)+2*i,2)}, {v(vA)} offset:{slot*OUT_SLOT + i*2560 + j*64}" for i in range(2)]
    mf = lambda j, b: f"v_mfma_f32_32x32x16_bf16 {v(ACC(j),16)}, {v(WF(j),4)}, {v(b,4)}, {v(ACC(j),16)}"

    sBh, sAh, sCnt = 47, 48, 49
    A(f"s_mov_b32 {s(sBh)}, {s(sB1)}")
    A(f"s_mov_b32 {s(sAh)}, {s(sA1)}")
    def issue_h(slot):
        wdma(vD, sWD, sBh, 0, slot)
        A(f"buffer_load_dwordx4 {v(AF(slot),4)}, {v(vLin)}, {s(sWS,4)}, {s(sAh)} offen")
        A(f"s_add_u32 {s(sBh)}, {s(sBh)}, {16*1280}")
        A(f"s_add_u32 {s(sAh)}, {s(sAh)}, 1024")
    for k in range(3): issue_h(k)
    A.c("accumulators start from the residual x: wave w adds register group w of every column tile")
    for r in range(ACC(0), ACC(4) + 16): A(f"v_mov_b32 {v(r)}, 0")
    A(f"v_and_b32 {v(T)}, 31, {v(vL)}")
    A(f"v_mul_u32_u24 {v(T)}, 1280, {v(T)}")
    A(f"v_lshrrev_b32 {v(T+1)}, 5, {v(vL)}")
    A(f"v_lshl_add_u32 {v(T)}, {v(T+1)}, 3, {v(T)}")
    A(f"s_lshl_b32 {s(sT1)}, {s(sW)}, 4")
    A(f"s_add_u32 {s(sT1)}, {s(sT1)}, {s(sXo)}")
    XR = 132
    for j in range(5):
        A(f"buffer_load_dwordx2 {v(XR+2*j,2)}, {v(T)}, {s(sXd,4)}, {s(sT1)} offen offset:{64*j}")
    A("s_waitcnt vmcnt(0)")
    for w in range(4):
        if w < 3:
            A(f"s_cmp_lg_u32 {s(sW)}, {w}")
            A(f"s_cbranch_scc1 L_main_res{w}")
        for j in range(5):
            for e in range(2):
                A(f"v_lshlrev_b32 {v(ACC(j)+4*w+2*e)}, 16, {v(XR+2*j+e)}")
                A(f"v_and_b32 {v(ACC(j)+4*w+2*e+1)}, 0xffff0000, {v(XR+2*j+e)}")
        if w < 3:
            A("s_branch L_main_resdone")
            A.label(f"L_main_res{w}")
    A.label("L_main_resdone")
    for j in range(5):
        for ln in wreads(0, j): A(ln)
    A(f"s_mov_b32 {s(sCnt)}, 6")
    A.label("L_main_hloop")
    for k in range(4):
        A.c("step k+1 must have landed before its fragments are read; two younger steps may be in flight")
        A("s_waitcnt vmcnt(6)")
        for j in range(5):
            A("s_waitcnt lgkmcnt(8)")
            A(mf(j, AF(k)))
            for ln in wreads((k + 1) & 3, j): A(ln)
        issue_h((k + 3) & 3)
    A(f"s_sub_u32 {s(sCnt)}, {s(sCnt)}, 1")
    A(f"s_cmp_lg_u32 {s(sCnt)}, 0")
    A("s_cbranch_scc1 L_main_hloop")
    stamp(A, 1)

    A("s_waitcnt vmcnt(0) lgkmcnt(0)")
    A(f"s_mul_i32 {s(sT1)}, {s(sCq)}, 320")
    A(f"s_mul_i32 {s(sB1)}, {s(sW)}, {8*20*1280}")
    A(f"s_add_u32 {s(sB1)}, {s(sB1)}, {s(sT1)}")
    A(f"s_add_u32 {s(sB2)}, {s(sB1)}, {16*1280}")
    A(f"s_lshl_b32 {s(sA1)}, {s(sTb)}, 5")
    A(f"s_lshl_b32 {s(sT0)}, {s(sW)}, 3")
    A(f"s_add_u32 {s(sT0)}, {s(sT0)}, {s(sA1)}")
    A(f"s_lshl_b32 {s(sA2)}, {s(sT0)}, 10")
    A(f"s_add_u32 {s(sA2)}, {s(sA2)}, {WS_O}")
    A(f"s_lshl_b32 {s(sA3)}, {s(sT0)}, 8")
    A(f"s_add_u32 {s(sA3)}, {s(sA3)}, {WS_OR}")
    A.c("leftover steps: lane (t, h) takes units 2h and 2h+1 of four heads")
    vRem = T + 2
    A(f"v_and_b32 {v(vRem)}, 31, {v(vL)}")
    A(f"v_lshlrev_b32 {v(vRem)}, 3, {v(vRem)}")
    A(f"v_lshrrev_b32 {v(T+3)}, 5, {v(vL)}")
    A(f"v_lshl_add_u32 {v(vRem)}, {v(T+3)}, 9, {v(vRem)}")
    osteps = [(vD, sB1, k * 20 * 1280, sA2, k * 1024) for k in range(8)] + [(vDr, sB2, k * 80 * 1280, sA3, k * 1024) for k in range(2)]
    for k in range(4): wdma(osteps[k][0], sWO, osteps[k][1], osteps[k][2], k)
    A.c("touch the remaining Wo rows of this wave so that they are L2 hits later")
    for k in range(4, 10):
        for e in range(5):
            A(f"s_add_u32 {s(sT0)}, {s(osteps[k][1])}, {osteps[k][2]}")
            A(f"buffer_load_dwordx4 {v(132,4)}, {v(osteps[k][0][e])}, {s(sWO,4)}, {s(sT0)} offen")
    A("s_waitcnt vmcnt(0)")
    for j in range(5):
        for ln in wreads(0, j): A(ln)
    A(f"s_lshr_b32 {s(sT1)}, {s(sTb)}, 3")
    A(f"s_lshl_b32 {s(sT1)}, {s(sT1)}, 8")
    A(f"s_add_u32 {s(sT1)}, {s(sT1)}, {WS_FLAG}")
    global_wait(A, "o", sWS, sT1, 32, T, 50, 78)
    stamp(A, 2)
    dbg_time(A, 8, sWave, 8, back=1, tag="k2")
    for k in range(8):
        A(f"s_add_u32 {s(sT0)}, {s(sA2)}, {k*1024}")
        A(f"buffer_load_dwordx4 {v(OF(k),4)}, {v(vLin)}, {s(sWS,4)}, {s(sT0)} offen sc1")
    for k in range(2):
        for i in range(2):
            A(f"buffer_load_dwordx2 {v(OF(8+k)+2*i,2)}, {v(vRem)}, {s(sWS,4)}, {s(sA3)} offen offset:{k*1024 + i*256} sc1")
    waits = [11, 15, 19, 10, 10, 10, 10, 5, 0, None]
    for k in range(10):
        if waits[k] is not None: A(f"s_waitcnt vmcnt({waits[k]})")
        for j in range(5):
            A(f"s_waitcnt lgkmcnt({8 if k < 9 else 2*(4-j)})")
            A(mf(j, OF(k)))
            if k < 9:
                for ln in wreads((k + 1) & 3, j): A(ln)
        if k + 4 < 10:
            wdma(osteps[k+4][0], sWO, osteps[k+4][1], osteps[k+4][2], k & 3)
    stamp(A, 3)
    A(f"v_and_b32 {v(T)}, 31, {v(vL)}")
    A(f"v_mul_u32_u24 {v(T)}, {PITCH}, {v(T)}")
    A(f"v_lshrrev_b32 {v(T+1)}, 5, {v(vL)}")
    A(f"v_lshl_add_u32 {v(T)}, {v(T+1)}, 4, {v(T)}")
    A(f"v_add_u32 {v(T)}, {s(sM)}, {v(T)}")
    A(f"v_mov_b32 {v(T+2)}, {LDS_CNT_G}")
    A(f"v_mov_b32 {v(T+3)}, 1")
    vTid = T + 4
    A(f"v_subrev_u32 {v(vTid)}, 512, v0")
    vXo = [T + 5, T + 6, T + 7]; vRo = [T + 8, T + 9, T + 10]
    for i in range(3):
        A(f"v_add_u32 v16, {256*i}, {v(vTid)}")
        A(f"v_mul_u32_u24 v17, 52429, v16")
        A(f"v_lshrrev_b32 v17, 20, v17")
        A(f"v_mul_u32_u24 v18, 20, v17")
        A(f"v_sub_u32 v18, v16, v18")
        A(f"v_mul_u32_u24 v19, 1280, v17")
        A(f"v_lshl_add_u32 {v(vXo[i])}, v18, 4, v19")
        A(f"v_mul_u32_u24 v19, {PITCH}, v17")
        A(f"v_lshl_add_u32 v19, v18, 5, v19")
        A(f"v_add_u32 {v(vRo[i])}, {LDS_G}, v19")
    for j in range(5):
        for g in range(4):
            A(f"ds_write_b128 {v(T)}, {v(ACC(j)+4*g,4)} offset:{j*128 + g*32}")
    A("s_waitcnt lgkmcnt(0)")
    lds_arrive(A, T + 2, T + 3)
    A(f"s_mov_b32 {s(sT1)}, 4")
    lds_wait(A, "gred", T + 2, T + 11, sT0, sT1)
    P0 = 16
    for i in range(3):
        if i == 2:
            A(f"v_cmp_gt_u32 vcc, 128, {v(vTid)}")
            A("s_nop 0")
            A("s_and_saveexec_b64 s[50:51], vcc")
            A("s_cbranch_execz L_main_gdone")
        for w in range(4):
            for hh in range(2):
                A(f"ds_read_b128 {v(P0+8*w+4*hh,4)}, {v(vRo[i])} offset:{w*REG + 16*hh}")
        A("s_waitcnt lgkmcnt(0)")
        for e in range(8):
            A(f"v_add_f32 {v(P0+e)}, {v(P0+e)}, {v(P0+8+e)}")
            A(f"v_add_f32 {v(P0+16+e)}, {v(P0+16+e)}, {v(P0+24+e)}")
        for e in range(8):
            A(f"v_add_f32 {v(P0+e)}, {v(P0+e)}, {v(P0+16+e)}")
        for e in range(4):
            A(f"v_cvt_pk_bf16_f32 {v(P0+32+e)}, {v(P0+2*e)}, {v(P0+2*e+1)}")
        A(f"buffer_store_dwordx4 {v(P0+32,4)}, {v(vXo[i])}, {s(sOut,4)}, {s(sXo)} offen")
        A("s_nop 1")
    A.label("L_main_gdone")
    A("s_mov_b64 exec, -1")
    dbg_time(A, 9, sWave, 8, back=1, tag="k2")
    stamp(A, 4)
    stamp_flush(A, 5, 69, sWS, 16)
    A.label("L_main_end")
    A("s_endpgm")
    return NAME, 768, LDS_BYTES, descriptor(NAME, NV, nsgpr=102 if common.DBGT else 96)

def zero_flags(A, sWS, sLw, sRb, sCt, vL):
    A(f"s_load_dwordx2 s[4:5], s[0:1], {K_WD}")
    A(f"s_load_dwordx2 s[6:7], s[0:1], {K_WO}")
    A(f"s_or_b32 s31, s2, {s(sLw)}")
    A("s_cmp_lg_u32 s31, 0")
    A("s_cbranch_scc1 L_k1_noflag")
    A(f"v_lshlrev_b32 v10, 8, {v(vL)}")
    A("v_mov_b32 v11, 0")
    A(f"s_mov_b32 s31, {WS_FLAG}")
    A(f"buffer_store_dword v11, v10, {s(sWS,4)}, s31 offen")
    A.label("L_k1_noflag")
    if PREFETCH_W:
        A("s_waitcnt lgkmcnt(0)")
        srd(A, 8, 4, F * D * 2)
        srd(A, 12, 6, D * D * 2)
        A.c("1024 helper waves: two KiB of Wd each (1920 KiB), one KiB of Wo for the first 800")
        A(f"s_lshl_b32 s31, s2, 2")
        A(f"s_add_u32 s31, s31, {s(sLw)}")
        A(f"v_lshlrev_b32 v10, 4, {v(vL)}")
        A(f"s_lshl_b32 s32, s31, 11")
        A(f"buffer_load_dwordx4 v[16:19], v10, s[8:11], s32 offen")
        A(f"buffer_load_dwordx4 v[20:23], v10, s[8:11], s32 offen offset:1024")
        A(f"s_lshl_b32 s32, s31, 10")
        A(f"buffer_load_dwordx4 v[24:27], v10, s[12:15], s32 offen")
    if PREFETCH_CODE:
        A(f"s_cmp_ge_u32 s2, 8")
        A("s_cbranch_scc1 L_k1_nocode")
        code_prefetch(A, "k2code", NAME, 13, 46, 12, 28, vL)
        A.label("L_k1_nocode")
PREFETCH_W = True
PREFETCH_CODE = False
```

```python
from common import *
import common

NAME = "proj_kernel"
XS, WSZ = 16384, 20480
NXS, NWS = 3, 5
LDS_X = 0
LDS_W = NXS * XS
LDS_STATS = LDS_W + NWS * WSZ
LDS_CS = LDS_STATS + 1024
LDS_BYTES = LDS_CS + 1280
NV = 256
IMG = {0: dict(q=(0, 128, 1), g=(4096, 256, 2), u=(12288, 256, 2)),
       1: dict(q=(0, 384, 3), g=(12288, 128, 1), u=(16384, 128, 1))}
SLOTS = {0: [("q", 0, 1), ("g", 0, 2), ("u", 0, 2), ("g", 1, 2), ("u", 1, 2)],
         1: [("q", 0, 3), ("q", 1, 3), ("q", 2, 3), ("g", 0, 1), ("u", 0, 1)]}

def frag_addrs(A, typ, dst, vL, sCol, vT, extra_rows_s=None):
    vR, vRow, vIn, vB = vT, vT + 1, vT + 2, vT + 3
    A(f"v_bfe_u32 {v(vR)}, {v(vL)}, 2, 2")
    A(f"v_lshrrev_b32 {v(vRow)}, 5, {v(vL)}")
    A(f"v_lshl_add_u32 {v(vRow)}, {v(vRow)}, 3, {v(vR)}")
    if extra_rows_s is not None: A(f"v_add_u32 {v(vRow)}, {s(extra_rows_s)}, {v(vRow)}")
    A(f"v_bfe_u32 {v(vIn)}, {v(vL)}, 4, 1")
    A(f"v_lshlrev_b32 {v(vIn)}, 5, {v(vIn)}")
    A(f"v_and_b32 {v(vB)}, 3, {v(vL)}")
    A(f"v_lshl_add_u32 {v(vIn)}, {v(vB)}, 3, {v(vIn)}")
    for j, (kind, b0, step) in enumerate(SLOTS[typ]):
        off, pitch, n = IMG[typ][kind]
        A(f"s_mul_i32 s64, {s(sCol)}, {step}")
        A(f"s_add_u32 s64, s64, {b0}")
        if n == 2:
            A(f"v_xor_b32 {v(vB)}, s64, {v(vR)}")
        else:
            A(f"v_lshrrev_b32 {v(vB)}, 1, {v(vR)}")
            A(f"v_xor_b32 {v(vB)}, s64, {v(vB)}")
        A(f"v_lshl_add_u32 {v(vB)}, {v(vB)}, 6, {v(vIn)}")
        A(f"v_mul_u32_u24 {v(dst[j])}, {pitch}, {v(vRow)}")
        A(f"v_add_u32 {v(dst[j])}, {v(dst[j])}, {v(vB)}")
        A(f"v_add_u32 {v(dst[j])}, {LDS_W + off}, {v(dst[j])}")

def gen(A, prefetch=None, variant="", extra_tail=None):
    SC = ' sc1' if 'plainst' not in variant else ''
    sX, sW, sG, sU, sWS = 8, 12, 16, 20, 24
    sWave, sRb, sCt, sT0, sT1, sT2, sT3, sI = 28, 29, 30, 31, 32, 33, 34, 35
    kernel_header(A, NAME)
    A("s_cmp_ge_u32 s2, 256")
    A("s_cbranch_scc1 L_k1_end")
    A(f"s_load_dwordx4 s[4:7], s[0:1], {K_X}")
    A(f"s_load_dwordx4 s[36:39], s[0:1], {K_WG}")
    A(f"s_load_dwordx2 s[40:41], s[0:1], {K_WS}")
    A("v_lshrrev_b32 v1, 6, v0")
    A("v_and_b32 v2, 63, v0")
    A(f"v_readfirstlane_b32 {s(sWave)}, v1")
    A.c("workgroup -> (row block, column tile): each XCD covers 8 row blocks x 4 column tiles")
    A(f"s_and_b32 {s(sT0)}, s2, 7")
    A(f"s_lshr_b32 {s(sT1)}, s2, 3")
    A(f"s_and_b32 {s(sRb)}, {s(sT0)}, 1")
    A(f"s_lshl_b32 {s(sRb)}, {s(sRb)}, 3")
    A(f"s_and_b32 {s(sT2)}, {s(sT1)}, 7")
    A(f"s_add_u32 {s(sRb)}, {s(sRb)}, {s(sT2)}")
    A(f"s_lshr_b32 {s(sCt)}, {s(sT0)}, 1")
    A(f"s_lshl_b32 {s(sCt)}, {s(sCt)}, 2")
    A(f"s_lshr_b32 {s(sT2)}, {s(sT1)}, 3")
    A(f"s_add_u32 {s(sCt)}, {s(sCt)}, {s(sT2)}")
    A(f"s_and_b32 {s(sI)}, {s(sCt)}, 7")
    A("s_waitcnt lgkmcnt(0)")
    srd(A, sX, 4, S * D * 2)
    srd(A, sW, 6, D * 3 * D * 2)
    srd(A, sG, 36, D * F * 2)
    srd(A, sU, 38, D * F * 2)
    srd(A, sWS, 40, WS_SIZE)
    vL = 2
    dbg_time(A, 0, sWave, 0, tag="k1")
    stamp(A, 0)
    if "tlb" in variant:
        A.c("touch every page of the buffers early so that address translation misses overlap")
        A(f"v_lshlrev_b32 v3, 19, {v(vL)}")
        for k, d in enumerate((sX, sW, sG, sU, sWS)):
            A(f"s_cmp_lg_u32 {s(sWave)}, {k}")
            A(f"s_cbranch_scc1 L_k1_tlb{k}")
            A(f"buffer_load_dword v31, v3, {s(d,4)}, 0 offen")
            A.label(f"L_k1_tlb{k}")
    if common.STAMPS:
        A(f"s_lshl_b32 s69, s2, 3")
        A(f"s_add_u32 s69, s69, {s(sWave)}")
    A(f"s_cmp_ge_u32 {s(sWave)}, 4")
    A("s_cbranch_scc1 L_k1_loader")

    vT, vHf = 3, 4
    vXa = [[5 + 4 * sg + k for k in range(4)] for sg in range(2)]
    vWa = [13, 14, 15, 16, 17]
    vSum, vSq = [18, 19], [20, 21]
    vU = [22, 23, 24, 25]
    vTmp = 26
    FX = lambda p, sg: 32 + 28 * p + 4 * sg
    FW = lambda p, j: 32 + 28 * p + 8 + 4 * j
    ACC = lambda j, sg: 96 + 32 * j + 16 * sg
    sWm, sWn, sTT0, sTT1 = 42, 43, 44, 45
    A(f"s_lshr_b32 {s(sWm)}, {s(sWave)}, 1")
    A(f"s_and_b32 {s(sWn)}, {s(sWave)}, 1")
    A(f"s_lshl_b32 {s(sT0)}, {s(sWm)}, 1")
    A(f"s_add_u32 {s(sTT0)}, {s(sT0)}, {s(sWn)}")
    A(f"s_xor_b32 {s(sTT1)}, {s(sTT0)}, 1")
    A(f"v_and_b32 {v(vT)}, 31, {v(vL)}")
    A(f"v_lshrrev_b32 {v(vHf)}, 5, {v(vL)}")
    A.c("x fragment addresses: t*128 + 16*((2s+h) ^ ((t>>1)&7)) + tile*4096")
    A(f"v_bfe_u32 {v(vTmp)}, {v(vT)}, 1, 3")
    A(f"v_xor_b32 {v(vTmp)}, {v(vTmp)}, {v(vHf)}")
    A(f"v_lshlrev_b32 {v(vTmp)}, 4, {v(vTmp)}")
    A(f"v_lshl_add_u32 {v(vTmp)}, {v(vT)}, 7, {v(vTmp)}")
    for sg, st in ((0, sTT0), (1, sTT1)):
        A(f"s_lshl_b32 {s(sT0)}, {s(st)}, 12")
        A(f"v_add_u32 {v(vXa[sg][0])}, {s(sT0)}, {v(vTmp)}")
        for k in range(1, 4):
            A(f"v_xor_b32 {v(vXa[sg][k])}, {32*k}, {v(vXa[sg][0])}")
    if "nopf" not in variant:
        A.c("every compute wave touches its share of x and of the three weight matrices, so that later copies find them on chip")
        A(f"s_lshl_b32 {s(sT0)}, s2, 2")
        A(f"s_add_u32 {s(sT0)}, {s(sT0)}, {s(sWave)}")
        A(f"v_lshlrev_b32 v25, 4, {v(vL)}")
        for d, nb in ((sW, D*3*D*2), (sG, D*F*2), (sU, D*F*2), (sX, S*D*2)):
            per = -(-nb // (1024 * 1024))
            A(f"s_mul_i32 {s(sT1)}, {s(sT0)}, {per*1024}")
            for i in range(per):
                A(f"buffer_load_dwordx4 v[88:91], v25, {s(d,4)}, {s(sT1)} offen offset:{i*1024}")
    for r in vSum + vSq: A(f"v_mov_b32 {v(r)}, 0")
    if "sdot" in variant: A(f"v_mov_b32 {v(vU[0])}, 0x3f803f80")
    for r in range(96, 256): A(f"v_mov_b32 {v(r)}, 0")

    def mainloop(typ):
        pitch = [IMG[typ][k][1] for (k, _, _) in SLOTS[typ]]
        tag = f"L_k1_loop{typ}"
        sXs, sWsl, sCnt, sDw, sDx = 50, 51, 52, 53, 63
        frag_addrs(A, typ, vWa, vL, sWn, vTmp)
        if prefetch: prefetch(A, f"k1_{typ}", tag, typ)
        def reads(p, sub):
            out = [f"ds_read_b128 {v(FX(p,sg),4)}, {v(vXa[sg][sub])}" for sg in range(2)]
            for j in range(5):
                for i in range(2):
                    out.append(f"ds_read_b64_tr_b16 {v(FW(p,j)+2*i,2)}, {v(vWa[j])} offset:{(16*(sub&1)+4*i)*pitch[j]}")
            return out
        if "prio" in variant: A("s_setprio 2")
        A("s_barrier")
        stamp(A, 2)
        dbg_time(A, 1, sWave, 0, tag=f"k1t{typ}")
        for ln in reads(0, 0): A(ln)
        A(f"s_mov_b32 {s(sXs)}, 0")
        A(f"s_mov_b32 {s(sWsl)}, 0")
        A(f"s_mov_b32 {s(sCnt)}, 10")
        A(".p2align 3")
        A.label(tag)
        if "trips" in variant:
            A("s_memtime s[66:67]")
            A("s_waitcnt lgkmcnt(0)")
            A("s_sub_u32 s66, s66, s80")
            A("v_mov_b32 v26, s66")
            A(f"s_lshl_b32 s67, s69, 6")
            A(f"s_sub_u32 s66, 10, {s(sCnt)}")
            A("s_lshl_b32 s66, s66, 2")
            A("s_add_u32 s67, s67, s66")
            A(f"s_add_u32 s67, s67, {WS_STAMP + 0x40000}")
            A("v_mov_b32 v27, 0")
            A(f"buffer_store_dword v26, v27, {s(sWS,4)}, s67 offen")
        for n in range(4):
            p = n & 1; nn = (n + 1) & 3
            if n & 1: A("s_barrier")
            mf = lambda j, sg: f"v_mfma_f32_32x32x16_bf16 {v(ACC(j,sg),16)}, {v(FW(p,j),4)}, {v(FX(p,sg),4)}, {v(ACC(j,sg),16)}"
            st = []
            for k in range(4):
                r = FX(p, 0) + k; lo, hi = vU[2 * (k & 1)], vU[2 * (k & 1) + 1]
                st += [f"v_lshlrev_b32 {v(lo)}, 16, {v(r)}", f"v_and_b32 {v(hi)}, 0xffff0000, {v(r)}",
                       f"v_add_f32 {v(vSum[0])}, {v(vSum[0])}, {v(lo)}", f"v_add_f32 {v(vSum[1])}, {v(vSum[1])}, {v(hi)}",
                       f"v_fmac_f32 {v(vSq[0])}, {v(lo)}, {v(lo)}", f"v_fmac_f32 {v(vSq[1])}, {v(hi)}, {v(hi)}"]
            if "sdot" in variant:
                st = []
                for k in range(4):
                    st += [f"v_dot2c_f32_bf16 {v(vSum[0])}, {v(FX(p,0)+k)}, {v(vU[0])}", f"v_dot2c_f32_bf16 {v(vSq[0])}, {v(FX(p,0)+k)}, {v(FX(p,0)+k)}"]
            rd = reads(1 - p, nn)
            gap = {m: [] for m in range(10)}
            updx = lambda k: [f"v_add_u32 {v(vXa[sg][k])}, {s(sDx)}, {v(vXa[sg][k])}" for sg in range(2)]
            updw = lambda j: [f"v_add_u32 {v(vWa[j])}, {s(sDw)}, {v(vWa[j])}"]
            if n == 3: gap[0] += updx(0)
            gap[0] += rd[0:2]
            for j in range(5):
                m = 1 + 2 * j
                if n & 1: gap[m] += updw(j)
                gap[m] += rd[2 + 2 * j: 4 + 2 * j]
            tail = []
            if n == 3:
                for k in range(1, 4): tail += updx(k)
            if n & 1 == 0:
                tail += [f"s_add_u32 {s(sT0)}, {s(sWsl)}, {WSZ}", f"s_cmp_eq_u32 {s(sT0)}, {NWS*WSZ}", f"s_cselect_b32 {s(sT0)}, 0, {s(sT0)}",
                         f"s_sub_u32 {s(sDw)}, {s(sT0)}, {s(sWsl)}", f"s_mov_b32 {s(sWsl)}, {s(sT0)}"]
                if n == 2:
                    tail += [f"s_add_u32 {s(sT0)}, {s(sXs)}, {XS}", f"s_cmp_eq_u32 {s(sT0)}, {NXS*XS}", f"s_cselect_b32 {s(sT0)}, 0, {s(sT0)}",
                             f"s_sub_u32 {s(sDx)}, {s(sT0)}, {s(sXs)}", f"s_mov_b32 {s(sXs)}, {s(sT0)}"]
            fill = st + tail
            quota = {m: 0 for m in range(10)}
            room = {m: max(0, 5 - len(gap[m])) for m in range(10)}
            left = len(fill)
            while left:
                progressed = False
                for m in range(10):
                    if left and quota[m] < room[m]:
                        quota[m] += 1; left -= 1; progressed = True
                if not progressed:
                    for m in range(10):
                        if left: quota[m] += 1; left -= 1
            fi = 0
            for m, (j, sg) in enumerate([(j, sg) for j in range(5) for sg in range(2)]):
                if sg == 0: A(f"s_waitcnt lgkmcnt({8 if j == 0 else 10})")
                A(mf(j, sg))
                for ln in gap[m]: A(ln)
                for ln in fill[fi:fi + quota[m]]: A(ln)
                fi += quota[m]
        A(f"s_sub_u32 {s(sCnt)}, {s(sCnt)}, 1")
        A(f"s_cmp_lg_u32 {s(sCnt)}, 0")
        A(f"s_cbranch_scc1 {tag}")

    A(f"s_cmp_ge_u32 {s(sCt)}, 8")
    A("s_cbranch_scc1 L_k1_main1")
    mainloop(0)
    A("s_branch L_k1_post")
    A.label("L_k1_main1")
    mainloop(1)
    A.label("L_k1_post")
    dbg_time(A, 2, sWave, 0, tag="k1")
    stamp(A, 3)

    t0, t1 = vTmp, vTmp + 1
    A("s_waitcnt vmcnt(0) lgkmcnt(0)")
    A("s_nop 2")
    A(f"v_add_f32 {v(vSum[0])}, {v(vSum[0])}, {v(vSum[1])}")
    A(f"v_add_f32 {v(vSq[0])}, {v(vSq[0])}, {v(vSq[1])}")
    A(f"s_lshl_b32 {s(sT0)}, {s(sTT0)}, 8")
    A(f"s_add_u32 {s(sT0)}, {s(sT0)}, {LDS_STATS}")
    A(f"v_mov_b32 v32, {v(vSum[0])}")
    A(f"v_mov_b32 v33, {v(vSq[0])}")
    A(f"v_lshl_add_u32 {v(t0)}, {v(vT)}, 3, {s(sT0)}")
    A("s_nop 0")
    A(f"v_permlane32_swap_b32 {v(vSum[0])}, v32")
    A(f"v_permlane32_swap_b32 {v(vSq[0])}, v33")
    A("s_nop 0")
    A(f"v_add_f32 {v(vSum[0])}, {v(vSum[0])}, v32")
    A(f"v_add_f32 {v(vSq[0])}, {v(vSq[0])}, v33")
    vMu, vRs = 40, 41
    A(f"v_mul_f32 {v(vMu)}, {f32bits(1.0/D):#x}, {v(vSum[0])}")
    A(f"v_mul_f32 {v(t1)}, {f32bits(1.0/D):#x}, {v(vSq[0])}")
    A(f"v_fma_f32 {v(t1)}, -{v(vMu)}, {v(vMu)}, {v(t1)}")
    A(f"v_max_f32 {v(t1)}, 0, {v(t1)}")
    A(f"v_add_f32 {v(t1)}, {f32bits(1e-5):#x}, {v(t1)}")
    A(f"v_rsq_f32 {v(vRs)}, {v(t1)}")
    A("s_nop 0")
    A(f"ds_write_b64 {v(t0)}, {v(vMu,2)}")
    A("s_waitcnt lgkmcnt(0)")
    A("s_barrier")
    stamp(A, 4)
    ST = [6, 8]
    for sg, st in ((0, sTT0), (1, sTT1)):
        A(f"s_lshl_b32 {s(sT0)}, {s(st)}, 8")
        A(f"s_add_u32 {s(sT0)}, {s(sT0)}, {LDS_STATS}")
        A(f"v_lshl_add_u32 {v(t0)}, {v(vT)}, 3, {s(sT0)}")
        A(f"ds_read_b64 {v(ST[sg],2)}, {v(t0)}")
    vCsA = 5
    A(f"s_mul_i32 {s(sT0)}, {s(sWn)}, 640")
    A(f"s_add_u32 {s(sT0)}, {s(sT0)}, {LDS_CS}")
    A(f"v_lshl_add_u32 {v(vCsA)}, {v(vHf)}, 4, {s(sT0)}")
    NMU = [10, 12]; RF = [14, 16]; TM = 18; PK = 26
    CS = lambda u, g: 32 + 16 * u + 4 * g
    def load_cs(j, u):
        for g in range(4): A(f"ds_read_b128 {v(CS(u,g),4)}, {v(vCsA)} offset:{128*j + 32*g}")
    vQo, vLin = 30, 31
    A(f"v_lshlrev_b32 {v(vQo)}, 3, {v(vT)}")
    A(f"v_lshl_add_u32 {v(vQo)}, {v(vHf)}, 14, {v(vQo)}")
    A(f"v_lshlrev_b32 {v(vLin)}, 4, {v(vL)}")
    sTok = [54, 55]; sHb = [56, 57]; sU0, sFac = 58, 59
    for sg, st in ((0, sTT0), (1, sTT1)):
        A(f"s_lshl_b32 {s(sT0)}, {s(sRb)}, 2")
        A(f"s_add_u32 {s(sT0)}, {s(sT0)}, {s(st)}")
        A(f"s_lshl_b32 {s(sTok[sg])}, {s(sT0)}, 8")
        A(f"s_add_u32 {s(sTok[sg])}, {s(sTok[sg])}, {WS_QKV}")
        A(f"s_mul_i32 {s(sHb[sg])}, {s(sT0)}, {96*1024}")
        A(f"s_add_u32 {s(sHb[sg])}, {s(sHb[sg])}, {WS_H}")
    A("s_waitcnt lgkmcnt(0)")
    for sg in range(2):
        A(f"v_sub_f32 {v(NMU[sg])}, 0, {v(ST[sg])}")
        A(f"v_mov_b32 {v(RF[sg])}, {v(ST[sg]+1)}")
        A(f"v_mul_f32 {v(RF[sg]+1)}, {f32bits(-LOG2E):#x}, {v(ST[sg]+1)}")

    def q_tile(j, u):
        A(f"s_cmp_lt_u32 {s(sU0)}, 160")
        A(f"s_cselect_b32 {s(sFac)}, {f32bits(QSCALE):#x}, 1.0")
        A(f"s_lshl_b32 {s(sT1)}, {s(sU0)}, 14")
        QF = [20, 22]
        for sg in range(2): A(f"v_mul_f32 {v(QF[sg])}, {s(sFac)}, {v(ST[sg]+1)}")
        for g in range(4):
            for sg in range(2):
                acc = ACC(j, sg) + 4 * g
                for e in range(2):
                    A(f"v_pk_fma_f32 {v(acc+2*e,2)}, {v(CS(u,g)+2*e,2)}, {v(NMU[sg],2)}, {v(acc+2*e,2)} op_sel_hi:[1,0,1]")
            for sg in range(2):
                acc = ACC(j, sg) + 4 * g
                for e in range(2):
                    A(f"v_pk_mul_f32 {v(acc+2*e,2)}, {v(acc+2*e,2)}, {v(QF[sg],2)} op_sel_hi:[1,0]")
            for sg in range(2):
                acc = ACC(j, sg) + 4 * g
                for e in range(2):
                    A(f"v_cvt_pk_bf16_f32 {v(acc+e)}, {v(acc+2*e)}, {v(acc+2*e+1)}")
            for sg in range(2):
                A(f"s_add_u32 {s(sT0)}, {s(sT1)}, {s(sTok[sg])}")
                A(f"s_add_u32 {s(sT0)}, {s(sT0)}, {2*g*PLANE}")
                A(f"buffer_store_dwordx2 {v(ACC(j,sg)+4*g,2)}, {v(vQo)}, {s(sWS,4)}, {s(sT0)} offen{SC}")

    def gu_pair(jg, ju, step_s):
        for sg in range(2):
            g0, u0 = ACC(jg, sg), ACC(ju, sg)
            for g in range(4):
                for e in range(2):
                    A(f"v_pk_fma_f32 {v(g0+4*g+2*e,2)}, {v(CS(0,g)+2*e,2)}, {v(NMU[sg],2)}, {v(g0+4*g+2*e,2)} op_sel_hi:[1,0,1]")
                    A(f"v_pk_fma_f32 {v(u0+4*g+2*e,2)}, {v(CS(1,g)+2*e,2)}, {v(NMU[sg],2)}, {v(u0+4*g+2*e,2)} op_sel_hi:[1,0,1]")
            for half in range(2):
                o = 8 * half
                for e in range(4):
                    A(f"v_pk_mul_f32 {v(TM+2*e,2)}, {v(g0+o+2*e,2)}, {v(RF[sg],2)} op_sel:[0,1] op_sel_hi:[1,1]")
                for e in range(4):
                    A(f"v_pk_mul_f32 {v(g0+o+2*e,2)}, {v(g0+o+2*e,2)}, {v(RF[sg],2)} op_sel_hi:[1,0]")
                for e in range(8): A(f"v_exp_f32 {v(TM+e)}, {v(TM+e)}")
                for e in range(4):
                    A(f"v_pk_mul_f32 {v(u0+o+2*e,2)}, {v(u0+o+2*e,2)}, {v(RF[sg],2)} op_sel_hi:[1,0]")
                for e in range(4):
                    A(f"v_pk_add_f32 {v(TM+2*e,2)}, {v(TM+2*e,2)}, 1.0 op_sel_hi:[1,0]")
                for e in range(4):
                    A(f"v_pk_mul_f32 {v(u0+o+2*e,2)}, {v(u0+o+2*e,2)}, {v(g0+o+2*e,2)}")
                for e in range(8): A(f"v_rcp_f32 {v(TM+e)}, {v(TM+e)}")
                A(f"s_add_u32 {s(sT0)}, {s(step_s)}, {half}")
                A(f"s_lshl_b32 {s(sT0)}, {s(sT0)}, 10")
                A(f"s_add_u32 {s(sT0)}, {s(sT0)}, {s(sHb[sg])}")
                for e in range(4):
                    A(f"v_pk_mul_f32 {v(u0+o+2*e,2)}, {v(u0+o+2*e,2)}, {v(TM+2*e,2)}")
                for e in range(4):
                    A(f"v_cvt_pk_bf16_f32 {v(g0+o+e)}, {v(u0+o+2*e)}, {v(u0+o+2*e+1)}")
                A(f"buffer_store_dwordx4 {v(g0+o,4)}, {v(vLin)}, {s(sWS,4)}, {s(sT0)} offen{SC}")

    sStep = 60
    A(f"s_cmp_ge_u32 {s(sCt)}, 8")
    A("s_cbranch_scc1 L_k1_epi1")
    A.c("type A: unit 16i + 8wn, gate tiles at step 8i + 4wn + 2e")
    load_cs(0, 2)
    load_cs(1, 0); load_cs(2, 1)
    A(f"s_lshl_b32 {s(sU0)}, {s(sI)}, 4")
    A(f"s_lshl_b32 {s(sT0)}, {s(sWn)}, 3")
    A(f"s_add_u32 {s(sU0)}, {s(sU0)}, {s(sT0)}")
    A(f"s_lshr_b32 {s(sStep)}, {s(sU0)}, 1")
    A("s_waitcnt lgkmcnt(8)")
    q_tile(0, 2)
    A("s_waitcnt lgkmcnt(0)")
    gu_pair(1, 2, sStep)
    load_cs(3, 0); load_cs(4, 1)
    A(f"s_add_u32 {s(sStep)}, {s(sStep)}, 2")
    A("s_waitcnt lgkmcnt(0)")
    gu_pair(3, 4, sStep)
    A("s_branch L_k1_done")
    A.label("L_k1_epi1")
    A.c("type B: units 128 + 48i + 24wn + 8q (only below 480), gate tile at step 64 + 4i + 2wn")
    load_cs(0, 2)
    load_cs(3, 0); load_cs(4, 1)
    A(f"s_mul_i32 {s(sU0)}, {s(sI)}, 48")
    A(f"s_mul_i32 {s(sT0)}, {s(sWn)}, 24")
    A(f"s_add_u32 {s(sU0)}, {s(sU0)}, {s(sT0)}")
    A(f"s_add_u32 {s(sU0)}, {s(sU0)}, 128")
    A(f"s_lshl_b32 {s(sStep)}, {s(sI)}, 2")
    A(f"s_lshl_b32 {s(sT0)}, {s(sWn)}, 1")
    A(f"s_add_u32 {s(sStep)}, {s(sStep)}, {s(sT0)}")
    A(f"s_add_u32 {s(sStep)}, {s(sStep)}, 64")
    A("s_waitcnt lgkmcnt(0)")
    gu_pair(3, 4, sStep)
    for q in range(3):
        A(f"s_cmp_ge_u32 {s(sU0)}, 480")
        A("s_cbranch_scc1 L_k1_done")
        if q:
            load_cs(q, 2)
            A("s_waitcnt lgkmcnt(0)")
        q_tile(q, 2)
        A(f"s_add_u32 {s(sU0)}, {s(sU0)}, 8")
    A.label("L_k1_done")
    dbg_time(A, 3, sWave, 0, tag="k1")
    stamp(A, 5)
    if common.STAMPS: A("s_waitcnt vmcnt(0)")
    stamp(A, 6)
    stamp_flush(A, 7, 69, sWS, 22)
    A("s_endpgm")

    A.label("L_k1_loader")
    sLw, sXo, sWo, sGo, sMx, sXsl, sWsl2, sCsl, sPair, sXk, sWk, sSp, sHalf = 42, 43, 44, 45, 46, 47, 48, 49, 50, 51, 52, 53, 54
    vXe, vXo = 3, 4
    vQ = [5, 6, 7]; vG = 8
    A(f"s_sub_u32 {s(sLw)}, {s(sWave)}, 4")
    if "hprio" in variant: A("s_setprio 3")
    A.c("x pieces: 8 rows x 128 B, granule p of row t holds source granule p ^ ((t>>1)&7)")
    A(f"v_lshrrev_b32 v10, 3, {v(vL)}")
    A(f"v_mul_u32_u24 v10, 1280, v10")
    A(f"v_and_b32 v11, 7, {v(vL)}")
    A(f"v_lshrrev_b32 v12, 4, {v(vL)}")
    A(f"v_xor_b32 v11, v11, v12")
    A(f"v_lshl_add_u32 {v(vXe)}, v11, 4, v10")
    A(f"v_xor_b32 v11, 4, v11")
    A(f"v_lshl_add_u32 {v(vXo)}, v11, 4, v10")
    A(f"s_lshl_b32 {s(sT0)}, {s(sRb)}, 7")
    A(f"s_lshl_b32 {s(sT1)}, {s(sLw)}, 5")
    A(f"s_add_u32 {s(sT0)}, {s(sT0)}, {s(sT1)}")
    A(f"s_mul_i32 {s(sXo)}, {s(sT0)}, 1280")
    A(f"s_lshl_b32 {s(sMx)}, {s(sLw)}, 12")
    A(f"s_add_u32 {s(sMx)}, {s(sMx)}, {LDS_X}")
    for r in (sXsl, sWsl2, sCsl): A(f"s_mov_b32 {s(r)}, 0")
    A.c("rotated k order: workgroups that share rows or columns start at different chunks")
    if "rot" in variant.split(","):
        A(f"s_and_b32 {s(sT0)}, {s(sCt)}, 3")
        A(f"s_mul_i32 {s(sT1)}, {s(sT0)}, 5")
        A(f"s_lshr_b32 {s(sT1)}, {s(sT1)}, 1")
        A(f"s_lshr_b32 {s(sT0)}, {s(sCt)}, 2")
        A(f"s_add_u32 {s(sT1)}, {s(sT1)}, {s(sT0)}")
        A(f"s_add_u32 {s(sT1)}, {s(sT1)}, {s(sRb)}")
        A(f"s_mul_i32 {s(sT0)}, {s(sT1)}, 205")
        A(f"s_lshr_b32 {s(sT0)}, {s(sT0)}, 11")
        A(f"s_mul_i32 {s(sT0)}, {s(sT0)}, 10")
        A(f"s_sub_u32 {s(sXk)}, {s(sT1)}, {s(sT0)}")
    else:
        A(f"s_mov_b32 {s(sXk)}, 0")
    A(f"s_lshl_b32 {s(sWk)}, {s(sXk)}, 1")
    A(f"s_lshl_b32 {s(sT0)}, {s(sXk)}, 7")
    A(f"s_add_u32 {s(sXo)}, {s(sXo)}, {s(sT0)}")
    A(f"s_and_b32 {s(sSp)}, {s(sLw)}, 1")
    A(f"s_lshr_b32 {s(sHalf)}, {s(sLw)}, 1")

    def lane_offsets(n, pitchg, dst):
        if n == 1:
            A(f"v_lshrrev_b32 v10, 3, {v(vL)}")
            A(f"v_bfe_u32 v11, v10, 1, 1")
            A(f"v_lshlrev_b32 v11, 2, v11")
            A(f"v_and_b32 v12, 7, {v(vL)}")
            A(f"v_xor_b32 v12, v12, v11")
            A(f"v_mul_u32_u24 v10, {pitchg}, v10")
            A(f"v_lshl_add_u32 {v(dst[0])}, v12, 4, v10")
        elif n == 2:
            A(f"v_lshrrev_b32 v10, 4, {v(vL)}")
            A(f"v_lshlrev_b32 v11, 2, v10")
            A(f"v_and_b32 v12, 15, {v(vL)}")
            A(f"v_xor_b32 v12, v12, v11")
            A(f"v_mul_u32_u24 v10, {pitchg}, v10")
            A(f"v_lshl_add_u32 {v(dst[0])}, v12, 4, v10")
        else:
            for e in range(3):
                A(f"v_add_u32 v10, {64*e}, {v(vL)}")
                A(f"v_mul_u32_u24 v11, 43691, v10")
                A(f"v_lshrrev_b32 v11, 20, v11")
                A(f"v_mul_u32_u24 v12, 24, v11")
                A(f"v_sub_u32 v12, v10, v12")
                A(f"v_bfe_u32 v13, v11, 1, 1")
                A(f"v_lshlrev_b32 v13, 2, v13")
                A(f"v_xor_b32 v12, v12, v13")
                A(f"v_mul_u32_u24 v11, {pitchg}, v11")
                A(f"v_lshl_add_u32 {v(dst[e])}, v12, 4, v11")

    def wrap(r, step, n):
        return [f"s_add_u32 {s(r)}, {s(r)}, {step}", f"s_cmp_eq_u32 {s(r)}, {step*n}", f"s_cselect_b32 {s(r)}, 0, {s(r)}"]

    ACS = [16, 17, 18, 19, 20]; ACH = [21, 22, 23, 14, 15]
    FB = lambda j: 24 + 4 * j
    vCa = [44, 45, 46, 47, 48]
    UP = [50, 51, 52, 53]; vOn = 54
    A4 = lambda j: 64 + 4 * j; vOn2 = 84

    def loader(typ):
        T = f"t{typ}"
        qoff, qp, qn = IMG[typ]["q"]; goff, gp, gn = IMG[typ]["g"]; uoff = IMG[typ]["u"][0]
        lane_offsets(qn, 3840, vQ)
        lane_offsets(gn, 3072, [vG])
        A.c("global offsets of this loader's 8 rows")
        A(f"s_mul_i32 {s(sWo)}, {s(sLw)}, {8*3840}")
        A(f"s_mul_i32 {s(sGo)}, {s(sLw)}, {8*3072}")
        if typ == 0:
            A(f"s_lshl_b32 {s(sT0)}, {s(sI)}, 7"); A(f"s_lshl_b32 {s(sT1)}, {s(sI)}, 8")
        else:
            A(f"s_mul_i32 {s(sT0)}, {s(sI)}, 384"); A(f"s_add_u32 {s(sT0)}, {s(sT0)}, 1024")
            A(f"s_lshl_b32 {s(sT1)}, {s(sI)}, 7"); A(f"s_add_u32 {s(sT1)}, {s(sT1)}, 2048")
        A(f"s_add_u32 {s(sWo)}, {s(sWo)}, {s(sT0)}")
        A(f"s_add_u32 {s(sGo)}, {s(sGo)}, {s(sT1)}")
        A(f"s_mul_i32 {s(sT0)}, {s(sWk)}, {32*3840}")
        A(f"s_add_u32 {s(sWo)}, {s(sWo)}, {s(sT0)}")
        A(f"s_mul_i32 {s(sT0)}, {s(sWk)}, {32*3072}")
        A(f"s_add_u32 {s(sGo)}, {s(sGo)}, {s(sT0)}")
        sMq, sMg, sB1, sB2 = 55, 56, 57, 58
        A(f"s_mul_i32 {s(sMq)}, {s(sLw)}, {8*qp}")
        A(f"s_add_u32 {s(sMq)}, {s(sMq)}, {LDS_W + qoff}")
        A(f"s_mul_i32 {s(sMg)}, {s(sLw)}, {8*gp}")
        A(f"s_add_u32 {s(sMg)}, {s(sMg)}, {LDS_W + goff}")
        def x_groups():
            g = []
            for ii in range(4):
                pre = [f"s_add_u32 {s(sB1)}, {s(sMx)}, {s(sXsl)}"] if ii == 0 else []
                g.append(pre + [f"s_add_u32 m0, {s(sB1)}, {ii*1024}", f"s_add_u32 {s(sT0)}, {s(sXo)}, {ii*10240}",
                                f"buffer_load_dwordx4 {v(vXo if ii & 1 else vXe)}, {s(sX,4)}, {s(sT0)} offen lds"])
            g[-1] += [f"s_add_u32 {s(sXo)}, {s(sXo)}, 128", f"s_add_u32 {s(sXk)}, {s(sXk)}, 1", f"s_cmp_eq_u32 {s(sXk)}, 10",
                      f"s_cselect_b32 {s(sT0)}, 1280, 0", f"s_cselect_b32 {s(sXk)}, 0, {s(sXk)}",
                      f"s_sub_u32 {s(sXo)}, {s(sXo)}, {s(sT0)}"] + wrap(sXsl, XS, NXS)
            return g
        def w_groups():
            g = []
            for e in range(qn):
                pre = [f"s_add_u32 {s(sB1)}, {s(sMq)}, {s(sWsl2)}", f"s_add_u32 {s(sB2)}, {s(sMg)}, {s(sWsl2)}"] if e == 0 else []
                g.append(pre + [f"s_add_u32 m0, {s(sB1)}, {e*1024}", "s_nop 0",
                                f"buffer_load_dwordx4 {v(vQ[e] if qn == 3 else vQ[0])}, {s(sW,4)}, {s(sWo)} offen lds"])
            for desc, off in ((sG, 0), (sU, uoff - goff)):
                for e in range(gn):
                    g.append([f"s_add_u32 m0, {s(sB2)}, {off + e*1024}", f"s_add_u32 {s(sT0)}, {s(sGo)}, {e*4*3072}",
                              f"buffer_load_dwordx4 {v(vG)}, {s(desc,4)}, {s(sT0)} offen lds"])
            g[-1] += [f"s_add_u32 {s(sWo)}, {s(sWo)}, {32*3840}", f"s_add_u32 {s(sGo)}, {s(sGo)}, {32*3072}",
                      f"s_add_u32 {s(sWk)}, {s(sWk)}, 1", f"s_cmp_eq_u32 {s(sWk)}, 20",
                      f"s_cselect_b32 {s(sT0)}, {640*3840}, 0", f"s_cselect_b32 {s(sT1)}, {640*3072}, 0", f"s_cselect_b32 {s(sWk)}, 0, {s(sWk)}",
                      f"s_sub_u32 {s(sWo)}, {s(sWo)}, {s(sT0)}", f"s_sub_u32 {s(sGo)}, {s(sGo)}, {s(sT1)}"] + wrap(sWsl2, WSZ, NWS)
            return g
        def emit(groups):
            for g in groups:
                for ln in g: A(ln)
        if "fine" in variant: stamp(A, 4)
        emit(x_groups()[:1])
        if "fine" in variant: stamp(A, 3)
        emit(x_groups()[1:] + w_groups())
        A.c("column sums: loader (step parity lw&1, wave column lw>>1) adds the fragments of five column tiles along k")
        A(f"s_lshl_b32 {s(sT2)}, {s(sSp)}, 4")
        frag_addrs(A, typ, vCa, vL, sHalf, 56, extra_rows_s=sT2)
        pitch = [IMG[typ][k][1] for (k, _, _) in SLOTS[typ]]
        for r in ACS + ACH: A(f"v_mov_b32 {v(r)}, 0")
        A(f"v_mov_b32 {v(vOn)}, 0x3f803f80")
        if "cs44" in variant:
            for r in range(64, 84): A(f"v_mov_b32 {v(r)}, 0")
            A(f"v_mov_b32 {v(vOn2)}, 0x3f803f80"); A(f"v_mov_b32 {v(vOn2+1)}, 0x3f803f80")
        def interval(groups):
            if "nocs" in variant:
                emit(groups); return
            for j in range(5):
                A(f"v_add_u32 v10, {s(sCsl)}, {v(vCa[j])}")
                A(f"ds_read_b64_tr_b16 {v(FB(j),2)}, v10")
                A(f"ds_read_b64_tr_b16 {v(FB(j)+2,2)}, v10 offset:{4*pitch[j]}")
            for ln in wrap(sCsl, WSZ, NWS): A(ln)
            work = []
            for j in range(5):
                w = [f"s_waitcnt lgkmcnt({8-2*j})"]
                for k in range(4):
                    lo, hi = UP[2 * (k & 1)], UP[2 * (k & 1) + 1]
                    if "csvalu" in variant:
                        w += [f"v_lshlrev_b32 {v(lo)}, 16, {v(FB(j)+k)}", f"v_and_b32 {v(hi)}, 0xffff0000, {v(FB(j)+k)}",
                              f"v_add_f32 {v(ACS[j])}, {v(ACS[j])}, {v(lo)}", f"v_add_f32 {v(ACH[j])}, {v(ACH[j])}, {v(hi)}"]
                    elif "cs44" in variant:
                        if k & 1 == 0: w += [f"v_mfma_f32_4x4x4_16b_bf16 {v(A4(j),4)}, {v(FB(j)+k,2)}, {v(vOn2,2)}, {v(A4(j),4)}"]
                    else:
                        w += [f"v_dot2c_f32_bf16 {v(ACS[j] if k & 1 else ACH[j])}, {v(FB(j)+k)}, {v(vOn)}"]
                work.append(w)
            groups = list(groups)
            if "interleave" not in variant:
                emit(groups)
                A("s_waitcnt lgkmcnt(0)")
                for k in range(2 if "cs44" in variant else 4):
                    for j in range(5): A(work[j][1 + k]) if "csvalu" not in variant else None
                if "csvalu" not in variant: return
                groups = []
            if groups: emit([groups.pop(0)])
            while work or groups:
                if work:
                    for ln in work.pop(0): A(ln)
                take = 1 if len(groups) <= len(work) + 1 else 2
                for _ in range(take):
                    if groups: emit([groups.pop(0)])
        def bar(cnt, st=None):
            A(f"s_waitcnt vmcnt({cnt})")
            if st is not None: stamp(A, st)
            A("s_barrier")
        stamp(A, 1)
        bar(0, 2)
        interval(w_groups() + x_groups() + w_groups())
        bar(9, None if 'fine' in variant else 3)
        interval(w_groups() + x_groups() + w_groups())
        A(f"s_mov_b32 {s(sPair)}, 7")
        A.label(f"L_k1_lpair{T}")
        bar(14)
        interval(w_groups())
        bar(14)
        interval(x_groups() + w_groups())
        A(f"s_sub_u32 {s(sPair)}, {s(sPair)}, 1")
        A(f"s_cmp_lg_u32 {s(sPair)}, 0")
        A(f"s_cbranch_scc1 L_k1_lpair{T}")
        bar(14)
        interval(w_groups())
        bar(14)
        interval([])
        bar(5)
        interval([])
        bar(0, 5)
        interval([])

    A(f"s_cmp_ge_u32 {s(sCt)}, 8")
    A("s_cbranch_scc1 L_k1_loader1")
    loader(0)
    A("s_branch L_k1_lsum")
    A.label("L_k1_loader1")
    loader(1)
    A.label("L_k1_lsum")
    A.c("combine the k halves and the two step parities; array order [wave column][slot][32]")
    A("s_nop 7")
    if "cs44" in variant:
        A.c("lane l takes register l&3 of its block: the sum of row l")
        A(f"v_and_b32 v10, 3, {v(vL)}")
        for j in range(5):
            A(f"v_mov_b32 {v(ACS[j])}, {v(A4(j))}")
        for i in range(1, 4):
            A(f"v_cmp_eq_u32 vcc, {i}, v10")
            A("s_nop 1")
            for j in range(5): A(f"v_cndmask_b32 {v(ACS[j])}, {v(ACS[j])}, {v(A4(j)+i)}, vcc")
    else:
        for j in range(5): A(f"v_add_f32 {v(ACS[j])}, {v(ACS[j])}, {v(ACH[j])}")
    for j in range(5): A(f"v_mov_b32 {v(FB(0)+j)}, {v(ACS[j])}")
    A("s_nop 1")
    for j in range(5): A(f"v_permlane32_swap_b32 {v(ACS[j])}, {v(FB(0)+j)}")
    A("s_nop 0")
    for j in range(5): A(f"v_add_f32 {v(ACS[j])}, {v(ACS[j])}, {v(FB(0)+j)}")
    A(f"v_and_b32 v10, 31, {v(vL)}")
    A(f"v_lshlrev_b32 v10, 2, v10")
    A(f"s_mul_i32 {s(sT0)}, {s(sHalf)}, 640")
    A(f"s_add_u32 {s(sT0)}, {s(sT0)}, {LDS_CS}")
    A(f"v_add_u32 v10, {s(sT0)}, v10")
    A(f"s_cmp_eq_u32 {s(sSp)}, 0")
    A("s_cbranch_scc0 L_k1_cs3")
    for j in range(5): A(f"ds_write_b32 v10, {v(ACS[j])} offset:{128*j}")
    A("s_waitcnt lgkmcnt(0)")
    A("s_barrier")
    A("s_branch L_k1_cs4")
    A.label("L_k1_cs3")
    A("s_barrier")
    for j in range(5): A(f"ds_read_b32 {v(FB(0)+j)}, v10 offset:{128*j}")
    A("s_waitcnt lgkmcnt(0)")
    for j in range(5): A(f"v_add_f32 {v(ACS[j])}, {v(ACS[j])}, {v(FB(0)+j)}")
    for j in range(5): A(f"ds_write_b32 v10, {v(ACS[j])} offset:{128*j}")
    A("s_waitcnt lgkmcnt(0)")
    A.label("L_k1_cs4")
    A("s_barrier")
    if extra_tail: extra_tail(A, sWS, sLw, sRb, sCt, vL)
    stamp(A, 6)
    stamp_flush(A, 7, 69, sWS, 60)
    A.label("L_k1_end")
    A("s_endpgm")
    return NAME, 512, LDS_BYTES, descriptor(NAME, NV, nsgpr=102 if common.DBGT else 96)
```

```python
from asm import *

S, D, H, DH, F = 2048, 640, 32, 20, 1536
WS_QKV = 0
QKV_HEAD = S * 48
PLANE = S * 8
WS_XN = 0x00A00000
WS_H = 0x00D00000
WS_O = 0x01400000
WS_OR = 0x01600000
WS_FLAG = 0x01700000
WS_SIZE = 0x01A00000
LOG2E = 1.4426950408889634
QSCALE = (DH ** -0.5) * LOG2E

K_X, K_WQKV, K_WO, K_BX, K_WG, K_WU, K_WD, K_OUT, K_DBG, K_WS = [8 * i for i in range(10)]

def f32bits(x):
    import struct
    return struct.unpack("<I", struct.pack("<f", x))[0]

def srd(A, d, base, nbytes):
    A(f"s_mov_b32 {s(d)}, {s(base)}")
    A(f"s_and_b32 {s(d+1)}, {s(base+1)}, 0xffff")
    A(f"s_mov_b32 {s(d+2)}, {nbytes}")
    A(f"s_mov_b32 {s(d+3)}, 0x00020000")

def code_prefetch(A, tag, start_label, nkb, sp, vt, vd, lane_reg):
    A(f"s_getpc_b64 {s(sp,2)}")
    A.label(f"L_pc_{tag}")
    A(f"s_add_u32 {s(sp)}, {s(sp)}, {start_label}-L_pc_{tag}")
    A(f"s_addc_u32 {s(sp+1)}, {s(sp+1)}, 0")
    A(f"v_lshlrev_b32 {v(vt)}, 4, {v(lane_reg)}")
    for i in range(nkb):
        A(f"global_load_dwordx4 {v(vd,4)}, {v(vt)}, {s(sp,2)}")
        if i + 1 < nkb:
            A(f"v_add_u32 {v(vt)}, 1024, {v(vt)}")

def kernel_header(A, name):
    A(f".globl {name}")
    A(".p2align 8")
    A(f".type {name},@function")
    A.label(name)

def descriptor(name, nvgpr, nsgpr=96, accum=None):
    accum = accum or ((nvgpr + 3) // 4 * 4)
    return f""".amdhsa_kernel {name}
  .amdhsa_next_free_vgpr {nvgpr}
  .amdhsa_next_free_sgpr {nsgpr}
  .amdhsa_accum_offset {accum}
  .amdhsa_group_segment_fixed_size 0
  .amdhsa_kernarg_size 80
  .amdhsa_user_sgpr_count 2
  .amdhsa_user_sgpr_kernarg_segment_ptr 1
  .amdhsa_system_sgpr_workgroup_id_x 1
.end_amdhsa_kernel
"""

STAMPS = False
STAMP_BASE = 0
DEBUG = False
WS_STAMP = 0x01780000
def stamp(A, idx):
    import common
    if common.STAMPS and idx == 0:
        A("s_memrealtime s[70:71]")
    if common.STAMPS:
        A(f"s_memtime {s(80+2*idx,2)}")
def rstamp(A, idx):
    import common
    if common.STAMPS:
        A(f"s_memrealtime {s(70+2*idx,2)}")
def stamp_flush(A, n, slot_sreg, sws, vtmp):
    import common
    if not common.STAMPS: return
    A("s_waitcnt lgkmcnt(0)")
    A(f"s_lshl_b32 s79, {s(slot_sreg)}, 6")
    A(f"s_add_u32 s79, s79, {WS_STAMP + common.STAMP_BASE}")
    A(f"v_mov_b32 {v(vtmp+1)}, 0")
    for i in range(n):
        if i == 0:
            A(f"v_mov_b32 {v(vtmp)}, s80")
        else:
            A(f"s_sub_u32 s78, {s(80+2*i)}, s80")
            A(f"v_mov_b32 {v(vtmp)}, s78")
        A(f"buffer_store_dword {v(vtmp)}, {v(vtmp+1)}, {s(sws,4)}, s79 offen offset:{4*i}")
        A("s_nop 0")
    A("s_memrealtime s[72:73]")
    A("s_waitcnt lgkmcnt(0)")
    for i in range(2):
        A(f"v_mov_b32 {v(vtmp)}, {s(70+2*i)}")
        A(f"buffer_store_dword {v(vtmp)}, {v(vtmp+1)}, {s(sws,4)}, s79 offen offset:{4*(14+i)}")
        A("s_nop 0")

WS_DBG = 0x01980000
def dump_regs(A, regs, slot0, sWS, sWave, vtmp, tag):
    A(f"s_or_b32 s77, s2, {s(sWave)}")
    A(f"s_cmp_lg_u32 s77, 0")
    A(f"s_cbranch_scc1 L_dump_{tag}")
    A(f"v_and_b32 {v(vtmp)}, 63, v0")
    A(f"v_lshlrev_b32 {v(vtmp)}, 2, {v(vtmp)}")
    for i, r in enumerate(regs):
        A(f"s_mov_b32 s77, {WS_DBG + (slot0 + i) * 256}")
        A(f"buffer_store_dword {v(r)}, {v(vtmp)}, {s(sWS,4)}, s77 offen")
    A("s_waitcnt vmcnt(0)")
    A.label(f"L_dump_{tag}")


DBGT = False
def dbg_time(A, idx, wave_sreg, wave, back=0, tag=""):
    import common
    if not common.DBGT: return
    A(f"s_cmp_lg_u32 s2, 0")
    A(f"s_cbranch_scc1 L_dbgt_{tag}{idx}")
    A(f"s_cmp_lg_u32 {s(wave_sreg)}, {wave}")
    A(f"s_cbranch_scc1 L_dbgt_{tag}{idx}")
    A(f"s_load_dwordx2 s[96:97], s[0:1], {K_DBG}")
    A(f"s_memrealtime s[98:99]")
    A("s_waitcnt lgkmcnt(0)")
    back = back - 1
    if back < 0:
        A(f"s_add_u32 s96, s96, 512")
        A(f"s_addc_u32 s97, s97, 0")
    A("v_mov_b32 v1, s98")
    A("v_mov_b32 v0, 0" if False else "s_nop 0")
    A(f"s_mov_b64 exec, 1")
    A(f"s_mov_b32 s99, {4*idx}")
    A("v_writelane_b32 v1, s98, 0")
    A(f"s_add_u32 s96, s96, s99")
    A(f"s_addc_u32 s97, s97, 0")
    A("v_mov_b32 v167, 0" if tag == "k2" else "v_mov_b32 v95, 0")
    A(f"global_store_dword {'v167' if tag == 'k2' else 'v95'}, v1, s[96:97]")
    A("s_mov_b64 exec, -1")
    A.label(f"L_dbgt_{tag}{idx}")
```

```python
from common import *
import common
import attn3
from attn import lds_arrive, lds_wait
from ffn import out_setup, OUT_SLOT

NAME = "main_kernel"
PITCH = 656
REG = 32 * PITCH
LDS_CNT = attn3.KV_BYTES
LDS_CNT_O = LDS_CNT + 4
LDS_CNT_G = LDS_CNT + 8
LDS_G = 65280
LDS_BYTES = LDS_G + 4 * REG
NV = 168

def global_wait(A, tag, sWS, sOff, target, vT, sTmp, sSpin):
    a, b, z = vT, vT + 4, vT + 1
    A(f"s_mov_b32 {s(sSpin)}, 0x10000")
    A(f"v_mov_b32 {v(z)}, 0")
    A(f"buffer_load_dword {v(a)}, {v(z)}, {s(sWS,4)}, {s(sOff)} offen sc1")
    A.label(f"L_gw_{tag}")
    for cur, nxt in ((a, b), (b, a)):
        A("s_sleep 3")
        A(f"buffer_load_dword {v(nxt)}, {v(z)}, {s(sWS,4)}, {s(sOff)} offen sc1")
        A("s_waitcnt vmcnt(1)")
        A(f"v_readfirstlane_b32 {s(sTmp)}, {v(cur)}")
        A(f"s_sub_u32 {s(sSpin)}, {s(sSpin)}, 1")
        A(f"s_cbranch_scc1 L_gg_{tag}")
        A(f"s_cmp_ge_u32 {s(sTmp)}, {target}")
        A(f"s_cbranch_scc1 L_gg_{tag}")
    A(f"s_branch L_gw_{tag}")
    A.label(f"L_gg_{tag}")

def gen(A, variant="", prefetch=None):
    sWS, sWD, sWO, sXd, sOut = 8, 12, 16, 32, 36
    sWave, sHead, sQb, sT0, sT1 = 20, 21, 22, 23, 24
    kernel_header(A, NAME)
    A("s_cmp_ge_u32 s2, 256")
    A("s_cbranch_scc1 L_main_end")
    A(f"s_load_dwordx2 s[28:29], s[0:1], {K_WS}")
    A(f"s_load_dwordx2 s[4:5], s[0:1], {K_WD}")
    A(f"s_load_dwordx2 s[6:7], s[0:1], {K_WO}")
    A(f"s_load_dwordx2 s[30:31], s[0:1], {K_X}")
    A(f"s_load_dwordx2 s[26:27], s[0:1], {K_OUT}")
    A("v_lshrrev_b32 v1, 6, v0")
    A("v_and_b32 v2, 63, v0")
    A(f"v_readfirstlane_b32 {s(sWave)}, v1")
    A(f"v_mov_b32 v3, {LDS_CNT}")
    A(f"v_mov_b32 v4, 0")
    A(f"v_mov_b32 v5, 0")
    A(f"v_mov_b32 v6, 0")
    A(f"v_mov_b32 v7, 0")
    A("ds_write_b128 v3, v[4:7]")
    A("s_waitcnt lgkmcnt(0)")
    srd(A, sWS, 28, WS_SIZE)
    if "tlb2" in variant:
        A.c("touch the pages of the buffers used late in this kernel so that address translation is ready")
        A(f"s_cmp_lg_u32 {s(sWave)}, 8")
        A("s_cbranch_scc1 L_main_tlb")
        srd(A, 40, 26, S * D * 2)
        srd(A, 44, 30, S * D * 2)
        srd(A, 48, 6, D * D * 2)
        A("v_lshlrev_b32 v3, 19, v2")
        A("buffer_load_dword v167, v3, s[40:43], 0 offen")
        A("buffer_load_dword v167, v3, s[44:47], 0 offen")
        A("buffer_load_dword v167, v3, s[48:51], 0 offen")
        A(f"buffer_load_dword v167, v3, {s(sWS,4)}, 0 offen")
        A.label("L_main_tlb")
    dbg_time(A, 4, sWave, 0, back=1, tag="k2")
    stamp(A, 0)
    if common.STAMPS:
        A(f"s_mul_i32 s69, s2, 12")
        A(f"s_add_u32 s69, s69, {s(sWave)}")
    if "cpf2" in variant:
        A.c("pull this kernel's code into L2: wave w loads KiB w and w + 12 (results unused)")
        A("s_getpc_b64 s[40:41]")
        A.label("L_main_pc")
        A(f"s_add_u32 s40, s40, {NAME}-L_main_pc")
        A("s_addc_u32 s41, s41, -1")
        A(f"s_lshl_b32 s42, {s(sWave)}, 10")
        A("v_lshlrev_b32 v8, 4, v2")
        A("v_add_u32 v8, s42, v8")
        A("global_load_dwordx4 v[164:167], v8, s[40:41]")
        A(f"s_cmp_lg_u32 {s(sWave)}, 0")
        A("s_cbranch_scc1 L_main_cpf")
        A("v_add_u32 v8, 12288, v8")
        A("global_load_dwordx4 v[164:167], v8, s[40:41]")
        A.label("L_main_cpf")
    A("s_barrier")
    A(f"s_cmp_ge_u32 {s(sWave)}, 8")
    A("s_cbranch_scc1 L_main_gemm")

    A(f"s_and_b32 {s(sT0)}, s2, 7")
    A(f"s_lshr_b32 {s(sQb)}, s2, 3")
    A(f"s_lshr_b32 {s(sHead)}, {s(sQb)}, 3")
    A(f"s_lshl_b32 {s(sT0)}, {s(sT0)}, 2")
    A(f"s_add_u32 {s(sHead)}, {s(sHead)}, {s(sT0)}")
    A(f"s_and_b32 {s(sQb)}, {s(sQb)}, 7")
    def signal(A):
        A.c("every wave drains its stores and counts itself in LDS; the last one raises the device-scope counter of the query block")
        A("s_waitcnt vmcnt(0)")
        stamp(A, 6)
        A(f"v_mov_b32 v3, {LDS_CNT_O}")
        A(f"v_mov_b32 v4, 1")
        A("s_mov_b64 exec, 1")
        A("ds_add_rtn_u32 v5, v3, v4")
        A("s_waitcnt lgkmcnt(0)")
        A(f"v_readfirstlane_b32 {s(sT0)}, v5")
        A(f"s_lshl_b32 {s(sT1)}, {s(sQb)}, 8")
        A(f"s_add_u32 {s(sT1)}, {s(sT1)}, {WS_FLAG}")
        A(f"s_cmp_lg_u32 {s(sT0)}, 7")
        A("s_cbranch_scc1 L_main_nosig")
        A("v_mov_b32 v3, 0")
        A(f"buffer_atomic_add v4, v3, {s(sWS,4)}, {s(sT1)} offen")
        A.label("L_main_nosig")
        A("s_mov_b64 exec, -1")
    def finish(A):
        dbg_time(A, 7, sWave, 0, back=1, tag="k2")
        stamp(A, 3)
        stamp_flush(A, 7, 69, sWS, 144)
        A("s_endpgm")
    attn3.role(A, sWS, sWave, sHead, sQb, 0, LDS_CNT, 2, on_stored=signal, variant=variant, done=finish)

    A.label("L_main_gemm")
    if "gprio" in variant: A("s_setprio 3")
    sW, sTb, sCq, sM, sB1, sB2, sA1, sA2, sA3, sXo = 21, 22, 25, 40, 41, 42, 43, 44, 45, 46
    srd(A, sWD, 4, F * D * 2)
    srd(A, sWO, 6, D * D * 2)
    srd(A, sXd, 30, S * D * 2)
    srd(A, sOut, 26, S * D * 2)
    A(f"s_sub_u32 {s(sW)}, {s(sWave)}, 8")
    A(f"s_and_b32 {s(sT0)}, s2, 7")
    A(f"s_lshr_b32 {s(sCq)}, s2, 3")
    A(f"s_lshr_b32 {s(sTb)}, {s(sCq)}, 2")
    A(f"s_lshl_b32 {s(sT0)}, {s(sT0)}, 3")
    A(f"s_add_u32 {s(sTb)}, {s(sTb)}, {s(sT0)}")
    A(f"s_and_b32 {s(sCq)}, {s(sCq)}, 3")
    vL, vA, vLin = 2, 3, 4
    vD = [5, 6, 7, 8, 9]; vDr = [10, 11, 12, 13, 14]
    AF = lambda i: 16 + 4 * i
    OF = lambda k: (16 + 4 * k) if k < 4 else (132 + 4 * (k - 4))
    WF = lambda j: 32 + 4 * j
    ACC = lambda j: 52 + 16 * j
    T = 156
    A(f"v_lshlrev_b32 {v(vLin)}, 4, {v(vL)}")
    out_setup(A, vL, vA, vD, vDr, T)
    A(f"s_mul_i32 {s(sM)}, {s(sW)}, {REG}")
    A(f"s_add_u32 {s(sM)}, {s(sM)}, {LDS_G}")
    A(f"v_add_u32 {v(vA)}, {s(sM)}, {v(vA)}")
    A(f"s_mul_i32 {s(sXo)}, {s(sTb)}, {32*1280}")
    A(f"s_mul_i32 {s(sT1)}, {s(sCq)}, 320")
    A(f"s_add_u32 {s(sXo)}, {s(sXo)}, {s(sT1)}")
    A(f"s_mul_i32 {s(sB1)}, {s(sW)}, {24*16*1280}")
    A(f"s_add_u32 {s(sB1)}, {s(sB1)}, {s(sT1)}")
    A(f"s_mul_i32 {s(sA1)}, {s(sTb)}, 96")
    A(f"s_mul_i32 {s(sT0)}, {s(sW)}, 24")
    A(f"s_add_u32 {s(sA1)}, {s(sA1)}, {s(sT0)}")
    A(f"s_lshl_b32 {s(sA1)}, {s(sA1)}, 10")
    A(f"s_add_u32 {s(sA1)}, {s(sA1)}, {WS_H}")

    def wdma(vd, desc, sbase, off, slot):
        for e in range(5):
            A(f"s_add_u32 m0, {s(sM)}, {slot*OUT_SLOT + e*1024}")
            A(f"s_add_u32 {s(sT0)}, {s(sbase)}, {off}")
            A(f"buffer_load_dwordx4 {v(vd[e])}, {s(desc,4)}, {s(sT0)} offen lds")
    def wreads(slot, j):
        return [f"ds_read_b64_tr_b16 {v(WF(j)+2*i,2)}, {v(vA)} offset:{slot*OUT_SLOT + i*2560 + j*64}" for i in range(2)]
    mf = lambda j, b: f"v_mfma_f32_32x32x16_bf16 {v(ACC(j),16)}, {v(WF(j),4)}, {v(b,4)}, {v(ACC(j),16)}"

    sBh, sAh, sCnt = 47, 48, 49
    A(f"s_mov_b32 {s(sBh)}, {s(sB1)}")
    A(f"s_mov_b32 {s(sAh)}, {s(sA1)}")
    def issue_h(slot):
        wdma(vD, sWD, sBh, 0, slot)
        A(f"buffer_load_dwordx4 {v(AF(slot),4)}, {v(vLin)}, {s(sWS,4)}, {s(sAh)} offen")
        A(f"s_add_u32 {s(sBh)}, {s(sBh)}, {16*1280}")
        A(f"s_add_u32 {s(sAh)}, {s(sAh)}, 1024")
    for k in range(3): issue_h(k)
    A.c("accumulators start from the residual x: wave w adds register group w of every column tile")
    for r in range(ACC(0), ACC(4) + 16): A(f"v_mov_b32 {v(r)}, 0")
    A(f"v_and_b32 {v(T)}, 31, {v(vL)}")
    A(f"v_mul_u32_u24 {v(T)}, 1280, {v(T)}")
    A(f"v_lshrrev_b32 {v(T+1)}, 5, {v(vL)}")
    A(f"v_lshl_add_u32 {v(T)}, {v(T+1)}, 3, {v(T)}")
    A(f"s_lshl_b32 {s(sT1)}, {s(sW)}, 4")
    A(f"s_add_u32 {s(sT1)}, {s(sT1)}, {s(sXo)}")
    XR = 132
    for j in range(5):
        A(f"buffer_load_dwordx2 {v(XR+2*j,2)}, {v(T)}, {s(sXd,4)}, {s(sT1)} offen offset:{64*j}")
    A("s_waitcnt vmcnt(0)")
    for w in range(4):
        if w < 3:
            A(f"s_cmp_lg_u32 {s(sW)}, {w}")
            A(f"s_cbranch_scc1 L_main_res{w}")
        for j in range(5):
            for e in range(2):
                A(f"v_lshlrev_b32 {v(ACC(j)+4*w+2*e)}, 16, {v(XR+2*j+e)}")
                A(f"v_and_b32 {v(ACC(j)+4*w+2*e+1)}, 0xffff0000, {v(XR+2*j+e)}")
        if w < 3:
            A("s_branch L_main_resdone")
            A.label(f"L_main_res{w}")
    A.label("L_main_resdone")
    for j in range(5):
        for ln in wreads(0, j): A(ln)
    A(f"s_mov_b32 {s(sCnt)}, 6")
    A.label("L_main_hloop")
    for k in range(4):
        A.c("step k+1 must have landed before its fragments are read; two younger steps may be in flight")
        A("s_waitcnt vmcnt(6)")
        for j in range(5):
            A("s_waitcnt lgkmcnt(8)")
            A(mf(j, AF(k)))
            for ln in wreads((k + 1) & 3, j): A(ln)
        issue_h((k + 3) & 3)
    A(f"s_sub_u32 {s(sCnt)}, {s(sCnt)}, 1")
    A(f"s_cmp_lg_u32 {s(sCnt)}, 0")
    A("s_cbranch_scc1 L_main_hloop")
    stamp(A, 1)

    A("s_waitcnt vmcnt(0) lgkmcnt(0)")
    A(f"s_mul_i32 {s(sT1)}, {s(sCq)}, 320")
    A(f"s_mul_i32 {s(sB1)}, {s(sW)}, {8*20*1280}")
    A(f"s_add_u32 {s(sB1)}, {s(sB1)}, {s(sT1)}")
    A(f"s_add_u32 {s(sB2)}, {s(sB1)}, {16*1280}")
    A(f"s_lshl_b32 {s(sA1)}, {s(sTb)}, 5")
    A(f"s_lshl_b32 {s(sT0)}, {s(sW)}, 3")
    A(f"s_add_u32 {s(sT0)}, {s(sT0)}, {s(sA1)}")
    A(f"s_lshl_b32 {s(sA2)}, {s(sT0)}, 10")
    A(f"s_add_u32 {s(sA2)}, {s(sA2)}, {WS_O}")
    A(f"s_lshl_b32 {s(sA3)}, {s(sT0)}, 8")
    A(f"s_add_u32 {s(sA3)}, {s(sA3)}, {WS_OR}")
    A.c("leftover steps: lane (t, h) takes units 2h and 2h+1 of four heads")
    vRem = T + 2
    A(f"v_and_b32 {v(vRem)}, 31, {v(vL)}")
    A(f"v_lshlrev_b32 {v(vRem)}, 3, {v(vRem)}")
    A(f"v_lshrrev_b32 {v(T+3)}, 5, {v(vL)}")
    A(f"v_lshl_add_u32 {v(vRem)}, {v(T+3)}, 9, {v(vRem)}")
    osteps = [(vD, sB1, k * 20 * 1280, sA2, k * 1024) for k in range(8)] + [(vDr, sB2, k * 80 * 1280, sA3, k * 1024) for k in range(2)]
    for k in range(4): wdma(osteps[k][0], sWO, osteps[k][1], osteps[k][2], k)
    A.c("touch the last three steps of Wo so that they are L2 hits later")
    for k in range(7, 10):
        for e in range(5):
            A(f"s_add_u32 {s(sT0)}, {s(osteps[k][1])}, {osteps[k][2]}")
            A(f"buffer_load_dwordx4 {v(132,4)}, {v(osteps[k][0][e])}, {s(sWO,4)}, {s(sT0)} offen")
    A.c("once this workgroup's attention waves are done their ring is free: steps 4..6 of Wo go there")
    vA2 = T + 5
    sM2 = 47
    A(f"s_mul_i32 {s(sM2)}, {s(sW)}, {3*OUT_SLOT}")
    A(f"v_subrev_u32 {v(vA2)}, {s(sM)}, {v(vA)}")
    A(f"v_add_u32 {v(vA2)}, {s(sM2)}, {v(vA2)}")
    A(f"v_mov_b32 {v(T+6)}, {LDS_CNT_O}")
    A(f"s_mov_b32 {s(sT1)}, 8")
    lds_wait(A, "own", T + 6, T + 7, 50, sT1)
    for k in range(4, 7):
        vd, sbase, off = osteps[k][:3]
        for e in range(5):
            A(f"s_add_u32 m0, {s(sM2)}, {(k-4)*OUT_SLOT + e*1024}")
            A(f"s_add_u32 {s(sT0)}, {s(sbase)}, {off}")
            A(f"buffer_load_dwordx4 {v(vd[e])}, {s(sWO,4)}, {s(sT0)} offen lds")
    A("s_waitcnt vmcnt(0)")
    for j in range(5):
        for ln in wreads(0, j): A(ln)
    A(f"s_lshr_b32 {s(sT1)}, {s(sTb)}, 3")
    A(f"s_lshl_b32 {s(sT1)}, {s(sT1)}, 8")
    A(f"s_add_u32 {s(sT1)}, {s(sT1)}, {WS_FLAG}")
    global_wait(A, "o", sWS, sT1, 32, T, 50, 78)
    stamp(A, 2)
    dbg_time(A, 8, sWave, 8, back=1, tag="k2")
    for k in range(8):
        A(f"s_add_u32 {s(sT0)}, {s(sA2)}, {k*1024}")
        A(f"buffer_load_dwordx4 {v(OF(k),4)}, {v(vLin)}, {s(sWS,4)}, {s(sT0)} offen sc1")
    for k in range(2):
        for i in range(2):
            A(f"buffer_load_dwordx2 {v(OF(8+k)+2*i,2)}, {v(vRem)}, {s(sWS,4)}, {s(sA3)} offen offset:{k*1024 + i*256} sc1")
    def oreads(k, j):
        if 4 <= k <= 6:
            return [f"ds_read_b64_tr_b16 {v(WF(j)+2*i,2)}, {v(vA2)} offset:{(k-4)*OUT_SLOT + i*2560 + j*64}" for i in range(2)]
        return wreads(k if k < 4 else k - 7, j)
    for k in range(10):
        cnt = {0: 11, 1: 10, 2: 14, 3: 18, 4: 22, 5: 21, 6: 10, 7: 5, 8: 0}.get(k)
        if k == 0:
            A("s_waitcnt vmcnt(11)")
            stamp(A, 5)
        for j in range(5):
            A(f"s_waitcnt lgkmcnt({8 if k < 9 else 2*(4-j)})")
            if j == 0 and k >= 1 and cnt is not None: A(f"s_waitcnt vmcnt({cnt})")
            A(mf(j, OF(k)))
            if k < 9:
                for ln in oreads(k + 1, j): A(ln)
            if 1 <= k <= 3:
                vd, sbase, off = osteps[k + 6][:3]
                A(f"s_add_u32 m0, {s(sM)}, {(k-1)*OUT_SLOT + j*1024}")
                A(f"s_add_u32 {s(sT0)}, {s(sbase)}, {off}")
                A(f"buffer_load_dwordx4 {v(vd[j])}, {s(sWO,4)}, {s(sT0)} offen lds")
    stamp(A, 3)
    A(f"v_and_b32 {v(T)}, 31, {v(vL)}")
    A(f"v_mul_u32_u24 {v(T)}, {PITCH}, {v(T)}")
    A(f"v_lshrrev_b32 {v(T+1)}, 5, {v(vL)}")
    A(f"v_lshl_add_u32 {v(T)}, {v(T+1)}, 4, {v(T)}")
    A(f"v_add_u32 {v(T)}, {s(sM)}, {v(T)}")
    A(f"v_mov_b32 {v(T+2)}, {LDS_CNT_G}")
    A(f"v_mov_b32 {v(T+3)}, 1")
    vTid = T + 4
    A(f"v_subrev_u32 {v(vTid)}, 512, v0")
    vXo = [T + 5, T + 6, T + 7]; vRo = [T + 8, T + 9, T + 10]
    for i in range(3):
        A(f"v_add_u32 v16, {256*i}, {v(vTid)}")
        A(f"v_mul_u32_u24 v17, 52429, v16")
        A(f"v_lshrrev_b32 v17, 20, v17")
        A(f"v_mul_u32_u24 v18, 20, v17")
        A(f"v_sub_u32 v18, v16, v18")
        A(f"v_mul_u32_u24 v19, 1280, v17")
        A(f"v_lshl_add_u32 {v(vXo[i])}, v18, 4, v19")
        A(f"v_mul_u32_u24 v19, {PITCH}, v17")
        A(f"v_lshl_add_u32 v19, v18, 5, v19")
        A(f"v_add_u32 {v(vRo[i])}, {LDS_G}, v19")
    for j in range(5):
        for g in range(4):
            A(f"ds_write_b128 {v(T)}, {v(ACC(j)+4*g,4)} offset:{j*128 + g*32}")
    A("s_waitcnt lgkmcnt(0)")
    stamp(A, 6)
    lds_arrive(A, T + 2, T + 3)
    A(f"s_mov_b32 {s(sT1)}, 4")
    lds_wait(A, "gred", T + 2, T + 11, sT0, sT1)
    P = [16, 52, 88]
    def rd(i):
        for w in range(4):
            for hh in range(2):
                A(f"ds_read_b128 {v(P[i]+8*w+4*hh,4)}, {v(vRo[i])} offset:{w*REG + 16*hh}")
    def fin(i):
        P0 = P[i]
        for e in range(8):
            A(f"v_add_f32 {v(P0+e)}, {v(P0+e)}, {v(P0+8+e)}")
            A(f"v_add_f32 {v(P0+16+e)}, {v(P0+16+e)}, {v(P0+24+e)}")
        for e in range(8):
            A(f"v_add_f32 {v(P0+e)}, {v(P0+e)}, {v(P0+16+e)}")
        for e in range(4):
            A(f"v_cvt_pk_bf16_f32 {v(P0+8+e)}, {v(P0+2*e)}, {v(P0+2*e+1)}")
        A(f"buffer_store_dwordx4 {v(P0+8,4)}, {v(vXo[i])}, {s(sOut,4)}, {s(sXo)} offen")
    A(f"v_cmp_gt_u32 vcc, 128, {v(vTid)}")
    rd(0)
    A("s_waitcnt lgkmcnt(4)")
    rd(1)
    A("s_waitcnt lgkmcnt(8)")
    fin(0)
    A("s_and_saveexec_b64 s[50:51], vcc")
    A("s_cbranch_execz L_main_last")
    rd(2)
    A("s_mov_b64 exec, -1")
    A("s_waitcnt lgkmcnt(8)")
    fin(1)
    A("s_and_b64 exec, exec, vcc")
    A("s_waitcnt lgkmcnt(0)")
    fin(2)
    A("s_branch L_main_gdone")
    A.label("L_main_last")
    A("s_mov_b64 exec, -1")
    A("s_waitcnt lgkmcnt(0)")
    fin(1)
    A.label("L_main_gdone")
    A("s_mov_b64 exec, -1")
    dbg_time(A, 9, sWave, 8, back=1, tag="k2")
    stamp(A, 4)
    stamp_flush(A, 7, 69, sWS, 16)
    A.label("L_main_end")
    A("s_endpgm")
    return NAME, 768, LDS_BYTES, descriptor(NAME, NV, nsgpr=102 if common.DBGT else 96)

def zero_flags(A, sWS, sLw, sRb, sCt, vL):
    A(f"s_load_dwordx2 s[4:5], s[0:1], {K_WD}")
    A(f"s_load_dwordx2 s[6:7], s[0:1], {K_WO}")
    A(f"s_or_b32 s31, s2, {s(sLw)}")
    A("s_cmp_lg_u32 s31, 0")
    A("s_cbranch_scc1 L_k1_noflag")
    A(f"v_lshlrev_b32 v10, 8, {v(vL)}")
    A("v_mov_b32 v11, 0")
    A(f"s_mov_b32 s31, {WS_FLAG}")
    A(f"buffer_store_dword v11, v10, {s(sWS,4)}, s31 offen")
    A.label("L_k1_noflag")
    if PREFETCH_W:
        A("s_waitcnt lgkmcnt(0)")
        srd(A, 8, 4, F * D * 2)
        srd(A, 12, 6, D * D * 2)
        A.c("1024 helper waves: two KiB of Wd each (1920 KiB), one KiB of Wo for the first 800")
        A(f"s_lshl_b32 s31, s2, 2")
        A(f"s_add_u32 s31, s31, {s(sLw)}")
        A(f"v_lshlrev_b32 v10, 4, {v(vL)}")
        A(f"s_lshl_b32 s32, s31, 11")
        A(f"buffer_load_dwordx4 v[16:19], v10, s[8:11], s32 offen")
        A(f"buffer_load_dwordx4 v[20:23], v10, s[8:11], s32 offen offset:1024")
        A(f"s_lshl_b32 s32, s31, 10")
        A(f"buffer_load_dwordx4 v[24:27], v10, s[12:15], s32 offen")
    if PREFETCH_CODE:
        A(f"s_cmp_ge_u32 s2, 8")
        A("s_cbranch_scc1 L_k1_nocode")
        code_prefetch(A, "k2code", NAME, 13, 46, 12, 28, vL)
        A.label("L_k1_nocode")
PREFETCH_W = True
PREFETCH_CODE = False
```

```python
from common import *
import common

NAME = "proj_kernel"
XS, WSZ = 16384, 20480
NXS, NWS = 3, 5
LDS_X = 0
LDS_W = NXS * XS
LDS_STATS = LDS_W + NWS * WSZ
LDS_CS = LDS_STATS + 1024
LDS_BYTES = LDS_CS + 1280
NV = 256
IMG = {0: dict(q=(0, 128, 1), g=(4096, 256, 2), u=(12288, 256, 2)),
       1: dict(q=(0, 384, 3), g=(12288, 128, 1), u=(16384, 128, 1))}
SLOTS = {0: [("q", 0, 1), ("g", 0, 2), ("u", 0, 2), ("g", 1, 2), ("u", 1, 2)],
         1: [("q", 0, 3), ("q", 1, 3), ("q", 2, 3), ("g", 0, 1), ("u", 0, 1)]}

def frag_addrs(A, typ, dst, vL, sCol, vT, extra_rows_s=None):
    vR, vRow, vIn, vB = vT, vT + 1, vT + 2, vT + 3
    A(f"v_bfe_u32 {v(vR)}, {v(vL)}, 2, 2")
    A(f"v_lshrrev_b32 {v(vRow)}, 5, {v(vL)}")
    A(f"v_lshl_add_u32 {v(vRow)}, {v(vRow)}, 3, {v(vR)}")
    if extra_rows_s is not None: A(f"v_add_u32 {v(vRow)}, {s(extra_rows_s)}, {v(vRow)}")
    A(f"v_bfe_u32 {v(vIn)}, {v(vL)}, 4, 1")
    A(f"v_lshlrev_b32 {v(vIn)}, 5, {v(vIn)}")
    A(f"v_and_b32 {v(vB)}, 3, {v(vL)}")
    A(f"v_lshl_add_u32 {v(vIn)}, {v(vB)}, 3, {v(vIn)}")
    for j, (kind, b0, step) in enumerate(SLOTS[typ]):
        off, pitch, n = IMG[typ][kind]
        A(f"s_mul_i32 s64, {s(sCol)}, {step}")
        A(f"s_add_u32 s64, s64, {b0}")
        if n == 2:
            A(f"v_xor_b32 {v(vB)}, s64, {v(vR)}")
        else:
            A(f"v_lshrrev_b32 {v(vB)}, 1, {v(vR)}")
            A(f"v_xor_b32 {v(vB)}, s64, {v(vB)}")
        A(f"v_lshl_add_u32 {v(vB)}, {v(vB)}, 6, {v(vIn)}")
        A(f"v_mul_u32_u24 {v(dst[j])}, {pitch}, {v(vRow)}")
        A(f"v_add_u32 {v(dst[j])}, {v(dst[j])}, {v(vB)}")
        A(f"v_add_u32 {v(dst[j])}, {LDS_W + off}, {v(dst[j])}")

def gen(A, prefetch=None, variant="", extra_tail=None):
    SC = ' sc1' if 'plainst' not in variant else ''
    NTX = ' nt' if 'ntx' in variant else ''
    NTW = ' nt' if 'ntw' in variant else ''
    sX, sW, sG, sU, sWS = 8, 12, 16, 20, 24
    sWave, sRb, sCt, sT0, sT1, sT2, sT3, sI = 28, 29, 30, 31, 32, 33, 34, 35
    kernel_header(A, NAME)
    A("s_cmp_ge_u32 s2, 256")
    A("s_cbranch_scc1 L_k1_end")
    A(f"s_load_dwordx4 s[4:7], s[0:1], {K_X}")
    A(f"s_load_dwordx4 s[36:39], s[0:1], {K_WG}")
    A(f"s_load_dwordx2 s[40:41], s[0:1], {K_WS}")
    A("v_lshrrev_b32 v1, 6, v0")
    A("v_and_b32 v2, 63, v0")
    A(f"v_readfirstlane_b32 {s(sWave)}, v1")
    A.c("workgroup -> (row block, column tile): each XCD covers 8 row blocks x 4 column tiles")
    A(f"s_and_b32 {s(sT0)}, s2, 7")
    A(f"s_lshr_b32 {s(sT1)}, s2, 3")
    A(f"s_and_b32 {s(sRb)}, {s(sT0)}, 1")
    A(f"s_lshl_b32 {s(sRb)}, {s(sRb)}, 3")
    A(f"s_and_b32 {s(sT2)}, {s(sT1)}, 7")
    A(f"s_add_u32 {s(sRb)}, {s(sRb)}, {s(sT2)}")
    A(f"s_lshr_b32 {s(sCt)}, {s(sT0)}, 1")
    A(f"s_lshl_b32 {s(sCt)}, {s(sCt)}, 2")
    A(f"s_lshr_b32 {s(sT2)}, {s(sT1)}, 3")
    A(f"s_add_u32 {s(sCt)}, {s(sCt)}, {s(sT2)}")
    A(f"s_and_b32 {s(sI)}, {s(sCt)}, 7")
    A("s_waitcnt lgkmcnt(0)")
    srd(A, sX, 4, S * D * 2)
    srd(A, sW, 6, D * 3 * D * 2)
    srd(A, sG, 36, D * F * 2)
    srd(A, sU, 38, D * F * 2)
    srd(A, sWS, 40, WS_SIZE)
    vL = 2
    dbg_time(A, 0, sWave, 0, tag="k1")
    stamp(A, 0)
    if "tlb" in variant:
        A.c("touch every page of the buffers early so that address translation misses overlap")
        A(f"v_lshlrev_b32 v3, 19, {v(vL)}")
        for k, d in enumerate((sX, sW, sG, sU, sWS)):
            A(f"s_cmp_lg_u32 {s(sWave)}, {k}")
            A(f"s_cbranch_scc1 L_k1_tlb{k}")
            A(f"buffer_load_dword v31, v3, {s(d,4)}, 0 offen")
            A.label(f"L_k1_tlb{k}")
    if common.STAMPS:
        A(f"s_lshl_b32 s69, s2, 3")
        A(f"s_add_u32 s69, s69, {s(sWave)}")
    A(f"s_cmp_ge_u32 {s(sWave)}, 4")
    A("s_cbranch_scc1 L_k1_loader")

    vT, vHf = 3, 4
    vXa = [[5 + 4 * sg + k for k in range(4)] for sg in range(2)]
    vWa = [13, 14, 15, 16, 17]
    vSum, vSq = [18, 19], [20, 21]
    vU = [22, 23, 24, 25]
    vTmp = 26
    FX = lambda p, sg: 32 + 28 * p + 4 * sg
    FW = lambda p, j: 32 + 28 * p + 8 + 4 * j
    ACC = lambda j, sg: 96 + 32 * j + 16 * sg
    sWm, sWn, sTT0, sTT1 = 42, 43, 44, 45
    A(f"s_lshr_b32 {s(sWm)}, {s(sWave)}, 1")
    A(f"s_and_b32 {s(sWn)}, {s(sWave)}, 1")
    A(f"s_lshl_b32 {s(sT0)}, {s(sWm)}, 1")
    A(f"s_add_u32 {s(sTT0)}, {s(sT0)}, {s(sWn)}")
    A(f"s_xor_b32 {s(sTT1)}, {s(sTT0)}, 1")
    A(f"v_and_b32 {v(vT)}, 31, {v(vL)}")
    A(f"v_lshrrev_b32 {v(vHf)}, 5, {v(vL)}")
    A.c("x fragment addresses: t*128 + 16*((2s+h) ^ ((t>>1)&7)) + tile*4096")
    A(f"v_bfe_u32 {v(vTmp)}, {v(vT)}, 1, 3")
    A(f"v_xor_b32 {v(vTmp)}, {v(vTmp)}, {v(vHf)}")
    A(f"v_lshlrev_b32 {v(vTmp)}, 4, {v(vTmp)}")
    A(f"v_lshl_add_u32 {v(vTmp)}, {v(vT)}, 7, {v(vTmp)}")
    for sg, st in ((0, sTT0), (1, sTT1)):
        A(f"s_lshl_b32 {s(sT0)}, {s(st)}, 12")
        A(f"v_add_u32 {v(vXa[sg][0])}, {s(sT0)}, {v(vTmp)}")
        for k in range(1, 4):
            A(f"v_xor_b32 {v(vXa[sg][k])}, {32*k}, {v(vXa[sg][0])}")
    if "nopf" not in variant:
        A.c("every compute wave touches its share of x and of the three weight matrices, so that later copies find them on chip")
        A(f"s_lshl_b32 {s(sT0)}, s2, 2")
        A(f"s_add_u32 {s(sT0)}, {s(sT0)}, {s(sWave)}")
        A(f"v_lshlrev_b32 v25, 4, {v(vL)}")
        for d, nb in ((sW, D*3*D*2), (sG, D*F*2), (sU, D*F*2), (sX, S*D*2)):
            per = -(-nb // (1024 * 1024))
            A(f"s_mul_i32 {s(sT1)}, {s(sT0)}, {per*1024}")
            for i in range(per):
                A(f"buffer_load_dwordx4 v[88:91], v25, {s(d,4)}, {s(sT1)} offen offset:{i*1024}")
    for r in vSum + vSq: A(f"v_mov_b32 {v(r)}, 0")
    if "sdot" in variant: A(f"v_mov_b32 {v(vU[0])}, 0x3f803f80")
    for r in range(96, 256): A(f"v_mov_b32 {v(r)}, 0")

    def mainloop(typ):
        pitch = [IMG[typ][k][1] for (k, _, _) in SLOTS[typ]]
        tag = f"L_k1_loop{typ}"
        sXs, sWsl, sCnt, sDw, sDx = 50, 51, 52, 53, 63
        frag_addrs(A, typ, vWa, vL, sWn, vTmp)
        if prefetch: prefetch(A, f"k1_{typ}", tag, typ)
        def reads(p, sub):
            out = [f"ds_read_b128 {v(FX(p,sg),4)}, {v(vXa[sg][sub])}" for sg in range(2)]
            for j in range(5):
                for i in range(2):
                    out.append(f"ds_read_b64_tr_b16 {v(FW(p,j)+2*i,2)}, {v(vWa[j])} offset:{(16*(sub&1)+4*i)*pitch[j]}")
            return out
        if "prio" in variant: A("s_setprio 2")
        A("s_barrier")
        stamp(A, 2)
        dbg_time(A, 1, sWave, 0, tag=f"k1t{typ}")
        for ln in reads(0, 0): A(ln)
        A(f"s_mov_b32 {s(sXs)}, 0")
        A(f"s_mov_b32 {s(sWsl)}, 0")
        A(f"s_mov_b32 {s(sCnt)}, 10")
        A(".p2align 3")
        A.label(tag)
        if "trips" in variant:
            A("s_memtime s[66:67]")
            A("s_waitcnt lgkmcnt(0)")
            A("s_sub_u32 s66, s66, s80")
            A("v_mov_b32 v26, s66")
            A(f"s_lshl_b32 s67, s69, 6")
            A(f"s_sub_u32 s66, 10, {s(sCnt)}")
            A("s_lshl_b32 s66, s66, 2")
            A("s_add_u32 s67, s67, s66")
            A(f"s_add_u32 s67, s67, {WS_STAMP + 0x40000}")
            A("v_mov_b32 v27, 0")
            A(f"buffer_store_dword v26, v27, {s(sWS,4)}, s67 offen")
        for n in range(4):
            p = n & 1; nn = (n + 1) & 3
            if n & 1: A("s_barrier")
            mf = lambda j, sg: f"v_mfma_f32_32x32x16_bf16 {v(ACC(j,sg),16)}, {v(FW(p,j),4)}, {v(FX(p,sg),4)}, {v(ACC(j,sg),16)}"
            st = []
            for k in range(4):
                r = FX(p, 0) + k; lo, hi = vU[2 * (k & 1)], vU[2 * (k & 1) + 1]
                st += [f"v_lshlrev_b32 {v(lo)}, 16, {v(r)}", f"v_and_b32 {v(hi)}, 0xffff0000, {v(r)}",
                       f"v_add_f32 {v(vSum[0])}, {v(vSum[0])}, {v(lo)}", f"v_add_f32 {v(vSum[1])}, {v(vSum[1])}, {v(hi)}",
                       f"v_fmac_f32 {v(vSq[0])}, {v(lo)}, {v(lo)}", f"v_fmac_f32 {v(vSq[1])}, {v(hi)}, {v(hi)}"]
            if "sdot" in variant:
                st = []
                for k in range(4):
                    st += [f"v_dot2c_f32_bf16 {v(vSum[0])}, {v(FX(p,0)+k)}, {v(vU[0])}", f"v_dot2c_f32_bf16 {v(vSq[0])}, {v(FX(p,0)+k)}, {v(FX(p,0)+k)}"]
            rd = reads(1 - p, nn)
            gap = {m: [] for m in range(10)}
            updx = lambda k: [f"v_add_u32 {v(vXa[sg][k])}, {s(sDx)}, {v(vXa[sg][k])}" for sg in range(2)]
            updw = lambda j: [f"v_add_u32 {v(vWa[j])}, {s(sDw)}, {v(vWa[j])}"]
            if n == 3: gap[0] += updx(0)
            gap[0] += rd[0:2]
            for j in range(5):
                m = 1 + 2 * j
                if n & 1: gap[m] += updw(j)
                gap[m] += rd[2 + 2 * j: 4 + 2 * j]
            tail = []
            if n == 3:
                for k in range(1, 4): tail += updx(k)
            if n & 1 == 0:
                tail += [f"s_add_u32 {s(sT0)}, {s(sWsl)}, {WSZ}", f"s_cmp_eq_u32 {s(sT0)}, {NWS*WSZ}", f"s_cselect_b32 {s(sT0)}, 0, {s(sT0)}",
                         f"s_sub_u32 {s(sDw)}, {s(sT0)}, {s(sWsl)}", f"s_mov_b32 {s(sWsl)}, {s(sT0)}"]
                if n == 2:
                    tail += [f"s_add_u32 {s(sT0)}, {s(sXs)}, {XS}", f"s_cmp_eq_u32 {s(sT0)}, {NXS*XS}", f"s_cselect_b32 {s(sT0)}, 0, {s(sT0)}",
                             f"s_sub_u32 {s(sDx)}, {s(sT0)}, {s(sXs)}", f"s_mov_b32 {s(sXs)}, {s(sT0)}"]
            fill = st + tail
            quota = {m: 0 for m in range(10)}
            room = {m: max(0, 5 - len(gap[m])) for m in range(10)}
            left = len(fill)
            while left:
                progressed = False
                for m in range(10):
                    if left and quota[m] < room[m]:
                        quota[m] += 1; left -= 1; progressed = True
                if not progressed:
                    for m in range(10):
                        if left: quota[m] += 1; left -= 1
            fi = 0
            for m, (j, sg) in enumerate([(j, sg) for j in range(5) for sg in range(2)]):
                if sg == 0: A(f"s_waitcnt lgkmcnt({8 if j == 0 else 10})")
                A(mf(j, sg))
                for ln in gap[m]: A(ln)
                for ln in fill[fi:fi + quota[m]]: A(ln)
                fi += quota[m]
        A(f"s_sub_u32 {s(sCnt)}, {s(sCnt)}, 1")
        A(f"s_cmp_lg_u32 {s(sCnt)}, 0")
        A(f"s_cbranch_scc1 {tag}")

    A(f"s_cmp_ge_u32 {s(sCt)}, 8")
    A("s_cbranch_scc1 L_k1_main1")
    mainloop(0)
    A("s_branch L_k1_post")
    A.label("L_k1_main1")
    mainloop(1)
    A.label("L_k1_post")
    dbg_time(A, 2, sWave, 0, tag="k1")
    stamp(A, 3)

    t0, t1 = vTmp, vTmp + 1
    A("s_waitcnt vmcnt(0) lgkmcnt(0)")
    A("s_nop 2")
    A(f"v_add_f32 {v(vSum[0])}, {v(vSum[0])}, {v(vSum[1])}")
    A(f"v_add_f32 {v(vSq[0])}, {v(vSq[0])}, {v(vSq[1])}")
    A(f"s_lshl_b32 {s(sT0)}, {s(sTT0)}, 8")
    A(f"s_add_u32 {s(sT0)}, {s(sT0)}, {LDS_STATS}")
    A(f"v_mov_b32 v32, {v(vSum[0])}")
    A(f"v_mov_b32 v33, {v(vSq[0])}")
    A(f"v_lshl_add_u32 {v(t0)}, {v(vT)}, 3, {s(sT0)}")
    A("s_nop 0")
    A(f"v_permlane32_swap_b32 {v(vSum[0])}, v32")
    A(f"v_permlane32_swap_b32 {v(vSq[0])}, v33")
    A("s_nop 0")
    A(f"v_add_f32 {v(vSum[0])}, {v(vSum[0])}, v32")
    A(f"v_add_f32 {v(vSq[0])}, {v(vSq[0])}, v33")
    vMu, vRs = 40, 41
    A(f"v_mul_f32 {v(vMu)}, {f32bits(1.0/D):#x}, {v(vSum[0])}")
    A(f"v_mul_f32 {v(t1)}, {f32bits(1.0/D):#x}, {v(vSq[0])}")
    A(f"v_fma_f32 {v(t1)}, -{v(vMu)}, {v(vMu)}, {v(t1)}")
    A(f"v_max_f32 {v(t1)}, 0, {v(t1)}")
    A(f"v_add_f32 {v(t1)}, {f32bits(1e-5):#x}, {v(t1)}")
    A(f"v_rsq_f32 {v(vRs)}, {v(t1)}")
    A("s_nop 0")
    A(f"ds_write_b64 {v(t0)}, {v(vMu,2)}")
    A("s_waitcnt lgkmcnt(0)")
    A("s_barrier")
    stamp(A, 4)
    ST = [6, 8]
    for sg, st in ((0, sTT0), (1, sTT1)):
        A(f"s_lshl_b32 {s(sT0)}, {s(st)}, 8")
        A(f"s_add_u32 {s(sT0)}, {s(sT0)}, {LDS_STATS}")
        A(f"v_lshl_add_u32 {v(t0)}, {v(vT)}, 3, {s(sT0)}")
        A(f"ds_read_b64 {v(ST[sg],2)}, {v(t0)}")
    vCsA = 5
    A(f"s_mul_i32 {s(sT0)}, {s(sWn)}, 640")
    A(f"s_add_u32 {s(sT0)}, {s(sT0)}, {LDS_CS}")
    A(f"v_lshl_add_u32 {v(vCsA)}, {v(vHf)}, 4, {s(sT0)}")
    NMU = [10, 12]; RF = [14, 16]; TM = 18; PK = 26
    CS = lambda u, g: 32 + 16 * u + 4 * g
    def load_cs(j, u):
        for g in range(4): A(f"ds_read_b128 {v(CS(u,g),4)}, {v(vCsA)} offset:{128*j + 32*g}")
    vQo, vLin = 30, 31
    A(f"v_lshlrev_b32 {v(vQo)}, 3, {v(vT)}")
    A(f"v_lshl_add_u32 {v(vQo)}, {v(vHf)}, 14, {v(vQo)}")
    A(f"v_lshlrev_b32 {v(vLin)}, 4, {v(vL)}")
    sTok = [54, 55]; sHb = [56, 57]; sU0, sFac = 58, 59
    for sg, st in ((0, sTT0), (1, sTT1)):
        A(f"s_lshl_b32 {s(sT0)}, {s(sRb)}, 2")
        A(f"s_add_u32 {s(sT0)}, {s(sT0)}, {s(st)}")
        A(f"s_lshl_b32 {s(sTok[sg])}, {s(sT0)}, 8")
        A(f"s_add_u32 {s(sTok[sg])}, {s(sTok[sg])}, {WS_QKV}")
        A(f"s_mul_i32 {s(sHb[sg])}, {s(sT0)}, {96*1024}")
        A(f"s_add_u32 {s(sHb[sg])}, {s(sHb[sg])}, {WS_H}")
    A("s_waitcnt lgkmcnt(0)")
    for sg in range(2):
        A(f"v_sub_f32 {v(NMU[sg])}, 0, {v(ST[sg])}")
        A(f"v_mov_b32 {v(RF[sg])}, {v(ST[sg]+1)}")
        A(f"v_mul_f32 {v(RF[sg]+1)}, {f32bits(-LOG2E):#x}, {v(ST[sg]+1)}")

    def q_tile(j, u):
        A(f"s_cmp_lt_u32 {s(sU0)}, 160")
        A(f"s_cselect_b32 {s(sFac)}, {f32bits(QSCALE):#x}, 1.0")
        A(f"s_lshl_b32 {s(sT1)}, {s(sU0)}, 14")
        QF = [20, 22]
        for sg in range(2): A(f"v_mul_f32 {v(QF[sg])}, {s(sFac)}, {v(ST[sg]+1)}")
        for g in range(4):
            for sg in range(2):
                acc = ACC(j, sg) + 4 * g
                for e in range(2):
                    A(f"v_pk_fma_f32 {v(acc+2*e,2)}, {v(CS(u,g)+2*e,2)}, {v(NMU[sg],2)}, {v(acc+2*e,2)} op_sel_hi:[1,0,1]")
            for sg in range(2):
                acc = ACC(j, sg) + 4 * g
                for e in range(2):
                    A(f"v_pk_mul_f32 {v(acc+2*e,2)}, {v(acc+2*e,2)}, {v(QF[sg],2)} op_sel_hi:[1,0]")
            for sg in range(2):
                acc = ACC(j, sg) + 4 * g
                for e in range(2):
                    A(f"v_cvt_pk_bf16_f32 {v(acc+e)}, {v(acc+2*e)}, {v(acc+2*e+1)}")
            for sg in range(2):
                A(f"s_add_u32 {s(sT0)}, {s(sT1)}, {s(sTok[sg])}")
                A(f"s_add_u32 {s(sT0)}, {s(sT0)}, {2*g*PLANE}")
                A(f"buffer_store_dwordx2 {v(ACC(j,sg)+4*g,2)}, {v(vQo)}, {s(sWS,4)}, {s(sT0)} offen{SC}")

    def gu_pair(jg, ju, step_s):
        for sg in range(2):
            g0, u0 = ACC(jg, sg), ACC(ju, sg)
            for g in range(4):
                for e in range(2):
                    A(f"v_pk_fma_f32 {v(g0+4*g+2*e,2)}, {v(CS(0,g)+2*e,2)}, {v(NMU[sg],2)}, {v(g0+4*g+2*e,2)} op_sel_hi:[1,0,1]")
                    A(f"v_pk_fma_f32 {v(u0+4*g+2*e,2)}, {v(CS(1,g)+2*e,2)}, {v(NMU[sg],2)}, {v(u0+4*g+2*e,2)} op_sel_hi:[1,0,1]")
            for half in range(2):
                o = 8 * half
                for e in range(4):
                    A(f"v_pk_mul_f32 {v(TM+2*e,2)}, {v(g0+o+2*e,2)}, {v(RF[sg],2)} op_sel:[0,1] op_sel_hi:[1,1]")
                for e in range(4):
                    A(f"v_pk_mul_f32 {v(g0+o+2*e,2)}, {v(g0+o+2*e,2)}, {v(RF[sg],2)} op_sel_hi:[1,0]")
                for e in range(8): A(f"v_exp_f32 {v(TM+e)}, {v(TM+e)}")
                for e in range(4):
                    A(f"v_pk_mul_f32 {v(u0+o+2*e,2)}, {v(u0+o+2*e,2)}, {v(RF[sg],2)} op_sel_hi:[1,0]")
                for e in range(4):
                    A(f"v_pk_add_f32 {v(TM+2*e,2)}, {v(TM+2*e,2)}, 1.0 op_sel_hi:[1,0]")
                for e in range(4):
                    A(f"v_pk_mul_f32 {v(u0+o+2*e,2)}, {v(u0+o+2*e,2)}, {v(g0+o+2*e,2)}")
                for e in range(8): A(f"v_rcp_f32 {v(TM+e)}, {v(TM+e)}")
                A(f"s_add_u32 {s(sT0)}, {s(step_s)}, {half}")
                A(f"s_lshl_b32 {s(sT0)}, {s(sT0)}, 10")
                A(f"s_add_u32 {s(sT0)}, {s(sT0)}, {s(sHb[sg])}")
                for e in range(4):
                    A(f"v_pk_mul_f32 {v(u0+o+2*e,2)}, {v(u0+o+2*e,2)}, {v(TM+2*e,2)}")
                for e in range(4):
                    A(f"v_cvt_pk_bf16_f32 {v(g0+o+e)}, {v(u0+o+2*e)}, {v(u0+o+2*e+1)}")
                A(f"buffer_store_dwordx4 {v(g0+o,4)}, {v(vLin)}, {s(sWS,4)}, {s(sT0)} offen{SC}")

    sStep = 60
    A(f"s_cmp_ge_u32 {s(sCt)}, 8")
    A("s_cbranch_scc1 L_k1_epi1")
    A.c("type A: unit 16i + 8wn, gate tiles at step 8i + 4wn + 2e")
    load_cs(0, 2)
    load_cs(1, 0); load_cs(2, 1)
    A(f"s_lshl_b32 {s(sU0)}, {s(sI)}, 4")
    A(f"s_lshl_b32 {s(sT0)}, {s(sWn)}, 3")
    A(f"s_add_u32 {s(sU0)}, {s(sU0)}, {s(sT0)}")
    A(f"s_lshr_b32 {s(sStep)}, {s(sU0)}, 1")
    A("s_waitcnt lgkmcnt(8)")
    q_tile(0, 2)
    A("s_waitcnt lgkmcnt(0)")
    gu_pair(1, 2, sStep)
    load_cs(3, 0); load_cs(4, 1)
    A(f"s_add_u32 {s(sStep)}, {s(sStep)}, 2")
    A("s_waitcnt lgkmcnt(0)")
    gu_pair(3, 4, sStep)
    A("s_branch L_k1_done")
    A.label("L_k1_epi1")
    A.c("type B: units 128 + 48i + 24wn + 8q (only below 480), gate tile at step 64 + 4i + 2wn")
    load_cs(0, 2)
    load_cs(3, 0); load_cs(4, 1)
    A(f"s_mul_i32 {s(sU0)}, {s(sI)}, 48")
    A(f"s_mul_i32 {s(sT0)}, {s(sWn)}, 24")
    A(f"s_add_u32 {s(sU0)}, {s(sU0)}, {s(sT0)}")
    A(f"s_add_u32 {s(sU0)}, {s(sU0)}, 128")
    A(f"s_lshl_b32 {s(sStep)}, {s(sI)}, 2")
    A(f"s_lshl_b32 {s(sT0)}, {s(sWn)}, 1")
    A(f"s_add_u32 {s(sStep)}, {s(sStep)}, {s(sT0)}")
    A(f"s_add_u32 {s(sStep)}, {s(sStep)}, 64")
    A("s_waitcnt lgkmcnt(0)")
    gu_pair(3, 4, sStep)
    for q in range(3):
        A(f"s_cmp_ge_u32 {s(sU0)}, 480")
        A("s_cbranch_scc1 L_k1_done")
        if q:
            load_cs(q, 2)
            A("s_waitcnt lgkmcnt(0)")
        q_tile(q, 2)
        A(f"s_add_u32 {s(sU0)}, {s(sU0)}, 8")
    A.label("L_k1_done")
    dbg_time(A, 3, sWave, 0, tag="k1")
    stamp(A, 5)
    if common.STAMPS: A("s_waitcnt vmcnt(0)")
    stamp(A, 6)
    stamp_flush(A, 7, 69, sWS, 22)
    A("s_endpgm")

    A.label("L_k1_loader")
    sLw, sXo, sWo, sGo, sMx, sXsl, sWsl2, sCsl, sPair, sXk, sWk, sSp, sHalf = 42, 43, 44, 45, 46, 47, 48, 49, 50, 51, 52, 53, 54
    vXe, vXo = 3, 4
    vQ = [5, 6, 7]; vG = 8
    A(f"s_sub_u32 {s(sLw)}, {s(sWave)}, 4")
    if "hprio" in variant: A("s_setprio 3")
    A.c("x pieces: 8 rows x 128 B, granule p of row t holds source granule p ^ ((t>>1)&7)")
    A(f"v_lshrrev_b32 v10, 3, {v(vL)}")
    A(f"v_mul_u32_u24 v10, 1280, v10")
    A(f"v_and_b32 v11, 7, {v(vL)}")
    A(f"v_lshrrev_b32 v12, 4, {v(vL)}")
    A(f"v_xor_b32 v11, v11, v12")
    A(f"v_lshl_add_u32 {v(vXe)}, v11, 4, v10")
    A(f"v_xor_b32 v11, 4, v11")
    A(f"v_lshl_add_u32 {v(vXo)}, v11, 4, v10")
    A(f"s_lshl_b32 {s(sT0)}, {s(sRb)}, 7")
    A(f"s_lshl_b32 {s(sT1)}, {s(sLw)}, 5")
    A(f"s_add_u32 {s(sT0)}, {s(sT0)}, {s(sT1)}")
    A(f"s_mul_i32 {s(sXo)}, {s(sT0)}, 1280")
    A(f"s_lshl_b32 {s(sMx)}, {s(sLw)}, 12")
    A(f"s_add_u32 {s(sMx)}, {s(sMx)}, {LDS_X}")
    for r in (sXsl, sWsl2, sCsl): A(f"s_mov_b32 {s(r)}, 0")
    A.c("rotated k order: workgroups that share rows or columns start at different chunks")
    if "rot" in variant.split(","):
        A(f"s_and_b32 {s(sT0)}, {s(sCt)}, 3")
        A(f"s_mul_i32 {s(sT1)}, {s(sT0)}, 5")
        A(f"s_lshr_b32 {s(sT1)}, {s(sT1)}, 1")
        A(f"s_lshr_b32 {s(sT0)}, {s(sCt)}, 2")
        A(f"s_add_u32 {s(sT1)}, {s(sT1)}, {s(sT0)}")
        A(f"s_add_u32 {s(sT1)}, {s(sT1)}, {s(sRb)}")
        A(f"s_mul_i32 {s(sT0)}, {s(sT1)}, 205")
        A(f"s_lshr_b32 {s(sT0)}, {s(sT0)}, 11")
        A(f"s_mul_i32 {s(sT0)}, {s(sT0)}, 10")
        A(f"s_sub_u32 {s(sXk)}, {s(sT1)}, {s(sT0)}")
    else:
        A(f"s_mov_b32 {s(sXk)}, 0")
    A(f"s_lshl_b32 {s(sWk)}, {s(sXk)}, 1")
    A(f"s_lshl_b32 {s(sT0)}, {s(sXk)}, 7")
    A(f"s_add_u32 {s(sXo)}, {s(sXo)}, {s(sT0)}")
    A(f"s_and_b32 {s(sSp)}, {s(sLw)}, 1")
    A(f"s_lshr_b32 {s(sHalf)}, {s(sLw)}, 1")

    def lane_offsets(n, pitchg, dst):
        if n == 1:
            A(f"v_lshrrev_b32 v10, 3, {v(vL)}")
            A(f"v_bfe_u32 v11, v10, 1, 1")
            A(f"v_lshlrev_b32 v11, 2, v11")
            A(f"v_and_b32 v12, 7, {v(vL)}")
            A(f"v_xor_b32 v12, v12, v11")
            A(f"v_mul_u32_u24 v10, {pitchg}, v10")
            A(f"v_lshl_add_u32 {v(dst[0])}, v12, 4, v10")
        elif n == 2:
            A(f"v_lshrrev_b32 v10, 4, {v(vL)}")
            A(f"v_lshlrev_b32 v11, 2, v10")
            A(f"v_and_b32 v12, 15, {v(vL)}")
            A(f"v_xor_b32 v12, v12, v11")
            A(f"v_mul_u32_u24 v10, {pitchg}, v10")
            A(f"v_lshl_add_u32 {v(dst[0])}, v12, 4, v10")
        else:
            for e in range(3):
                A(f"v_add_u32 v10, {64*e}, {v(vL)}")
                A(f"v_mul_u32_u24 v11, 43691, v10")
                A(f"v_lshrrev_b32 v11, 20, v11")
                A(f"v_mul_u32_u24 v12, 24, v11")
                A(f"v_sub_u32 v12, v10, v12")
                A(f"v_bfe_u32 v13, v11, 1, 1")
                A(f"v_lshlrev_b32 v13, 2, v13")
                A(f"v_xor_b32 v12, v12, v13")
                A(f"v_mul_u32_u24 v11, {pitchg}, v11")
                A(f"v_lshl_add_u32 {v(dst[e])}, v12, 4, v11")

    def wrap(r, step, n):
        return [f"s_add_u32 {s(r)}, {s(r)}, {step}", f"s_cmp_eq_u32 {s(r)}, {step*n}", f"s_cselect_b32 {s(r)}, 0, {s(r)}"]

    ACS = [16, 17, 18, 19, 20]; ACH = [21, 22, 23, 14, 15]
    FB = lambda j: 24 + 4 * j
    vCa = [44, 45, 46, 47, 48]
    UP = [50, 51, 52, 53]; vOn = 54
    A4 = lambda j: 64 + 4 * j; vOn2 = 84

    def loader(typ):
        T = f"t{typ}"
        qoff, qp, qn = IMG[typ]["q"]; goff, gp, gn = IMG[typ]["g"]; uoff = IMG[typ]["u"][0]
        lane_offsets(qn, 3840, vQ)
        lane_offsets(gn, 3072, [vG])
        A.c("global offsets of this loader's 8 rows")
        A(f"s_mul_i32 {s(sWo)}, {s(sLw)}, {8*3840}")
        A(f"s_mul_i32 {s(sGo)}, {s(sLw)}, {8*3072}")
        if typ == 0:
            A(f"s_lshl_b32 {s(sT0)}, {s(sI)}, 7"); A(f"s_lshl_b32 {s(sT1)}, {s(sI)}, 8")
        else:
            A(f"s_mul_i32 {s(sT0)}, {s(sI)}, 384"); A(f"s_add_u32 {s(sT0)}, {s(sT0)}, 1024")
            A(f"s_lshl_b32 {s(sT1)}, {s(sI)}, 7"); A(f"s_add_u32 {s(sT1)}, {s(sT1)}, 2048")
        A(f"s_add_u32 {s(sWo)}, {s(sWo)}, {s(sT0)}")
        A(f"s_add_u32 {s(sGo)}, {s(sGo)}, {s(sT1)}")
        A(f"s_mul_i32 {s(sT0)}, {s(sWk)}, {32*3840}")
        A(f"s_add_u32 {s(sWo)}, {s(sWo)}, {s(sT0)}")
        A(f"s_mul_i32 {s(sT0)}, {s(sWk)}, {32*3072}")
        A(f"s_add_u32 {s(sGo)}, {s(sGo)}, {s(sT0)}")
        sMq, sMg, sB1, sB2 = 55, 56, 57, 58
        A(f"s_mul_i32 {s(sMq)}, {s(sLw)}, {8*qp}")
        A(f"s_add_u32 {s(sMq)}, {s(sMq)}, {LDS_W + qoff}")
        A(f"s_mul_i32 {s(sMg)}, {s(sLw)}, {8*gp}")
        A(f"s_add_u32 {s(sMg)}, {s(sMg)}, {LDS_W + goff}")
        def x_groups():
            g = []
            for ii in range(4):
                pre = [f"s_add_u32 {s(sB1)}, {s(sMx)}, {s(sXsl)}"] if ii == 0 else []
                g.append(pre + [f"s_add_u32 m0, {s(sB1)}, {ii*1024}", f"s_add_u32 {s(sT0)}, {s(sXo)}, {ii*10240}",
                                f"buffer_load_dwordx4 {v(vXo if ii & 1 else vXe)}, {s(sX,4)}, {s(sT0)} offen{NTX} lds"])
            g[-1] += [f"s_add_u32 {s(sXo)}, {s(sXo)}, 128", f"s_add_u32 {s(sXk)}, {s(sXk)}, 1", f"s_cmp_eq_u32 {s(sXk)}, 10",
                      f"s_cselect_b32 {s(sT0)}, 1280, 0", f"s_cselect_b32 {s(sXk)}, 0, {s(sXk)}",
                      f"s_sub_u32 {s(sXo)}, {s(sXo)}, {s(sT0)}"] + wrap(sXsl, XS, NXS)
            return g
        def w_groups():
            g = []
            for e in range(qn):
                pre = [f"s_add_u32 {s(sB1)}, {s(sMq)}, {s(sWsl2)}", f"s_add_u32 {s(sB2)}, {s(sMg)}, {s(sWsl2)}"] if e == 0 else []
                g.append(pre + [f"s_add_u32 m0, {s(sB1)}, {e*1024}", "s_nop 0",
                                f"buffer_load_dwordx4 {v(vQ[e] if qn == 3 else vQ[0])}, {s(sW,4)}, {s(sWo)} offen{NTW} lds"])
            for desc, off in ((sG, 0), (sU, uoff - goff)):
                for e in range(gn):
                    g.append([f"s_add_u32 m0, {s(sB2)}, {off + e*1024}", f"s_add_u32 {s(sT0)}, {s(sGo)}, {e*4*3072}",
                              f"buffer_load_dwordx4 {v(vG)}, {s(desc,4)}, {s(sT0)} offen{NTW} lds"])
            g[-1] += [f"s_add_u32 {s(sWo)}, {s(sWo)}, {32*3840}", f"s_add_u32 {s(sGo)}, {s(sGo)}, {32*3072}",
                      f"s_add_u32 {s(sWk)}, {s(sWk)}, 1", f"s_cmp_eq_u32 {s(sWk)}, 20",
                      f"s_cselect_b32 {s(sT0)}, {640*3840}, 0", f"s_cselect_b32 {s(sT1)}, {640*3072}, 0", f"s_cselect_b32 {s(sWk)}, 0, {s(sWk)}",
                      f"s_sub_u32 {s(sWo)}, {s(sWo)}, {s(sT0)}", f"s_sub_u32 {s(sGo)}, {s(sGo)}, {s(sT1)}"] + wrap(sWsl2, WSZ, NWS)
            return g
        def emit(groups):
            for g in groups:
                for ln in g: A(ln)
        if "fine" in variant: stamp(A, 4)
        emit(x_groups()[:1])
        if "fine" in variant: stamp(A, 3)
        emit(x_groups()[1:] + w_groups())
        A.c("column sums: loader (step parity lw&1, wave column lw>>1) adds the fragments of five column tiles along k")
        A(f"s_lshl_b32 {s(sT2)}, {s(sSp)}, 4")
        frag_addrs(A, typ, vCa, vL, sHalf, 56, extra_rows_s=sT2)
        pitch = [IMG[typ][k][1] for (k, _, _) in SLOTS[typ]]
        for r in ACS + ACH: A(f"v_mov_b32 {v(r)}, 0")
        A(f"v_mov_b32 {v(vOn)}, 0x3f803f80")
        if "cs44" in variant:
            for r in range(64, 84): A(f"v_mov_b32 {v(r)}, 0")
            A(f"v_mov_b32 {v(vOn2)}, 0x3f803f80"); A(f"v_mov_b32 {v(vOn2+1)}, 0x3f803f80")
        def interval(groups):
            if "nocs" in variant:
                emit(groups); return
            for j in range(5):
                A(f"v_add_u32 v10, {s(sCsl)}, {v(vCa[j])}")
                A(f"ds_read_b64_tr_b16 {v(FB(j),2)}, v10")
                A(f"ds_read_b64_tr_b16 {v(FB(j)+2,2)}, v10 offset:{4*pitch[j]}")
            for ln in wrap(sCsl, WSZ, NWS): A(ln)
            work = []
            for j in range(5):
                w = [f"s_waitcnt lgkmcnt({8-2*j})"]
                for k in range(4):
                    lo, hi = UP[2 * (k & 1)], UP[2 * (k & 1) + 1]
                    if "csvalu" in variant:
                        w += [f"v_lshlrev_b32 {v(lo)}, 16, {v(FB(j)+k)}", f"v_and_b32 {v(hi)}, 0xffff0000, {v(FB(j)+k)}",
                              f"v_add_f32 {v(ACS[j])}, {v(ACS[j])}, {v(lo)}", f"v_add_f32 {v(ACH[j])}, {v(ACH[j])}, {v(hi)}"]
                    elif "cs44" in variant:
                        if k & 1 == 0: w += [f"v_mfma_f32_4x4x4_16b_bf16 {v(A4(j),4)}, {v(FB(j)+k,2)}, {v(vOn2,2)}, {v(A4(j),4)}"]
                    else:
                        w += [f"v_dot2c_f32_bf16 {v(ACS[j] if k & 1 else ACH[j])}, {v(FB(j)+k)}, {v(vOn)}"]
                work.append(w)
            groups = list(groups)
            if "interleave" not in variant:
                emit(groups)
                A("s_waitcnt lgkmcnt(0)")
                for k in range(2 if "cs44" in variant else 4):
                    for j in range(5): A(work[j][1 + k]) if "csvalu" not in variant else None
                if "csvalu" not in variant: return
                groups = []
            if groups: emit([groups.pop(0)])
            while work or groups:
                if work:
                    for ln in work.pop(0): A(ln)
                take = 1 if len(groups) <= len(work) + 1 else 2
                for _ in range(take):
                    if groups: emit([groups.pop(0)])
        def bar(cnt, st=None):
            A(f"s_waitcnt vmcnt({cnt})")
            if st is not None: stamp(A, st)
            A("s_barrier")
        stamp(A, 1)
        bar(0, 2)
        interval(w_groups() + x_groups() + w_groups())
        bar(9, None if 'fine' in variant else 3)
        interval(w_groups() + x_groups() + w_groups())
        A(f"s_mov_b32 {s(sPair)}, 7")
        A.label(f"L_k1_lpair{T}")
        bar(14)
        interval(w_groups())
        bar(14)
        interval(x_groups() + w_groups())
        A(f"s_sub_u32 {s(sPair)}, {s(sPair)}, 1")
        A(f"s_cmp_lg_u32 {s(sPair)}, 0")
        A(f"s_cbranch_scc1 L_k1_lpair{T}")
        bar(14)
        interval(w_groups())
        bar(14)
        interval([])
        bar(5)
        interval([])
        bar(0, 5)
        interval([])

    A(f"s_cmp_ge_u32 {s(sCt)}, 8")
    A("s_cbranch_scc1 L_k1_loader1")
    loader(0)
    A("s_branch L_k1_lsum")
    A.label("L_k1_loader1")
    loader(1)
    A.label("L_k1_lsum")
    A.c("combine the k halves and the two step parities; array order [wave column][slot][32]")
    A("s_nop 7")
    if "cs44" in variant:
        A.c("lane l takes register l&3 of its block: the sum of row l")
        A(f"v_and_b32 v10, 3, {v(vL)}")
        for j in range(5):
            A(f"v_mov_b32 {v(ACS[j])}, {v(A4(j))}")
        for i in range(1, 4):
            A(f"v_cmp_eq_u32 vcc, {i}, v10")
            A("s_nop 1")
            for j in range(5): A(f"v_cndmask_b32 {v(ACS[j])}, {v(ACS[j])}, {v(A4(j)+i)}, vcc")
    else:
        for j in range(5): A(f"v_add_f32 {v(ACS[j])}, {v(ACS[j])}, {v(ACH[j])}")
    for j in range(5): A(f"v_mov_b32 {v(FB(0)+j)}, {v(ACS[j])}")
    A("s_nop 1")
    for j in range(5): A(f"v_permlane32_swap_b32 {v(ACS[j])}, {v(FB(0)+j)}")
    A("s_nop 0")
    for j in range(5): A(f"v_add_f32 {v(ACS[j])}, {v(ACS[j])}, {v(FB(0)+j)}")
    A(f"v_and_b32 v10, 31, {v(vL)}")
    A(f"v_lshlrev_b32 v10, 2, v10")
    A(f"s_mul_i32 {s(sT0)}, {s(sHalf)}, 640")
    A(f"s_add_u32 {s(sT0)}, {s(sT0)}, {LDS_CS}")
    A(f"v_add_u32 v10, {s(sT0)}, v10")
    A(f"s_cmp_eq_u32 {s(sSp)}, 0")
    A("s_cbranch_scc0 L_k1_cs3")
    for j in range(5): A(f"ds_write_b32 v10, {v(ACS[j])} offset:{128*j}")
    A("s_waitcnt lgkmcnt(0)")
    A("s_barrier")
    A("s_branch L_k1_cs4")
    A.label("L_k1_cs3")
    A("s_barrier")
    for j in range(5): A(f"ds_read_b32 {v(FB(0)+j)}, v10 offset:{128*j}")
    A("s_waitcnt lgkmcnt(0)")
    for j in range(5): A(f"v_add_f32 {v(ACS[j])}, {v(ACS[j])}, {v(FB(0)+j)}")
    for j in range(5): A(f"ds_write_b32 v10, {v(ACS[j])} offset:{128*j}")
    A("s_waitcnt lgkmcnt(0)")
    A.label("L_k1_cs4")
    A("s_barrier")
    if extra_tail: extra_tail(A, sWS, sLw, sRb, sCt, vL)
    stamp(A, 6)
    stamp_flush(A, 7, 69, sWS, 60)
    A.label("L_k1_end")
    A("s_endpgm")
    return NAME, 512, LDS_BYTES, descriptor(NAME, NV, nsgpr=102 if common.DBGT else 96)
```

```python
from common import *
import common

NAME = "proj_kernel"
XS, WSZ = 16384, 20480
NXS, NWS = 3, 5
LDS_X = 0
LDS_W = NXS * XS
LDS_STATS = LDS_W + NWS * WSZ
LDS_CS = LDS_STATS + 1024
LDS_SIG = LDS_CS + 1280
LDS_BYTES = LDS_SIG + 64
WS_PART = WS_XN
WS_STAT = WS_XN + 0x80000
NV = 256
IMG = {0: dict(q=(0, 128, 1), g=(4096, 256, 2), u=(12288, 256, 2)),
       1: dict(q=(0, 384, 3), g=(12288, 128, 1), u=(16384, 128, 1))}
SLOTS = {0: [("q", 0, 1), ("g", 0, 2), ("u", 0, 2), ("g", 1, 2), ("u", 1, 2)],
         1: [("q", 0, 3), ("q", 1, 3), ("q", 2, 3), ("g", 0, 1), ("u", 0, 1)]}

def frag_addrs(A, typ, dst, vL, sCol, vT, extra_rows_s=None):
    vR, vRow, vIn, vB = vT, vT + 1, vT + 2, vT + 3
    A(f"v_bfe_u32 {v(vR)}, {v(vL)}, 2, 2")
    A(f"v_lshrrev_b32 {v(vRow)}, 5, {v(vL)}")
    A(f"v_lshl_add_u32 {v(vRow)}, {v(vRow)}, 3, {v(vR)}")
    if extra_rows_s is not None: A(f"v_add_u32 {v(vRow)}, {s(extra_rows_s)}, {v(vRow)}")
    A(f"v_bfe_u32 {v(vIn)}, {v(vL)}, 4, 1")
    A(f"v_lshlrev_b32 {v(vIn)}, 5, {v(vIn)}")
    A(f"v_and_b32 {v(vB)}, 3, {v(vL)}")
    A(f"v_lshl_add_u32 {v(vIn)}, {v(vB)}, 3, {v(vIn)}")
    for j, (kind, b0, step) in enumerate(SLOTS[typ]):
        off, pitch, n = IMG[typ][kind]
        A(f"s_mul_i32 s64, {s(sCol)}, {step}")
        A(f"s_add_u32 s64, s64, {b0}")
        if n == 2:
            A(f"v_xor_b32 {v(vB)}, s64, {v(vR)}")
        else:
            A(f"v_lshrrev_b32 {v(vB)}, 1, {v(vR)}")
            A(f"v_xor_b32 {v(vB)}, s64, {v(vB)}")
        A(f"v_lshl_add_u32 {v(vB)}, {v(vB)}, 6, {v(vIn)}")
        A(f"v_mul_u32_u24 {v(dst[j])}, {pitch}, {v(vRow)}")
        A(f"v_add_u32 {v(dst[j])}, {v(dst[j])}, {v(vB)}")
        A(f"v_add_u32 {v(dst[j])}, {LDS_W + off}, {v(dst[j])}")

def gen(A, prefetch=None, variant="", extra_tail=None):
    SC = ' sc1' if 'plainst' not in variant else ''
    NTX = ' nt' if 'ntx' in variant else ''
    NTW = ' nt' if 'ntw' in variant else ''
    sX, sW, sG, sU, sWS = 8, 12, 16, 20, 24
    sWave, sRb, sCt, sT0, sT1, sT2, sT3, sI = 28, 29, 30, 31, 32, 33, 34, 35
    kernel_header(A, NAME)
    if "early" in variant: stamp(A, 0)
    A("s_cmp_ge_u32 s2, 256")
    A("s_cbranch_scc1 L_k1_end")
    A(f"s_load_dwordx4 s[4:7], s[0:1], {K_X}")
    A(f"s_load_dwordx4 s[36:39], s[0:1], {K_WG}")
    A(f"s_load_dwordx2 s[40:41], s[0:1], {K_WS}")
    A(f"s_load_dwordx2 s[66:67], s[0:1], {K_DBG}")
    A("v_lshrrev_b32 v1, 6, v0")
    A("v_and_b32 v2, 63, v0")
    A(f"v_readfirstlane_b32 {s(sWave)}, v1")
    A.c("workgroup -> (row block, column tile): each XCD covers 8 row blocks x 4 column tiles")
    A(f"s_and_b32 {s(sT0)}, s2, 7")
    A(f"s_lshr_b32 {s(sT1)}, s2, 3")
    A(f"s_and_b32 {s(sRb)}, {s(sT0)}, 1")
    A(f"s_lshl_b32 {s(sRb)}, {s(sRb)}, 3")
    A(f"s_and_b32 {s(sT2)}, {s(sT1)}, 7")
    A(f"s_add_u32 {s(sRb)}, {s(sRb)}, {s(sT2)}")
    A(f"s_lshr_b32 {s(sCt)}, {s(sT0)}, 1")
    A(f"s_lshl_b32 {s(sCt)}, {s(sCt)}, 2")
    A(f"s_lshr_b32 {s(sT2)}, {s(sT1)}, 3")
    A(f"s_add_u32 {s(sCt)}, {s(sCt)}, {s(sT2)}")
    A(f"s_and_b32 {s(sI)}, {s(sCt)}, 7")
    A("s_waitcnt lgkmcnt(0)")
    srd(A, sX, 4, S * D * 2)
    srd(A, sW, 6, D * 3 * D * 2)
    srd(A, sG, 36, D * F * 2)
    srd(A, sU, 38, D * F * 2)
    srd(A, sWS, 40, WS_SIZE)
    vL = 2
    dbg_time(A, 0, sWave, 0, tag="k1")
    stamp(A, 0 if "early" not in variant else 4)
    if "tlb" in variant:
        A.c("touch every page of the buffers early so that address translation misses overlap")
        A(f"v_lshlrev_b32 v3, 19, {v(vL)}")
        for k, d in enumerate((sX, sW, sG, sU, sWS)):
            A(f"s_cmp_lg_u32 {s(sWave)}, {k}")
            A(f"s_cbranch_scc1 L_k1_tlb{k}")
            A(f"buffer_load_dword v31, v3, {s(d,4)}, 0 offen")
            A.label(f"L_k1_tlb{k}")
    if common.STAMPS:
        A(f"s_lshl_b32 s69, s2, 3")
        A(f"s_add_u32 s69, s69, {s(sWave)}")
    A(f"s_cmp_ge_u32 {s(sWave)}, 4")
    A("s_cbranch_scc1 L_k1_loader")

    vT, vHf = 3, 4
    vXa = [[5 + 4 * sg + k for k in range(4)] for sg in range(2)]
    vWa = [13, 14, 15, 16, 17]
    vSum, vSq = [18, 19], [20, 21]
    vU = [22, 23, 24, 25]
    vTmp = 26
    FX = lambda p, sg: 32 + 28 * p + 4 * sg
    FW = lambda p, j: 32 + 28 * p + 8 + 4 * j
    ACC = lambda j, sg: 96 + 32 * j + 16 * sg
    sWm, sWn, sTT0, sTT1 = 42, 43, 44, 45
    A(f"s_lshr_b32 {s(sWm)}, {s(sWave)}, 1")
    A(f"s_and_b32 {s(sWn)}, {s(sWave)}, 1")
    A(f"s_lshl_b32 {s(sT0)}, {s(sWm)}, 1")
    A(f"s_add_u32 {s(sTT0)}, {s(sT0)}, {s(sWn)}")
    A(f"s_xor_b32 {s(sTT1)}, {s(sTT0)}, 1")
    A(f"v_and_b32 {v(vT)}, 31, {v(vL)}")
    A(f"v_lshrrev_b32 {v(vHf)}, 5, {v(vL)}")
    A.c("x fragment addresses: t*128 + 16*((2s+h) ^ ((t>>1)&7)) + tile*4096")
    A(f"v_bfe_u32 {v(vTmp)}, {v(vT)}, 1, 3")
    A(f"v_xor_b32 {v(vTmp)}, {v(vTmp)}, {v(vHf)}")
    A(f"v_lshlrev_b32 {v(vTmp)}, 4, {v(vTmp)}")
    A(f"v_lshl_add_u32 {v(vTmp)}, {v(vT)}, 7, {v(vTmp)}")
    for sg, st in ((0, sTT0), (1, sTT1)):
        A(f"s_lshl_b32 {s(sT0)}, {s(st)}, 12")
        A(f"v_add_u32 {v(vXa[sg][0])}, {s(sT0)}, {v(vTmp)}")
        for k in range(1, 4):
            A(f"v_xor_b32 {v(vXa[sg][k])}, {32*k}, {v(vXa[sg][0])}")
    A.c("waves 2,3: rows 8ct + 4wn .. +3 of this row block, two rows per pass")
    RW = 96
    A(f"s_cmp_eq_u32 {s(sWm)}, 0")
    A("s_cbranch_scc1 L_k1_norows")
    A(f"v_mul_u32_u24 v26, 1280, {v(vHf)}")
    A(f"v_lshl_add_u32 v26, {v(vT)}, 4, v26")
    A(f"v_cmp_gt_u32 vcc, 16, {v(vT)}")
    A(f"v_add_u32 v27, 1024, v26")
    A(f"v_mov_b32 v28, 0x7ff00000")
    A(f"s_lshl_b32 {s(sT0)}, {s(sRb)}, 7")
    A(f"s_lshl_b32 {s(sT1)}, {s(sCt)}, 3")
    A(f"s_add_u32 {s(sT0)}, {s(sT0)}, {s(sT1)}")
    A(f"s_lshl_b32 {s(sT1)}, {s(sWn)}, 2")
    A(f"s_add_u32 {s(sT3)}, {s(sT0)}, {s(sT1)}")
    A(f"v_cndmask_b32 v27, v28, v27, vcc")
    A(f"s_mul_i32 {s(sT0)}, {s(sT3)}, 1280")
    for p in range(2):
        A(f"buffer_load_dwordx4 {v(RW+12*p,4)}, v26, {s(sX,4)}, {s(sT0)} offen")
        A(f"buffer_load_dwordx4 {v(RW+12*p+4,4)}, v26, {s(sX,4)}, {s(sT0)} offen offset:512")
        A(f"buffer_load_dwordx4 {v(RW+12*p+8,4)}, v27, {s(sX,4)}, {s(sT0)} offen")
        if p == 0: A(f"s_add_u32 {s(sT0)}, {s(sT0)}, 2560")
    A.label("L_k1_norows")

    def side_job(typ):
        t = f"{typ}"
        A(f"s_cmp_eq_u32 {s(sWm)}, 0")
        A(f"s_cbranch_scc1 L_k1_sjd{t}")
        A.c("row statistics of four rows")
        A("s_waitcnt vmcnt(0)")
        for p in range(2):
            R = RW + 12 * p
            sm, sq = 120, 121
            for k in range(12):
                lo, hi = 122 + 2 * (k & 1), 123 + 2 * (k & 1)
                A(f"v_lshlrev_b32 {v(lo)}, 16, {v(R+k)}")
                A(f"v_and_b32 {v(hi)}, 0xffff0000, {v(R+k)}")
                if k == 0:
                    A(f"v_add_f32 {v(sm)}, {v(lo)}, {v(hi)}")
                    A(f"v_mul_f32 {v(sq)}, {v(lo)}, {v(lo)}")
                else:
                    A(f"v_add_f32 {v(sm)}, {v(sm)}, {v(lo)}")
                    A(f"v_fmac_f32 {v(sq)}, {v(lo)}, {v(lo)}")
                    A(f"v_add_f32 {v(sm)}, {v(sm)}, {v(hi)}")
                A(f"v_fmac_f32 {v(sq)}, {v(hi)}, {v(hi)}")
            for rot in (8, 4, 2, 1):
                A("s_nop 1")
                A(f"v_add_f32_dpp {v(sm)}, {v(sm)}, {v(sm)} row_ror:{rot} row_mask:0xf bank_mask:0xf")
                A(f"v_add_f32_dpp {v(sq)}, {v(sq)}, {v(sq)} row_ror:{rot} row_mask:0xf bank_mask:0xf")
            A(f"v_mov_b32 v122, {v(sm)}")
            A(f"v_mov_b32 v123, {v(sq)}")
            A("s_nop 1")
            A(f"v_permlane16_swap_b32 v122, {v(sm)}")
            A(f"v_permlane16_swap_b32 v123, {v(sq)}")
            A("s_nop 0")
            A(f"v_add_f32 {v(sm)}, {v(sm)}, v122")
            A(f"v_add_f32 {v(sq)}, {v(sq)}, v123")
            d0 = 126 + 2 * p
            A(f"v_mul_f32 {v(d0)}, {f32bits(1.0/D):#x}, {v(sm)}")
            A(f"v_mul_f32 {v(sq)}, {f32bits(1.0/D):#x}, {v(sq)}")
            A(f"v_fma_f32 {v(sq)}, -{v(d0)}, {v(d0)}, {v(sq)}")
            A(f"v_max_f32 {v(sq)}, 0, {v(sq)}")
            A(f"v_add_f32 {v(sq)}, {f32bits(1e-5):#x}, {v(sq)}")
            A(f"v_rsq_f32 {v(d0+1)}, {v(sq)}")
        A.c("lanes 0 and 32 hold the rows: token = first + 2p + half")
        A(f"v_lshlrev_b32 v26, 3, {v(vHf)}")
        A(f"s_lshl_b32 {s(sT0)}, {s(sT3)}, 3")
        A(f"s_add_u32 {s(sT0)}, {s(sT0)}, {WS_STAT}")
        A(f"v_cmp_eq_u32 vcc, 0, {v(vT)}")
        A("s_nop 0")
        A("s_and_saveexec_b64 s[68:69], vcc" if not common.STAMPS else "s_and_saveexec_b64 s[76:77], vcc")
        for p in range(2): A(f"buffer_store_dwordx2 {v(126+2*p,2)}, v26, {s(sWS,4)}, {s(sT0)} offen offset:{16*p} sc1")
        A("s_mov_b64 exec, -1")
        A.label(f"L_k1_sjd{t}")

    def mainloop(typ):
        pitch = [IMG[typ][k][1] for (k, _, _) in SLOTS[typ]]
        tag = f"L_k1_loop{typ}"
        sXs, sWsl, sCnt, sDw, sDx = 50, 51, 52, 53, 63
        frag_addrs(A, typ, vWa, vL, sWn, vTmp)
        if prefetch: prefetch(A, f"k1_{typ}", tag, typ)
        side_job(typ)
        for r in range(96, 256): A(f"v_mov_b32 {v(r)}, 0")
        def reads(p, sub):
            out = [f"ds_read_b128 {v(FX(p,sg),4)}, {v(vXa[sg][sub])}" for sg in range(2)]
            for j in range(5):
                for i in range(2):
                    out.append(f"ds_read_b64_tr_b16 {v(FW(p,j)+2*i,2)}, {v(vWa[j])} offset:{(16*(sub&1)+4*i)*pitch[j]}")
            return out
        if "prio" in variant: A("s_setprio 2")
        A("s_barrier")
        stamp(A, 2)
        dbg_time(A, 1, sWave, 0, tag=f"k1t{typ}")
        for ln in reads(0, 0): A(ln)
        A(f"s_mov_b32 {s(sXs)}, 0")
        A(f"s_mov_b32 {s(sWsl)}, 0")
        A(f"s_mov_b32 {s(sCnt)}, 10")
        CSA = [18, 19, 20, 21, 22]; vOn = 23
        def body(dots):
            for n in range(4):
                p = n & 1; nn = (n + 1) & 3
                if n & 1: A("s_barrier")
                mf = lambda j, sg: f"v_mfma_f32_32x32x16_bf16 {v(ACC(j,sg),16)}, {v(FW(p,j),4)}, {v(FX(p,sg),4)}, {v(ACC(j,sg),16)}"
                st = []
                rd = reads(1 - p, nn)
                gap = {m: [] for m in range(10)}
                updx = lambda k: [f"v_add_u32 {v(vXa[sg][k])}, {s(sDx)}, {v(vXa[sg][k])}" for sg in range(2)]
                updw = lambda j: [f"v_add_u32 {v(vWa[j])}, {s(sDw)}, {v(vWa[j])}"]
                if n == 3: gap[0] += updx(0)
                gap[0] += rd[0:2]
                for j in range(5):
                    m = 1 + 2 * j
                    if n & 1: gap[m] += updw(j)
                    gap[m] += rd[2 + 2 * j: 4 + 2 * j]
                    if dots: gap[m] += [f"v_dot2c_f32_bf16 {v(CSA[j])}, {v(FW(p,j)+k)}, {v(vOn)}" for k in range(4)]
                tail = []
                if n == 3:
                    for k in range(1, 4): tail += updx(k)
                if n & 1 == 0:
                    tail += [f"s_add_u32 {s(sT0)}, {s(sWsl)}, {WSZ}", f"s_cmp_eq_u32 {s(sT0)}, {NWS*WSZ}", f"s_cselect_b32 {s(sT0)}, 0, {s(sT0)}",
                             f"s_sub_u32 {s(sDw)}, {s(sT0)}, {s(sWsl)}", f"s_mov_b32 {s(sWsl)}, {s(sT0)}"]
                    if n == 2:
                        tail += [f"s_add_u32 {s(sT0)}, {s(sXs)}, {XS}", f"s_cmp_eq_u32 {s(sT0)}, {NXS*XS}", f"s_cselect_b32 {s(sT0)}, 0, {s(sT0)}",
                                 f"s_sub_u32 {s(sDx)}, {s(sT0)}, {s(sXs)}", f"s_mov_b32 {s(sXs)}, {s(sT0)}"]
                fill = st + tail
                quota = {m: 0 for m in range(10)}
                room = {m: max(0, 5 - len(gap[m])) for m in range(10)}
                left = len(fill)
                while left:
                    progressed = False
                    for m in range(10):
                        if left and quota[m] < room[m]:
                            quota[m] += 1; left -= 1; progressed = True
                    if not progressed:
                        for m in range(10):
                            if left: quota[m] += 1; left -= 1
                fi = 0
                for m, (j, sg) in enumerate([(j, sg) for j in range(5) for sg in range(2)]):
                    if sg == 0: A(f"s_waitcnt lgkmcnt({8 if j == 0 else 10})")
                    A(mf(j, sg))
                    for ln in gap[m]: A(ln)
                    for ln in fill[fi:fi + quota[m]]: A(ln)
                    fi += quota[m]
        A.c("row blocks 0..9 add up the columns of their first 64-deep chunk (waves 0, 1) during a peeled first trip")
        A(f"s_cmp_lt_u32 {s(sRb)}, 10")
        A(f"s_cselect_b32 {s(sT0)}, 0, 1")
        A(f"s_or_b32 {s(sT0)}, {s(sT0)}, {s(sWm)}")
        A(f"s_cmp_lg_u32 {s(sT0)}, 0")
        A(f"s_cbranch_scc1 {tag}")
        for r in CSA: A(f"v_mov_b32 {v(r)}, 0")
        A(f"v_mov_b32 {v(vOn)}, 0x3f803f80")
        A("s_nop 0")
        body(True)
        A("s_nop 2")
        for j in range(5): A(f"v_mov_b32 {v(26+j)}, {v(CSA[j])}")
        A("s_nop 1")
        for j in range(5): A(f"v_permlane32_swap_b32 {v(CSA[j])}, {v(26+j)}")
        A("s_nop 0")
        for j in range(5): A(f"v_add_f32 {v(CSA[j])}, {v(CSA[j])}, {v(26+j)}")
        A(f"s_lshl_b32 {s(sT0)}, {s(sCt)}, 4")
        A(f"s_add_u32 {s(sT0)}, {s(sT0)}, {s(sRb)}")
        A(f"s_mul_i32 {s(sT0)}, {s(sT0)}, 1280")
        A(f"s_mul_i32 {s(sT1)}, {s(sWn)}, 640")
        A(f"s_add_u32 {s(sT0)}, {s(sT0)}, {s(sT1)}")
        A(f"s_add_u32 {s(sT0)}, {s(sT0)}, {WS_PART}")
        A(f"v_lshlrev_b32 v31, 2, {v(vT)}")
        A("s_mov_b32 exec_hi, 0")
        for j in range(5): A(f"buffer_store_dword {v(CSA[j])}, v31, {s(sWS,4)}, {s(sT0)} offen offset:{128*j} sc1")
        A("s_mov_b64 exec, -1")
        A(f"s_mov_b32 {s(sCnt)}, 9")
        A(".p2align 3")
        A.label(tag)
        A(f"s_cmp_eq_u32 {s(sCnt)}, 8")
        A(f"s_cbranch_scc1 L_k1_signal{typ}")
        A.label(f"L_k1_signalled{typ}")
        if "trips" in variant:
            A("s_memtime s[74:75]")
            A("s_waitcnt lgkmcnt(0)")
            A("s_sub_u32 s74, s74, s80")
            A("v_mov_b32 v26, s74")
            A(f"s_lshl_b32 s75, s69, 6")
            A(f"s_sub_u32 s74, 10, {s(sCnt)}")
            A("s_lshl_b32 s74, s74, 2")
            A("s_add_u32 s75, s75, s74")
            A(f"s_add_u32 s75, s75, {WS_STAMP + 0xC0000}")
            A("v_mov_b32 v27, 0")
            A(f"buffer_store_dword v26, v27, {s(sWS,4)}, s75 offen")
        body(False)
        A(f"s_sub_u32 {s(sCnt)}, {s(sCnt)}, 1")
        A(f"s_cmp_lg_u32 {s(sCnt)}, 0")
        A(f"s_cbranch_scc1 {tag}")
        A("s_branch L_k1_post")
        A.c("second trip: the side job's stores have drained; the last of the four waves raises the device counter")
        A.label(f"L_k1_signal{typ}")
        A("s_waitcnt vmcnt(0)")
        A(f"v_mov_b32 v26, {LDS_SIG}")
        A("v_mov_b32 v27, 1")
        A("s_mov_b64 exec, 1")
        A("ds_add_rtn_u32 v28, v26, v27")
        A("s_waitcnt lgkmcnt(0)")
        A(f"v_readfirstlane_b32 {s(sT0)}, v28")
        A("v_mov_b32 v26, 0")
        A(f"s_cmp_lg_u32 {s(sT0)}, 3")
        A(f"s_cbranch_scc1 L_k1_nosig{typ}")
        A("global_atomic_add v26, v27, s[66:67]")
        A.label(f"L_k1_nosig{typ}")
        A("s_mov_b64 exec, -1")
        A(f"s_branch L_k1_signalled{typ}")

    A(f"s_cmp_ge_u32 {s(sCt)}, 8")
    A("s_cbranch_scc1 L_k1_main1")
    mainloop(0)
    A.label("L_k1_main1")
    mainloop(1)
    A.label("L_k1_post")
    dbg_time(A, 2, sWave, 0, tag="k1")
    stamp(A, 3)

    t0, t1 = vTmp, vTmp + 1
    A("s_waitcnt vmcnt(0) lgkmcnt(0)")
    A("s_barrier")
    if "early" not in variant: stamp(A, 4)
    ST = [6, 8]
    for sg, st in ((0, sTT0), (1, sTT1)):
        A(f"s_lshl_b32 {s(sT0)}, {s(st)}, 8")
        A(f"s_add_u32 {s(sT0)}, {s(sT0)}, {LDS_STATS}")
        A(f"v_lshl_add_u32 {v(t0)}, {v(vT)}, 3, {s(sT0)}")
        A(f"ds_read_b64 {v(ST[sg],2)}, {v(t0)}")
    vCsA = 5
    A(f"s_mul_i32 {s(sT0)}, {s(sWn)}, 640")
    A(f"s_add_u32 {s(sT0)}, {s(sT0)}, {LDS_CS}")
    A(f"v_lshl_add_u32 {v(vCsA)}, {v(vHf)}, 4, {s(sT0)}")
    NMU = [10, 12]; RF = [14, 16]; TM = 18; PK = 26
    CS = lambda u, g: 32 + 16 * u + 4 * g
    def load_cs(j, u):
        for g in range(4): A(f"ds_read_b128 {v(CS(u,g),4)}, {v(vCsA)} offset:{128*j + 32*g}")
    vQo, vLin = 30, 31
    A(f"v_lshlrev_b32 {v(vQo)}, 3, {v(vT)}")
    A(f"v_lshl_add_u32 {v(vQo)}, {v(vHf)}, 14, {v(vQo)}")
    A(f"v_lshlrev_b32 {v(vLin)}, 4, {v(vL)}")
    sTok = [54, 55]; sHb = [56, 57]; sU0, sFac = 58, 59
    for sg, st in ((0, sTT0), (1, sTT1)):
        A(f"s_lshl_b32 {s(sT0)}, {s(sRb)}, 2")
        A(f"s_add_u32 {s(sT0)}, {s(sT0)}, {s(st)}")
        A(f"s_lshl_b32 {s(sTok[sg])}, {s(sT0)}, 8")
        A(f"s_add_u32 {s(sTok[sg])}, {s(sTok[sg])}, {WS_QKV}")
        A(f"s_mul_i32 {s(sHb[sg])}, {s(sT0)}, {96*1024}")
        A(f"s_add_u32 {s(sHb[sg])}, {s(sHb[sg])}, {WS_H}")
    A("s_waitcnt lgkmcnt(0)")
    for sg in range(2):
        A(f"v_sub_f32 {v(NMU[sg])}, 0, {v(ST[sg])}")
        A(f"v_mov_b32 {v(RF[sg])}, {v(ST[sg]+1)}")
        A(f"v_mul_f32 {v(RF[sg]+1)}, {f32bits(-LOG2E):#x}, {v(ST[sg]+1)}")

    def q_tile(j, u):
        A(f"s_cmp_lt_u32 {s(sU0)}, 160")
        A(f"s_cselect_b32 {s(sFac)}, {f32bits(QSCALE):#x}, 1.0")
        A(f"s_lshl_b32 {s(sT1)}, {s(sU0)}, 14")
        QF = [20, 22]
        for sg in range(2): A(f"v_mul_f32 {v(QF[sg])}, {s(sFac)}, {v(ST[sg]+1)}")
        for g in range(4):
            for sg in range(2):
                acc = ACC(j, sg) + 4 * g
                for e in range(2):
                    A(f"v_pk_fma_f32 {v(acc+2*e,2)}, {v(CS(u,g)+2*e,2)}, {v(NMU[sg],2)}, {v(acc+2*e,2)} op_sel_hi:[1,0,1]")
            for sg in range(2):
                acc = ACC(j, sg) + 4 * g
                for e in range(2):
                    A(f"v_pk_mul_f32 {v(acc+2*e,2)}, {v(acc+2*e,2)}, {v(QF[sg],2)} op_sel_hi:[1,0]")
            for sg in range(2):
                acc = ACC(j, sg) + 4 * g
                for e in range(2):
                    A(f"v_cvt_pk_bf16_f32 {v(acc+e)}, {v(acc+2*e)}, {v(acc+2*e+1)}")
            for sg in range(2):
                A(f"s_add_u32 {s(sT0)}, {s(sT1)}, {s(sTok[sg])}")
                A(f"s_add_u32 {s(sT0)}, {s(sT0)}, {2*g*PLANE}")
                A(f"buffer_store_dwordx2 {v(ACC(j,sg)+4*g,2)}, {v(vQo)}, {s(sWS,4)}, {s(sT0)} offen{SC}")

    def gu_pair(jg, ju, step_s):
        for sg in range(2):
            g0, u0 = ACC(jg, sg), ACC(ju, sg)
            for g in range(4):
                for e in range(2):
                    A(f"v_pk_fma_f32 {v(g0+4*g+2*e,2)}, {v(CS(0,g)+2*e,2)}, {v(NMU[sg],2)}, {v(g0+4*g+2*e,2)} op_sel_hi:[1,0,1]")
                    A(f"v_pk_fma_f32 {v(u0+4*g+2*e,2)}, {v(CS(1,g)+2*e,2)}, {v(NMU[sg],2)}, {v(u0+4*g+2*e,2)} op_sel_hi:[1,0,1]")
            for half in range(2):
                o = 8 * half
                for e in range(4):
                    A(f"v_pk_mul_f32 {v(TM+2*e,2)}, {v(g0+o+2*e,2)}, {v(RF[sg],2)} op_sel:[0,1] op_sel_hi:[1,1]")
                for e in range(4):
                    A(f"v_pk_mul_f32 {v(g0+o+2*e,2)}, {v(g0+o+2*e,2)}, {v(RF[sg],2)} op_sel_hi:[1,0]")
                for e in range(8): A(f"v_exp_f32 {v(TM+e)}, {v(TM+e)}")
                for e in range(4):
                    A(f"v_pk_mul_f32 {v(u0+o+2*e,2)}, {v(u0+o+2*e,2)}, {v(RF[sg],2)} op_sel_hi:[1,0]")
                for e in range(4):
                    A(f"v_pk_add_f32 {v(TM+2*e,2)}, {v(TM+2*e,2)}, 1.0 op_sel_hi:[1,0]")
                for e in range(4):
                    A(f"v_pk_mul_f32 {v(u0+o+2*e,2)}, {v(u0+o+2*e,2)}, {v(g0+o+2*e,2)}")
                for e in range(8): A(f"v_rcp_f32 {v(TM+e)}, {v(TM+e)}")
                A(f"s_add_u32 {s(sT0)}, {s(step_s)}, {half}")
                A(f"s_lshl_b32 {s(sT0)}, {s(sT0)}, 10")
                A(f"s_add_u32 {s(sT0)}, {s(sT0)}, {s(sHb[sg])}")
                for e in range(4):
                    A(f"v_pk_mul_f32 {v(u0+o+2*e,2)}, {v(u0+o+2*e,2)}, {v(TM+2*e,2)}")
                for e in range(4):
                    A(f"v_cvt_pk_bf16_f32 {v(g0+o+e)}, {v(u0+o+2*e)}, {v(u0+o+2*e+1)}")
                A(f"buffer_store_dwordx4 {v(g0+o,4)}, {v(vLin)}, {s(sWS,4)}, {s(sT0)} offen{SC}")

    sStep = 60
    A(f"s_cmp_ge_u32 {s(sCt)}, 8")
    A("s_cbranch_scc1 L_k1_epi1")
    A.c("type A: unit 16i + 8wn, gate tiles at step 8i + 4wn + 2e")
    load_cs(0, 2)
    load_cs(1, 0); load_cs(2, 1)
    A(f"s_lshl_b32 {s(sU0)}, {s(sI)}, 4")
    A(f"s_lshl_b32 {s(sT0)}, {s(sWn)}, 3")
    A(f"s_add_u32 {s(sU0)}, {s(sU0)}, {s(sT0)}")
    A(f"s_lshr_b32 {s(sStep)}, {s(sU0)}, 1")
    A("s_waitcnt lgkmcnt(8)")
    q_tile(0, 2)
    A("s_waitcnt lgkmcnt(0)")
    gu_pair(1, 2, sStep)
    load_cs(3, 0); load_cs(4, 1)
    A(f"s_add_u32 {s(sStep)}, {s(sStep)}, 2")
    A("s_waitcnt lgkmcnt(0)")
    gu_pair(3, 4, sStep)
    A("s_branch L_k1_done")
    A.label("L_k1_epi1")
    A.c("type B: units 128 + 48i + 24wn + 8q (only below 480), gate tile at step 64 + 4i + 2wn")
    load_cs(0, 2)
    load_cs(3, 0); load_cs(4, 1)
    A(f"s_mul_i32 {s(sU0)}, {s(sI)}, 48")
    A(f"s_mul_i32 {s(sT0)}, {s(sWn)}, 24")
    A(f"s_add_u32 {s(sU0)}, {s(sU0)}, {s(sT0)}")
    A(f"s_add_u32 {s(sU0)}, {s(sU0)}, 128")
    A(f"s_lshl_b32 {s(sStep)}, {s(sI)}, 2")
    A(f"s_lshl_b32 {s(sT0)}, {s(sWn)}, 1")
    A(f"s_add_u32 {s(sStep)}, {s(sStep)}, {s(sT0)}")
    A(f"s_add_u32 {s(sStep)}, {s(sStep)}, 64")
    A("s_waitcnt lgkmcnt(0)")
    gu_pair(3, 4, sStep)
    for q in range(3):
        A(f"s_cmp_ge_u32 {s(sU0)}, 480")
        A("s_cbranch_scc1 L_k1_done")
        if q:
            load_cs(q, 2)
            A("s_waitcnt lgkmcnt(0)")
        q_tile(q, 2)
        A(f"s_add_u32 {s(sU0)}, {s(sU0)}, 8")
    A.label("L_k1_done")
    dbg_time(A, 3, sWave, 0, tag="k1")
    stamp(A, 5)
    if common.STAMPS: A("s_waitcnt vmcnt(0)")
    stamp(A, 6)
    stamp_flush(A, 7, 69, sWS, 22)
    A("s_endpgm")

    A.label("L_k1_loader")
    sLw, sXo, sWo, sGo, sMx, sXsl, sWsl2, sCsl, sPair, sXk, sWk, sSp, sHalf = 42, 43, 44, 45, 46, 47, 48, 49, 50, 51, 52, 53, 54
    vXe, vXo = 3, 4
    vQ = [5, 6, 7]; vG = 8
    A(f"s_sub_u32 {s(sLw)}, {s(sWave)}, 4")
    A(f"v_mov_b32 v10, {LDS_SIG}")
    A("v_mov_b32 v11, 0")
    A("ds_write_b32 v10, v11")
    if "hprio" in variant: A("s_setprio 3")
    A.c("x pieces: 8 rows x 128 B, granule p of row t holds source granule p ^ ((t>>1)&7)")
    A(f"v_lshrrev_b32 v10, 3, {v(vL)}")
    A(f"v_mul_u32_u24 v10, 1280, v10")
    A(f"v_and_b32 v11, 7, {v(vL)}")
    A(f"v_lshrrev_b32 v12, 4, {v(vL)}")
    A(f"v_xor_b32 v11, v11, v12")
    A(f"v_lshl_add_u32 {v(vXe)}, v11, 4, v10")
    A(f"v_xor_b32 v11, 4, v11")
    A(f"v_lshl_add_u32 {v(vXo)}, v11, 4, v10")
    A(f"s_lshl_b32 {s(sT0)}, {s(sRb)}, 7")
    A(f"s_lshl_b32 {s(sT1)}, {s(sLw)}, 5")
    A(f"s_add_u32 {s(sT0)}, {s(sT0)}, {s(sT1)}")
    A(f"s_mul_i32 {s(sXo)}, {s(sT0)}, 1280")
    A(f"s_lshl_b32 {s(sMx)}, {s(sLw)}, 12")
    A(f"s_add_u32 {s(sMx)}, {s(sMx)}, {LDS_X}")
    for r in (sXsl, sWsl2, sCsl): A(f"s_mov_b32 {s(r)}, 0")
    A.c("rotated k order: workgroups that share rows or columns start at different chunks")
    A(f"s_cmp_ge_u32 {s(sRb)}, 10")
    A(f"s_cselect_b32 {s(sT0)}, 10, 0")
    A(f"s_sub_u32 {s(sXk)}, {s(sRb)}, {s(sT0)}")
    A(f"s_lshl_b32 {s(sWk)}, {s(sXk)}, 1")
    A(f"s_lshl_b32 {s(sT0)}, {s(sXk)}, 7")
    A(f"s_add_u32 {s(sXo)}, {s(sXo)}, {s(sT0)}")
    A(f"s_and_b32 {s(sSp)}, {s(sLw)}, 1")
    A(f"s_lshr_b32 {s(sHalf)}, {s(sLw)}, 1")

    def lane_offsets(n, pitchg, dst):
        if n == 1:
            A(f"v_lshrrev_b32 v10, 3, {v(vL)}")
            A(f"v_bfe_u32 v11, v10, 1, 1")
            A(f"v_lshlrev_b32 v11, 2, v11")
            A(f"v_and_b32 v12, 7, {v(vL)}")
            A(f"v_xor_b32 v12, v12, v11")
            A(f"v_mul_u32_u24 v10, {pitchg}, v10")
            A(f"v_lshl_add_u32 {v(dst[0])}, v12, 4, v10")
        elif n == 2:
            A(f"v_lshrrev_b32 v10, 4, {v(vL)}")
            A(f"v_lshlrev_b32 v11, 2, v10")
            A(f"v_and_b32 v12, 15, {v(vL)}")
            A(f"v_xor_b32 v12, v12, v11")
            A(f"v_mul_u32_u24 v10, {pitchg}, v10")
            A(f"v_lshl_add_u32 {v(dst[0])}, v12, 4, v10")
        else:
            for e in range(3):
                A(f"v_add_u32 v10, {64*e}, {v(vL)}")
                A(f"v_mul_u32_u24 v11, 43691, v10")
                A(f"v_lshrrev_b32 v11, 20, v11")
                A(f"v_mul_u32_u24 v12, 24, v11")
                A(f"v_sub_u32 v12, v10, v12")
                A(f"v_bfe_u32 v13, v11, 1, 1")
                A(f"v_lshlrev_b32 v13, 2, v13")
                A(f"v_xor_b32 v12, v12, v13")
                A(f"v_mul_u32_u24 v11, {pitchg}, v11")
                A(f"v_lshl_add_u32 {v(dst[e])}, v12, 4, v11")

    def wrap(r, step, n):
        return [f"s_add_u32 {s(r)}, {s(r)}, {step}", f"s_cmp_eq_u32 {s(r)}, {step*n}", f"s_cselect_b32 {s(r)}, 0, {s(r)}"]

    ACS = [16, 17, 18, 19, 20]; ACH = [21, 22, 23, 14, 15]
    FB = lambda j: 24 + 4 * j
    vCa = [44, 45, 46, 47, 48]
    UP = [50, 51, 52, 53]; vOn = 54
    A4 = lambda j: 64 + 4 * j; vOn2 = 84

    def loader(typ):
        T = f"t{typ}"
        qoff, qp, qn = IMG[typ]["q"]; goff, gp, gn = IMG[typ]["g"]; uoff = IMG[typ]["u"][0]
        lane_offsets(qn, 3840, vQ)
        lane_offsets(gn, 3072, [vG])
        A.c("global offsets of this loader's 8 rows")
        A(f"s_mul_i32 {s(sWo)}, {s(sLw)}, {8*3840}")
        A(f"s_mul_i32 {s(sGo)}, {s(sLw)}, {8*3072}")
        if typ == 0:
            A(f"s_lshl_b32 {s(sT0)}, {s(sI)}, 7"); A(f"s_lshl_b32 {s(sT1)}, {s(sI)}, 8")
        else:
            A(f"s_mul_i32 {s(sT0)}, {s(sI)}, 384"); A(f"s_add_u32 {s(sT0)}, {s(sT0)}, 1024")
            A(f"s_lshl_b32 {s(sT1)}, {s(sI)}, 7"); A(f"s_add_u32 {s(sT1)}, {s(sT1)}, 2048")
        A(f"s_add_u32 {s(sWo)}, {s(sWo)}, {s(sT0)}")
        A(f"s_add_u32 {s(sGo)}, {s(sGo)}, {s(sT1)}")
        A(f"s_mul_i32 {s(sT0)}, {s(sWk)}, {32*3840}")
        A(f"s_add_u32 {s(sWo)}, {s(sWo)}, {s(sT0)}")
        A(f"s_mul_i32 {s(sT0)}, {s(sWk)}, {32*3072}")
        A(f"s_add_u32 {s(sGo)}, {s(sGo)}, {s(sT0)}")
        sMq, sMg, sB1, sB2 = 55, 56, 57, 58
        A(f"s_mul_i32 {s(sMq)}, {s(sLw)}, {8*qp}")
        A(f"s_add_u32 {s(sMq)}, {s(sMq)}, {LDS_W + qoff}")
        A(f"s_mul_i32 {s(sMg)}, {s(sLw)}, {8*gp}")
        A(f"s_add_u32 {s(sMg)}, {s(sMg)}, {LDS_W + goff}")
        def x_groups():
            g = []
            for ii in range(4):
                pre = [f"s_add_u32 {s(sB1)}, {s(sMx)}, {s(sXsl)}"] if ii == 0 else []
                g.append(pre + [f"s_add_u32 m0, {s(sB1)}, {ii*1024}", f"s_add_u32 {s(sT0)}, {s(sXo)}, {ii*10240}",
                                f"buffer_load_dwordx4 {v(vXo if ii & 1 else vXe)}, {s(sX,4)}, {s(sT0)} offen{NTX} lds"])
            g[-1] += [f"s_add_u32 {s(sXo)}, {s(sXo)}, 128", f"s_add_u32 {s(sXk)}, {s(sXk)}, 1", f"s_cmp_eq_u32 {s(sXk)}, 10",
                      f"s_cselect_b32 {s(sT0)}, 1280, 0", f"s_cselect_b32 {s(sXk)}, 0, {s(sXk)}",
                      f"s_sub_u32 {s(sXo)}, {s(sXo)}, {s(sT0)}"] + wrap(sXsl, XS, NXS)
            return g
        def w_groups():
            g = []
            for e in range(qn):
                pre = [f"s_add_u32 {s(sB1)}, {s(sMq)}, {s(sWsl2)}", f"s_add_u32 {s(sB2)}, {s(sMg)}, {s(sWsl2)}"] if e == 0 else []
                g.append(pre + [f"s_add_u32 m0, {s(sB1)}, {e*1024}", "s_nop 0",
                                f"buffer_load_dwordx4 {v(vQ[e] if qn == 3 else vQ[0])}, {s(sW,4)}, {s(sWo)} offen{NTW} lds"])
            for desc, off in ((sG, 0), (sU, uoff - goff)):
                for e in range(gn):
                    g.append([f"s_add_u32 m0, {s(sB2)}, {off + e*1024}", f"s_add_u32 {s(sT0)}, {s(sGo)}, {e*4*3072}",
                              f"buffer_load_dwordx4 {v(vG)}, {s(desc,4)}, {s(sT0)} offen{NTW} lds"])
            g[-1] += [f"s_add_u32 {s(sWo)}, {s(sWo)}, {32*3840}", f"s_add_u32 {s(sGo)}, {s(sGo)}, {32*3072}",
                      f"s_add_u32 {s(sWk)}, {s(sWk)}, 1", f"s_cmp_eq_u32 {s(sWk)}, 20",
                      f"s_cselect_b32 {s(sT0)}, {640*3840}, 0", f"s_cselect_b32 {s(sT1)}, {640*3072}, 0", f"s_cselect_b32 {s(sWk)}, 0, {s(sWk)}",
                      f"s_sub_u32 {s(sWo)}, {s(sWo)}, {s(sT0)}", f"s_sub_u32 {s(sGo)}, {s(sGo)}, {s(sT1)}"] + wrap(sWsl2, WSZ, NWS)
            return g
        def emit(groups):
            for g in groups:
                for ln in g: A(ln)
        if "early" in variant: stamp(A, 3)
        emit(x_groups() + w_groups())
        def interval(groups): emit(groups)
        def bar(cnt, st=None):
            A(f"s_waitcnt vmcnt({cnt})")
            if st is not None: stamp(A, st)
            A("s_barrier")
        stamp(A, 1)
        A("s_waitcnt lgkmcnt(0)")
        bar(0, 2)
        interval(w_groups() + x_groups() + w_groups())
        bar(9, 3 if 'early' not in variant else None)
        interval(w_groups() + x_groups() + w_groups())
        A(f"s_mov_b32 {s(sPair)}, 7")
        A.label(f"L_k1_lpair{T}")
        bar(14)
        interval(w_groups())
        bar(14)
        interval(x_groups() + w_groups())
        A(f"s_sub_u32 {s(sPair)}, {s(sPair)}, 1")
        A(f"s_cmp_lg_u32 {s(sPair)}, 0")
        A(f"s_cbranch_scc1 L_k1_lpair{T}")
        bar(14)
        interval(w_groups())

    A(f"s_cmp_ge_u32 {s(sCt)}, 8")
    A("s_cbranch_scc1 L_k1_loader1")
    loader(0)
    A("s_branch L_k1_lsum")
    A.label("L_k1_loader1")
    loader(1)
    A.label("L_k1_lsum")
    A.c("gather the exchanged sums: the device counter shows when all 256 side jobs are published")
    A("v_mov_b32 v10, 0")
    A("global_load_dword v16, v10, s[66:67] sc1")
    A("s_waitcnt vmcnt(15)")
    A("s_barrier")
    A("s_waitcnt vmcnt(0)")
    A("s_barrier")
    A(f"s_mov_b32 {s(sPair)}, 0x10000")
    A.label("L_k1_gpoll")
    A(f"v_readfirstlane_b32 {s(sT0)}, v16")
    A(f"s_sub_u32 {s(sPair)}, {s(sPair)}, 1")
    A("s_cbranch_scc1 L_k1_gok")
    A(f"s_cmp_ge_u32 {s(sT0)}, 256")
    A("s_cbranch_scc1 L_k1_gok")
    A("s_sleep 2")
    A("global_load_dword v16, v10, s[66:67] sc1")
    A("s_waitcnt vmcnt(0)")
    A("s_branch L_k1_gpoll")
    A.label("L_k1_gok")
    A.c("thread t sums column t (and loader 0 columns 256..319) over the ten chunk partials")
    A(f"v_lshlrev_b32 v11, 2, {v(vL)}")
    A(f"s_lshl_b32 {s(sT1)}, {s(sLw)}, 8")
    A(f"v_add_u32 v11, {s(sT1)}, v11")
    A(f"v_lshlrev_b32 v12, 2, {v(vL)}")
    A(f"v_add_u32 v12, 1024, v12")
    A(f"v_mov_b32 v13, 0x7ff00000")
    A(f"s_cmp_eq_u32 {s(sLw)}, 0")
    A(f"s_cselect_b64 vcc, -1, 0")
    A(f"s_mul_i32 {s(sT0)}, {s(sCt)}, {16*1280}")
    A(f"s_add_u32 {s(sT0)}, {s(sT0)}, {WS_PART}")
    A(f"v_cndmask_b32 v13, v13, v12, vcc")
    for r in range(10):
        A(f"buffer_load_dword {v(16+r)}, v11, {s(sWS,4)}, {s(sT0)} offen sc1")
        A(f"buffer_load_dword {v(32+r)}, v13, {s(sWS,4)}, {s(sT0)} offen sc1")
        if r < 9: A(f"s_add_u32 {s(sT0)}, {s(sT0)}, 1280")
    A.c("mean / rstd of the 128 rows: 1 KiB")
    A(f"v_lshlrev_b32 v14, 4, {v(vL)}")
    A(f"s_lshl_b32 {s(sT1)}, {s(sRb)}, 10")
    A(f"s_add_u32 {s(sT1)}, {s(sT1)}, {WS_STAT}")
    A(f"buffer_load_dwordx4 v[48:51], v14, {s(sWS,4)}, {s(sT1)} offen sc1")
    A("s_barrier")
    A("s_waitcnt vmcnt(0)")
    for (a, b) in ((0, 5), (1, 6), (2, 7), (3, 8), (4, 9), (0, 1), (2, 3), (0, 2), (0, 4)):
        A(f"v_add_f32 {v(16+a)}, {v(16+a)}, {v(16+b)}")
        A(f"v_add_f32 {v(32+a)}, {v(32+a)}, {v(32+b)}")
    A(f"v_add_u32 v11, {LDS_CS}, v11")
    A(f"ds_write_b32 v11, v16")
    A(f"s_cmp_lg_u32 {s(sLw)}, 0")
    A("s_cbranch_scc1 L_k1_g2")
    A(f"v_add_u32 v12, {LDS_CS}, v12")
    A(f"ds_write_b32 v12, v32")
    A(f"v_add_u32 v14, {LDS_STATS}, v14")
    A(f"ds_write_b128 v14, v[48:51]")
    A.label("L_k1_g2")
    A("s_waitcnt lgkmcnt(0)")
    A("s_barrier")
    A("s_barrier")
    if extra_tail: extra_tail(A, sWS, sLw, sRb, sCt, vL)
    stamp(A, 6)
    stamp_flush(A, 7, 69, sWS, 60)
    A.label("L_k1_end")
    A("s_endpgm")
    return NAME, 512, LDS_BYTES, descriptor(NAME, NV, nsgpr=102 if common.DBGT else 96)
```

```python
import sys
from build import *
import k0, k1c, k1d, k1e, attn3, ffn, fused, common
args = sys.argv[1:]
out = args[0] if args else "cur.s"
if "stamps" in args: common.STAMPS = True
if "debug" in args: common.DEBUG = True
if "dbgt" in args: common.DBGT = True
variant = ",".join(args[1:])
if "cpf1" in args: fused.PREFETCH_CODE = True
def pf1(A, tag, label, typ):
    code_prefetch(A, tag, label, 2, 46, 26, 28, 2)
    code_prefetch(A, tag + "e", "L_k1_post", 6, 46, 26, 28, 2)
specs = [("norm_kernel", {}), ("norm_kernel", {"L_k0_noflag": True, "L_k0_code0": True, "L_k0_code1": True}),
         ("proj_kernel", {}), ("proj_kernel", {"L_k1_main1": True, "L_k1_epi1": True}),
         ("proj_kernel", {"L_k1_loader": True}), ("proj_kernel", {"L_k1_loader": True, "L_k1_loader1": True})]
g = {"L_go_attn0": True, "L_go_attn": True, "L_go_attnx": True}
specs += [("main_kernel", dict(g)), ("main_kernel", dict(g, L_attn_nodma=True, L_attn_noones=True, L_attn_dma1=True, L_attn_dma2=True, L_attn_dma3=True, L_main_nosig=True)),
          ("main_kernel", dict(g, L_attn_give_b=True)), ("main_kernel", dict(g, L_attn_exact=[True, False], L_attn_norm=[False, True]))]
g2 = {"L_main_gemm": True, "L_gg_o": True, "L_go_gred": True, "L_go_own": True}
specs += [("main_kernel", dict(g2)), ("main_kernel", dict(g2, L_main_res0=True, L_main_res1=True, L_main_res2=True, L_main_last=True))]
av = variant + ("" if "cyc" in variant else ",cyc3")
def with_stamps(fn, which, base=0):
    def g(A):
        common.STAMP_BASE = base if "all3" in args else 0
        old = common.STAMPS
        common.STAMPS = old and (which in args or not any(a.startswith("stk") for a in args))
        r = fn(A)
        common.STAMPS = old
        return r
    return g
ks = [with_stamps(lambda A: k0.gen(A, (("proj_kernel", 16), ("main_kernel", 16)), variant), "stk0", 0), with_stamps(lambda A: k1d.gen(A, pf1, variant), "stk1", 0x40000), with_stamps(lambda A: fused.gen(A, av), "stk2", 0x80000)]
if "two" in args:
    def pf1c(A, tag, label, typ):
        code_prefetch(A, tag, label, 4, 46, 92, 88, 2)
        code_prefetch(A, tag + "e", "L_k1_post", 8, 46, 92, 88, 2)
    ks = [with_stamps(lambda A: k1c.gen(A, pf1c, variant, extra_tail=fused.zero_flags), "stk1", 0x40000), ks[2]]
    specs = [("proj_kernel", {}), ("proj_kernel", {"L_k1_main1": True, "L_k1_epi1": True}),
         ("proj_kernel", {"L_k1_loader": True}), ("proj_kernel", {"L_k1_loader": True, "L_k1_loader1": True, "L_k1_cs3": True})] + specs[6:]
if "exch" in args:
    def pf1e(A, tag, label, typ):
        code_prefetch(A, tag, label, 4, 46, 92, 88, 2)
        code_prefetch(A, tag + "e", "L_k1_post", 8, 46, 92, 88, 2)
    ks = [with_stamps(lambda A: k1e.gen(A, pf1e, variant, extra_tail=fused.zero_flags), "stk1", 0x40000), ks[-1]]
    specs = [("proj_kernel", {"L_k1_norows": True, "L_k1_sjd0": True}), ("proj_kernel", {"L_k1_main1": True, "L_k1_epi1": True, "L_k1_loop1": [True, True, False]}),
         ("proj_kernel", {"L_k1_main1": True, "L_k1_epi1": True, "L_k1_norows": True, "L_k1_sjd1": True}),
         ("proj_kernel", {"L_k1_loop0": [True, True, False]}), ("proj_kernel", {"L_k1_norows": True, "L_k1_sjd0": True, "L_k1_signal0": [True, False], "L_k1_nosig0": True}),
         ("proj_kernel", {"L_k1_loader": True, "L_k1_gok": True}), ("proj_kernel", {"L_k1_loader": True, "L_k1_loader1": True, "L_k1_gok": True, "L_k1_g2": True})] + specs[-6:]
sel = [a for a in args if a.startswith('only=')]
if sel: ks = [ks[int(i)] for i in sel[0][5:].split('+')]; specs = []
build(ks, out, specs)
assemble_check(out)
```
